```python
import torch

def _softmax(x, axis=-1):
    return torch.softmax(x, dim=axis)
def _gelu(x):
    return torch.nn.functional.gelu(x, approximate="tanh")
def _silu(x):
    return torch.nn.functional.silu(x)
def _sigmoid(x):
    return torch.sigmoid(x)
def _layernorm(x, axis=-1, eps=1e-5):
    m = x.mean(dim=axis, keepdim=True)
    v = x.var(dim=axis, keepdim=True, unbiased=False)
    return (x - m) / torch.sqrt(v + eps)
def _scatter_add(tgt, idx, src, axis=0):
    return tgt.clone().index_add_(axis, idx, src)
def _segment_sum(src, seg, n):
    out = torch.zeros((n,) + src.shape[1:], dtype=src.dtype)
    return out.index_add_(0, seg, src)
def _pad(x, pw):
    flat = tuple(v for pair in reversed(pw) for v in pair)
    return torch.nn.functional.pad(x, flat)

kernel_name = 'sequential_preLN__mha_block__dense_activation_relu__prompt'

def setup_inputs():

    _w = (lambda a: (lambda t: t.to(torch.bfloat16) if t.is_floating_point() else t)(torch.as_tensor(a)))
    def _A_setup():
        B, S, D, H = 1, 2048, 640, 32
        return {
            "x": _w((lambda *s: torch.randn(*s, dtype=torch.bfloat16) * 0.05)(B, S, D)),
            "wqkv": _w((lambda *s: torch.randn(*s, dtype=torch.bfloat16) * 0.05)(D, 3 * D)),
            "wo": _w((lambda *s: torch.randn(*s, dtype=torch.bfloat16) * 0.05)(D, D)),
        }
    _A_in = _A_setup()

    def _B_setup():
        B, S, D, Dff = 1, 2048, 640, 1728
        return {
            "x": _w((lambda *s: torch.randn(*s, dtype=torch.bfloat16) * 0.05)(B, S, D)),
            "w1": _w((lambda *s: torch.randn(*s, dtype=torch.bfloat16) * 0.05)(D, Dff)),
            "w2": _w((lambda *s: torch.randn(*s, dtype=torch.bfloat16) * 0.05)(Dff, D)),
        }
    _B_in = _B_setup()

    return {
        "A_x": _A_in["x"],
        "A_wqkv": _A_in["wqkv"],
        "A_wo": _A_in["wo"],
        "B_x": _B_in["x"],
        "B_w1": _B_in["w1"],
        "B_w2": _B_in["w2"],
    }

def reference(A_x, A_wqkv, A_wo, B_x, B_w1, B_w2):
    def _A_ref(x, wqkv, wo):
        B, S, D = x.shape
        H = 32
        Dh = D // H
        qkv = (lambda x, *d: x.permute(*d))((x @ wqkv).reshape(B, S, 3, H, Dh), 2, 0, 3, 1, 4)
        q, k, v = qkv[0], qkv[1], qkv[2]
        scores = torch.einsum("bhqd,bhkd->bhqk", q, k) * (Dh ** -0.5)
        p = _softmax(scores, axis=-1)
        o = torch.einsum("bhqk,bhkd->bhqd", p, v)
        return (lambda x, *d: x.permute(*d))(o, 0, 2, 1, 3).reshape(B, S, D) @ wo

    def _B_ref(x, w1, w2):
        h = torch.einsum("bsd,df->bsf", x, w1)
        zero = torch.zeros_like(h)
        h = torch.maximum(h, zero)
        return torch.einsum("bsf,fd->bsd", h, w2)

    x = A_x
    h = x + _A_ref(_layernorm(x, axis=-1), A_wqkv, A_wo)
    h2 = h + _B_ref(_layernorm(h, axis=-1), B_w1, B_w2)
    return h2
```

```python
import re

TRANS = ("v_exp_", "v_log_", "v_rcp_", "v_rsq_", "v_sqrt_", "v_sin_", "v_cos_")

def parse_reg(tok):
    t = tok.strip()
    t = re.sub(r"^(neg|abs)\((.*)\)$", r"\2", t)
    t = t.lstrip("-").strip("|")
    m = re.fullmatch(r"([vas])(\d+)", t)
    if m:
        return [(m.group(1), int(m.group(2)))]
    m = re.fullmatch(r"([vas])\[(\d+):(\d+)\]", t)
    if m:
        return [(m.group(1), i) for i in range(int(m.group(2)), int(m.group(3)) + 1)]
    if t == "vcc":
        return [("s", 106), ("s", 107)]
    if t == "exec":
        return [("s", 126), ("s", 127)]
    if t == "exec_lo":
        return [("s", 126)]
    if t == "exec_hi":
        return [("s", 127)]
    if t == "m0":
        return [("s", 124)]
    return []

class Ins:
    __slots__ = ("text", "op", "dst", "src", "kind", "passes", "srcc", "srcab", "states", "lds")

def split_ops(rest):
    parts = [p.strip() for p in rest.split(",")]
    out = []
    for p in parts:
        out.append(p)
    return out

def decode(text):
    i = Ins()
    i.text = text
    s = text.split(";")[0].strip()
    sp = s.split(None, 1)
    op = sp[0]
    rest = sp[1] if len(sp) > 1 else ""
    rest_nomod = re.sub(r"\b(op_sel|op_sel_hi|neg_lo|neg_hi)\s*:\s*\[[^\]]*\]", "", rest)
    ops = [p.strip() for p in rest_nomod.split(",")] if rest_nomod.strip() else []
    toks = []
    for p in ops:
        toks.append(p.split()[0] if p.split() else p)
    i.op = op
    i.dst, i.src = [], []
    i.passes = 0
    i.srcc, i.srcab = [], []
    i.states = 1
    i.lds = False
    R = [parse_reg(t) for t in toks]
    if op.startswith("v_mfma"):
        i.kind = "mfma"
        i.dst = R[0]
        i.srcab = R[1] + R[2]
        i.srcc = R[3]
        i.src = i.srcab + i.srcc
        if "32x32x16" in op: i.passes = 8
        elif "16x16x32" in op: i.passes = 4
        elif "32x32x4_2b" in op: i.passes = 16
        else: raise ValueError(op)
    elif op.startswith("v_"):
        i.kind = "valu"
        if op.startswith(TRANS): i.kind = "trans"
        if op.startswith("v_dot"): i.kind = "dot"
        if op.startswith("v_permlane"):
            i.kind = "perm"
            i.dst = R[0] + R[1]; i.src = R[0] + R[1]
        elif op.startswith("v_cmp"):
            i.dst = R[0]; i.src = sum(R[1:], [])
        elif op.startswith(("v_add_co", "v_sub_co", "v_addc_co", "v_subb_co")):
            i.dst = R[0] + R[1]; i.src = sum(R[2:], [])
        else:
            i.dst = R[0]; i.src = sum(R[1:], [])
            if op.startswith(("v_fmac", "v_dot2c", "v_pk_fmac")): i.src = i.src + R[0]
            if "dpp" in text or "row_" in text or "quad_perm" in text:
                i.kind = "dpp"; i.src = i.src + R[0]
        if op.startswith(("v_readfirstlane", "v_readlane")): i.kind = "readlane"
    elif op.startswith("ds_"):
        i.kind = "ds"
        if op.startswith(("ds_read", "ds_bpermute", "ds_permute", "ds_swizzle")):
            i.dst = R[0]; i.src = sum(R[1:], [])
        else:
            i.src = sum(R, [])
    elif op.startswith(("buffer_", "global_")):
        i.kind = "vmem"
        words = s.split()
        if op in ("buffer_wbl2", "buffer_inv"):
            pass
        elif "lds" in words[1:] or op.startswith("global_load_lds"):
            i.lds = True
            i.src = sum(R, []) + [("s", 124)]
        elif "load" in op:
            i.dst = R[0]; i.src = sum(R[1:], [])
        elif "atomic" in op:
            i.src = sum(R, [])
            if "sc0" in words: i.dst = R[0]
        else:
            i.src = sum(R, [])
    elif op.startswith("s_load") or op.startswith("s_memtime") or op.startswith("s_memrealtime"):
        i.kind = "smem"
        i.dst = R[0]; i.src = sum(R[1:], [])
    elif op == "s_nop":
        i.kind = "nop"; i.states = int(toks[0], 0) + 1
    elif op == "s_waitcnt":
        i.kind = "wait"
    elif op.startswith("s_"):
        i.kind = "salu"
        if op.startswith(("s_cmp", "s_cbranch", "s_branch", "s_barrier", "s_endpgm", "s_sleep", "s_setprio", "s_bitcmp", "s_setpc")):
            i.src = sum(R, [])
        else:
            i.dst = R[0] if R else []; i.src = sum(R[1:], [])
            if "saveexec" in op: i.dst = i.dst + [("s", 126), ("s", 127)]
    else:
        raise ValueError("unknown instruction: " + text)
    return i

VALU_KINDS = ("valu", "trans", "dot", "perm", "dpp", "readlane")

def need_states(p, c):
    n = 0
    pd = set(p.dst)
    cs, cd = set(c.src), set(c.dst)
    pv = {r for r in pd if r[0] in "va"}
    ps = {r for r in pd if r[0] == "s"}
    if p.kind == "mfma":
        big = {4: 8, 8: 12, 16: 20}[p.passes]
        if c.kind == "mfma":
            if pv & set(c.srcab): n = max(n, big)
            if pv & set(c.srcc):
                if p.dst == c.srcc and p.passes == c.passes: n = max(n, 0)
                else: n = max(n, {4: 6, 8: 10, 16: 18}[p.passes])
            elif pv & cd:
                n = max(n, {4: 6, 8: 10, 16: 18}[p.passes])
        elif c.kind in VALU_KINDS or c.kind in ("ds", "vmem"):
            if pv & (cs | cd): n = max(n, big)
        if c.kind in VALU_KINDS and set(p.srcc) & cd:
            n = max(n, {4: 3, 8: 7, 16: 15}[p.passes])
        if c.kind in ("ds", "vmem") and set(p.srcc) & cd:
            n = max(n, {4: 3, 8: 7, 16: 15}[p.passes])
    elif p.kind in VALU_KINDS:
        if c.kind == "mfma" and pv & cs: n = max(n, 3 if p.kind == "dot" else 2)
        if p.kind == "trans" and c.kind in VALU_KINDS and c.kind != "trans" and pv & cs: n = max(n, 1)
        if p.kind == "trans" and c.kind in ("ds", "vmem") and pv & cs: n = max(n, 1)
        if p.kind == "dot":
            if c.kind == "dot" and c.op == p.op:
                ab = set(c.src[:-1]) if not c.op.startswith("v_dot2c") else set(c.src[:-1])
                if pv & ab: n = max(n, 3)
            elif pv & (cs | cd): n = max(n, 3)
        if c.kind in ("perm", "dpp") and pv & cs: n = max(n, 2)
        if c.kind == "readlane" and pv & cs: n = max(n, 1)
        if ps:
            if c.kind == "vmem" and ps & cs: n = max(n, 5)
            if c.kind in VALU_KINDS and ps & cs: n = max(n, 4 if c.kind == "readlane" else 2)
            if c.kind == "salu" and ps & cs: n = max(n, 1)
            if c.kind == "smem" and ps & cs: n = max(n, 5)
        if ("op_sel" in p.text and not p.op.startswith("v_pk")) or "sdwa" in p.op:
            if c.kind in VALU_KINDS and pv & (cs | cd): n = max(n, 1)
    elif p.kind == "salu":
        if ("s", 124) in ps and c.kind == "vmem" and c.lds: n = max(n, 1)
    elif p.kind == "vmem":
        if ("store" in p.op) and ("x4" in p.op or "x3" in p.op):
            data = set(p.src[:4])
            if data & cd: n = max(n, 2 if c.kind in VALU_KINDS else 1)
    return n

class Asm:
    def __init__(self):
        self.lines = []
        self.hist = []
        self.vm = []
        self.lg = []
        self.nid = 0
        self.nins = 0
        self.nnop = 0
        self.nwait = 0

    def raw(self, text):
        self.lines.append(text)

    def comment(self, t):
        self.lines.append("    ; " + t)

    def label(self, name):
        self.lines.append(name + ":")

    def fence(self, nops=True):
        if nops:
            worst = 0
            dist = 0
            for p in reversed(self.hist[-24:]):
                w = {"mfma": {4: 8, 8: 12, 16: 20}.get(p.passes, 0)}.get(p.kind, 5 if p.kind in VALU_KINDS else 2)
                worst = max(worst, w - dist)
                dist += p.states
            while worst > 0:
                k = min(worst, 16)
                self._put(decode(f"s_nop {k-1}"))
                worst -= k
        self.hist = []

    def drain(self):
        if self.vm or self.lg:
            self.I("s_waitcnt vmcnt(0) lgkmcnt(0)")

    def _put(self, ins):
        self.lines.append("    " + ins.text)
        self.hist.append(ins)
        if len(self.hist) > 64: self.hist = self.hist[-32:]
        self.nins += 1

    def _apply_wait(self, text):
        m = re.search(r"vmcnt\((\d+)\)", text)
        if m:
            n = int(m.group(1))
            while len(self.vm) > n: self.vm.pop(0)
        m = re.search(r"lgkmcnt\((\d+)\)", text)
        if m:
            n = int(m.group(1))
            if n == 0: self.lg = []
            else:
                assert not any(x[2] for x in self.lg), "counted lgkmcnt with SMEM outstanding"
                while len(self.lg) > n: self.lg.pop(0)

    def _auto_wait(self, ins):
        regs = set(ins.src) | set(ins.dst)
        nv = None
        for k, (i, d, _) in enumerate(self.vm):
            if d & regs: nv = len(self.vm) - 1 - k
        nl = None
        for k, (i, d, sm) in enumerate(self.lg):
            if d & regs: nl = len(self.lg) - 1 - k
        if nl is not None and any(x[2] for x in self.lg): nl = 0
        parts = []
        if nv is not None: parts.append(f"vmcnt({min(nv, 63)})")
        if nl is not None: parts.append(f"lgkmcnt({min(nl, 15)})")
        if parts:
            t = "s_waitcnt " + " ".join(parts)
            self._apply_wait(t)
            self._put(decode(t))
            self.nwait += 1

    def I(self, text):
        ins = decode(text)
        if ins.kind == "wait":
            self._apply_wait(text)
            self._put(ins)
            return None
        self._auto_wait(ins)
        dist = 0
        need = 0
        for p in reversed(self.hist):
            n = need_states(p, ins)
            if n - dist > need: need = n - dist
            dist += p.states
            if dist >= 24: break
        while need > 0:
            k = min(need, 16)
            self._put(decode(f"s_nop {k-1}"))
            self.nnop += 1
            need -= k
        self._put(ins)
        if ins.kind == "vmem" and ins.op not in ("buffer_wbl2", "buffer_inv"):
            self.nid += 1
            self.vm.append((self.nid, set(ins.dst), None))
            assert len(self.vm) <= 63, "too many outstanding vmem"
            return self.nid
        if ins.kind == "ds":
            self.nid += 1
            self.lg.append((self.nid, set(ins.dst), False))
            return self.nid
        if ins.kind == "smem":
            self.nid += 1
            self.lg.append((self.nid, set(ins.dst), True))
            return self.nid
        return None

    def wait_vm(self, opid):
        for k, (i, d, _) in enumerate(self.vm):
            if i == opid:
                self.I(f"s_waitcnt vmcnt({min(len(self.vm) - 1 - k, 63)})")
                return

    def wait_lg(self, opid):
        for k, (i, d, sm) in enumerate(self.lg):
            if i == opid:
                n = len(self.lg) - 1 - k
                if any(x[2] for x in self.lg): n = 0
                self.I(f"s_waitcnt lgkmcnt({min(n, 15)})")
                return

    def M(self, block):
        for l in block.strip().split("\n"):
            l = l.strip()
            if not l or l.startswith(";"):
                continue
            if l.endswith(":"):
                self.label(l[:-1])
            else:
                self.I(l)

    def text(self):
        return "\n".join(self.lines) + "\n"

def vr(b, n=1, f="v"):
    return f"{f}{b}" if n == 1 else f"{f}[{b}:{b+n-1}]"
```

```python
from asmlib import vr
from gen import *

SLOT = 14336
WOB = 3 * SLOT
WOB_W = 25600
SLOW = WOB + 4 * WOB_W
RED = 163840 - 61440
FC_OFF = F1_OFF + 240 * 128

sH, sQB, sPAR, sB3, sBLK = 43, 45, 48, 49, 50
sCB3, sRB64 = 51, 52
sLDSW = 53
sKVS = 54
sCH = 55
sT0, sT1 = 56, 57
sKVD = 58
sW2S, sWOS = 59, 60
vH = 216

def w2reg(step, f):
    q = (step * 5 + f) * 4
    return ("a", q) if q < 256 else ("v", 232 + q - 256)

def w80_addrs(g, vbase, vtr):
    a = g.a
    a.I(f"s_mul_i32 s66, s{sCB3}, 160")
    for i in range(5):
        a.M(f"""
        v_add_u32 v2, {64*i}, v1
        v_mul_u32_u24 v3, 6554, v2
        v_lshrrev_b32 v3, 16, v3
        v_mul_u32_u24 v4, 10, v3
        v_sub_u32 v4, v2, v4
        v_and_b32 v5, 0x13, v3
        v_bfe_u32 v6, v3, 2, 1
        v_lshl_add_u32 v5, v6, 3, v5
        v_bfe_u32 v6, v3, 3, 1
        v_lshl_add_u32 v5, v6, 2, v5
        v_mul_u32_u24 v5, 1280, v5
        v_lshl_add_u32 v5, v4, 4, v5
        v_add_u32 v{vbase+i}, s66, v5
        """)
        if 0 < i < 4:
            a.I(f"v_subrev_u32 v{vbase+i}, {1024*i}, v{vbase+i}")
    tr_addr(g, vtr, 160)
    a.I(f"v_add_u32 v{vtr}, s{sLDSW}, v{vtr}")

def tr_addr(g, vd, stride):
    a = g.a
    a.M(f"""
    v_bfe_u32 v2, v1, 2, 3
    v_lshrrev_b32 v3, 5, v1
    v_lshl_add_u32 v2, v3, 4, v2
    v_mul_u32_u24 v2, {stride}, v2
    v_and_b32 v3, 3, v1
    v_lshl_add_u32 v{vd}, v3, 3, v2
    """)

def w1_addrs(g, vbase, scb):
    a = g.a
    a.I(f"s_mul_i32 s66, s{scb}, 224")
    for i in range(7):
        a.M(f"""
        v_add_u32 v2, {64*i}, v1
        v_mul_u32_u24 v3, 4682, v2
        v_lshrrev_b32 v3, 16, v3
        v_mul_u32_u24 v4, 14, v3
        v_sub_u32 v4, v2, v4
        v_and_b32 v5, 0x13, v3
        v_bfe_u32 v6, v3, 2, 1
        v_lshl_add_u32 v5, v6, 3, v5
        v_bfe_u32 v6, v3, 3, 1
        v_lshl_add_u32 v5, v6, 2, v5
        v_mul_u32_u24 v5, 3456, v5
        v_lshl_add_u32 v5, v4, 4, v5
        v_add_u32 v{vbase+i}, s66, v5
        """)
        if i % 4:
            a.I(f"v_subrev_u32 v{vbase+i}, {1024*(i%4)}, v{vbase+i}")

def w1_dma(g, vbase, sub):
    a = g.a
    a.M(f"""
    s_add_u32 s66, s{sWAVE}, {4*sub}
    s_mul_i32 s67, s66, {32*3456}
    s_mul_i32 s66, s66, 7168
    s_mov_b32 m0, s66
    """)
    last = None
    for i in range(7):
        if i == 4:
            a.I("s_add_u32 m0, s66, 4096")
        last = a.I(f"buffer_load_dwordx4 v{vbase+i}, {srd(sW1)}, s67 offen offset:{1024*(i%4)} lds")
    return last

def colsum_w1(g):
    a = g.a
    a.M(f"""
    s_sub_u32 s45, s{sJ}, 30
    s_lshl_b32 s45, s45, 3
    s_add_u32 s45, s45, s{sXCD}
    """)
    w1_addrs(g, 16, 45)
    for sub in range(5):
        w1_dma(g, 16, sub)
    tr_addr(g, 24, 224)
    a.M(f"""
    s_mul_i32 s66, s{sWAVE}, 7168
    v_add_u32 v24, s66, v24
    v_add_u32 v25, {2*28672}, v24
    v_add_u32 v26, {4*28672}, v24
    v_mov_b32 v28, 0x3f803f80
    v_mov_b32 v29, 0x3f803f80
    v_mov_b32 v30, 0x3f803f80
    v_mov_b32 v31, 0x3f803f80
    s_waitcnt vmcnt(0)
    """)
    for sub in range(5):
        for f in range(7):
            for rd in range(2):
                a.I(f"ds_read_b64_tr_b16 {vr(64+4*f+2*rd,2)}, v{24+sub//2} offset:{(sub%2)*28672+rd*1792+f*32}")
        for f in range(7):
            cc = "0" if sub == 0 else vr(32+4*f, 4)
            a.I(f"v_mfma_f32_16x16x32_bf16 {vr(32+4*f,4)}, {vr(64+4*f,4)}, v[28:31], {cc}")
    a.M(f"""
    s_barrier
    s_mul_i32 s66, s{sWAVE}, 7168
    v_lshl_add_u32 v24, v1, 4, s66
    v_lshlrev_b32 v25, 4, v1
    """)
    for f in range(7):
        a.I(f"ds_write_b128 v24, {vr(32+4*f,4)} offset:{1024*f}")
    a.I("s_waitcnt lgkmcnt(0)")
    a.I("s_barrier")
    for w in range(4):
        for f in range(7):
            a.I(f"ds_read_b128 {vr(64+28*w+4*f,4)}, v25 offset:{7168*w+1024*f}")
    for r in range(28):
        a.I(f"v_add_f32 v{64+r}, v{64+r}, v{92+r}")
        a.I(f"v_add_f32 v{120+r}, v{120+r}, v{148+r}")
        a.I(f"v_add_f32 v{64+r}, v{64+r}, v{120+r}")
    a.M(f"""
    v_lshrrev_b32 v24, 4, v1
    v_lshlrev_b32 v24, 4, v24
    s_lshl_b32 s66, s45, 9
    s_add_u32 s66, s66, {CS_OFF}
    s_mov_b32 exec_lo, 0x00010001
    s_mov_b32 exec_hi, 0x00010001
    """)
    for f in range(7):
        a.I(f"buffer_store_dwordx4 {vr(64+4*f,4)}, v24, {srd(sWS)}, s66 offen offset:{64*f} sc1")
    a.I("s_mov_b64 exec, -1")
    g.get_nonce(2)
    a.M(f"""
    s_barrier
    s_lshl_b32 s66, s45, 7
    s_add_u32 s66, s66, {FC_OFF}
    """)
    g.signal(66, 2)

def phase2(g):
    a = g.a
    vKV, vWD, vK0, vK1, vV, vTR = 16, 19, 24, 25, 26, 28
    Q, KB, VB, P, S, O = 32, 48, 64, 80, 96, 128
    a.M(f"""
    s_lshr_b32 s66, s{sJ}, 3
    s_lshl_b32 s{sH}, s{sXCD}, 2
    s_add_u32 s{sH}, s{sH}, s66
    s_mov_b32 s{sRB64}, s{sH}
    s_and_b32 s{sQB}, s{sJ}, 7
    s_mov_b32 s{sCB3}, s{sQB}
    s_and_b32 s{sPAR}, s{sH}, 1
    s_lshr_b32 s66, s{sH}, 1
    s_mul_i32 s66, s66, 5
    s_lshl_b32 s67, s{sPAR}, 1
    s_add_u32 s{sB3}, s66, s67
    s_lshl_b32 s{sBLK}, s{sQB}, 2
    s_add_u32 s{sBLK}, s{sBLK}, s{sWAVE}
    s_mul_i32 s{sLDSW}, s{sWAVE}, {WOB_W}
    s_add_u32 s{sLDSW}, s{sLDSW}, {WOB}
    s_lshr_b32 s61, s{sWAVE}, 1
    s_and_b32 s62, s{sWAVE}, 1
    """)
    a.M(f"""
    s_lshr_b32 s66, s{sB3}, 4
    s_add_u32 s67, s{sB3}, 2
    s_lshr_b32 s67, s67, 4
    s_sub_u32 s67, s67, s66
    v_bfe_u32 v2, v1, 4, 1
    v_mul_u32_u24 v2, s67, v2
    v_add_u32 v2, s66, v2
    s_mul_i32 s63, s61, 5
    s_add_u32 s63, s63, 5
    v_add_u32 v3, s63, v2
    v_and_b32 v4, 15, v1
    v_lshl_add_u32 v3, v3, 4, v4
    s_lshr_b32 s63, s{sBLK}, 1
    v_lshl_add_u32 v2, v2, 4, s63
    v_cmp_gt_u32 vcc, 32, v1
    v_cndmask_b32 v2, v2, v3, vcc
    v_lshlrev_b32 v2, 7, v2
    v_add_u32 v30, {F1_OFF}, v2
    """)
    a.M(f"""
    s_lshl_b32 s66, s61, 2
    v_lshlrev_b32 v{vKV}, 4, v1
    v_xor_b32 v2, s66, v1
    v_lshlrev_b32 v{vKV+1}, 4, v2
    s_lshl_b32 s66, s61, 3
    v_xor_b32 v2, s66, v1
    v_lshlrev_b32 v{vKV+2}, 4, v2
    s_mul_i32 s66, s61, 80
    s_add_u32 s66, s66, 80
    s_add_u32 s66, s66, s{sB3}
    s_mul_i32 s67, s62, 240
    s_add_u32 s66, s66, s67
    s_lshl_b32 s{sKVS}, s66, 10
    s_mul_i32 s{sKVD}, s62, 7168
    s_mul_i32 s66, s61, 3072
    s_add_u32 s{sKVD}, s{sKVD}, s66
    s_lshl_b32 s{sCH}, s{sQB}, 1
    """)
    a.M(f"""
    v_and_b32 v2, 31, v1
    v_lshrrev_b32 v3, 5, v1
    v_lshlrev_b32 v2, 4, v2
    v_add_u32 v4, s{sPAR}, v3
    v_lshl_add_u32 v{vK0}, v4, 10, v2
    s_cmp_eq_u32 s{sPAR}, 0
    s_cselect_b32 s63, 2048, 0
    v_add_u32 v31, s63, v2
    v_add_u32 v4, 6144, v2
    v_cndmask_b32 v{vK1}, v4, v31, vcc
    """)
    a.M(f"""
    v_bfe_u32 v4, v1, 4, 1
    v_and_b32 v5, 3, v1
    v_lshl_add_u32 v4, v4, 2, v5
    v_lshrrev_b32 v5, 1, v4
    v_add_u32 v6, s{sPAR}, v5
    s_lshr_b32 s63, s63, 10
    v_mov_b32 v7, s63
    v_cmp_eq_u32 vcc, 2, v5
    v_cndmask_b32 v6, v6, v7, vcc
    v_and_b32 v8, 1, v4
    v_xor_b32 v9, s{sPAR}, v8
    v_cndmask_b32 v8, v8, v9, vcc
    v_cmp_eq_u32 vcc, 3, v5
    v_cndmask_b32 v6, v6, v5, vcc
    v_bfe_u32 v9, v1, 2, 2
    v_lshl_add_u32 v9, v3, 2, v9
    v_lshlrev_b32 v10, 2, v6
    v_xor_b32 v9, v9, v10
    v_lshlrev_b32 v9, 4, v9
    v_lshl_add_u32 v9, v6, 10, v9
    v_lshl_add_u32 v9, v8, 3, v9
    v_add_u32 v{vV}, 3072, v9
    v_xor_b32 v{vV+1}, 128, v{vV}
    """)
    w80_addrs(g, vWD, vTR)
    a.M(f"""
    s_mul_i32 s{sW2S}, s{sWAVE}, {14*32*1280}
    s_mul_i32 s{sWOS}, s{sWAVE}, {5*32*1280}
    """)
    a.M(f"""
    s_barrier
    v_mov_b32 v4, 0x3f803f80
    v_lshlrev_b32 v2, 2, v0
    """)
    for k in range(6):
        a.I(f"ds_write_b32 v2, v4 offset:{k*7168+6144}")
    g.poll([30], 2)
    g.stamp()

    kv_last = {}
    def kv_dma(c):
        def f0():
            a.I(f"s_mul_i32 s{sT0}, s{sCH}, {2*240*1024}")
            a.I(f"s_add_u32 s{sT0}, s{sT0}, s{sKVS}")
            a.I(f"s_add_u32 m0, s{sKVD}, {(c % 3) * SLOT}")
            a.I(f"s_add_u32 s{sCH}, s{sCH}, 1")
            f(0)
            a.I(f"s_and_b32 s{sCH}, s{sCH}, 15")
        def f(i):
            kv_last[c] = a.I(f"buffer_load_dwordx4 v{vKV+i}, {srd(sWS)}, s{sT0} offen offset:{1024*i} sc1 lds")
        return [f0, lambda: f(1), lambda: f(2)]
    w_last = {}
    def w_dma(kind, st):
        sr, base = (sW2, sW2S) if kind == "w2" else (sWO, sWOS)
        dst = 4 if kind == "w2" else st
        def f(i):
            if i == 0:
                a.I(f"s_add_u32 s{sT1}, s{base}, {st*32*1280}")
                a.I(f"s_add_u32 m0, s{sLDSW}, {dst*5120}")
            if i == 4:
                a.I(f"s_add_u32 m0, s{sLDSW}, {dst*5120+4096}")
            w_last[(kind, st)] = a.I(f"buffer_load_dwordx4 v{vWD+i}, {srd(sr)}, s{sT1} offen offset:{1024*(i%4)} lds")
        return [lambda i=i: f(i) for i in range(5)]
    a.I(f"s_mul_i32 s66, s{sBLK}, 240")
    a.I(f"s_add_u32 s66, s66, s{sB3}")
    a.I(f"s_lshl_b32 s66, s66, 10")
    for it in kv_dma(0): it()
    for t in range(2):
        a.I(f"buffer_load_dwordx4 {vr(Q+8*t,4)}, v{vK0}, {srd(sWS)}, s66 offen offset:{512*t} sc1")
        a.I(f"buffer_load_dwordx4 {vr(Q+8*t+4,4)}, v31, {srd(sWS)}, s66 offen offset:{512*t} sc1")
    for it in kv_dma(1): it()
    a.M(f"""
    s_cmp_eq_u32 s{sPAR}, 0
    s_cselect_b32 s62, -1, 0
    s_cselect_b32 s64, 0, -1
    s_mov_b32 s63, 0
    s_mov_b32 s65, 0
    """)
    for t in range(2):
        for k in range(4):
            m = "s[62:63]" if k < 2 else "s[64:65]"
            a.I(f"v_cndmask_b32 v{Q+8*t+4+k}, 0, v{Q+8*t+4+k}, {m}")
    a.wait_vm(kv_last[0])
    a.I("s_waitcnt lgkmcnt(0)")
    a.I("s_barrier")

    def koff(i):
        c, t = divmod(i, 4)
        return (c % 3) * SLOT + (t >> 1) * 7168 + (t & 1) * 512
    def kread(i):
        b = KB + 8 * (i & 1)
        return [lambda: a.I(f"ds_read_b128 {vr(b,4)}, v{vK0} offset:{koff(i)}"),
                lambda: a.I(f"ds_read_b128 {vr(b+4,4)}, v{vK1} offset:{koff(i)}")]
    def vread(i):
        b = VB + 8 * (i & 1)
        return [lambda j=j, rd=rd: a.I(f"ds_read_b64_tr_b16 {vr(b+4*j+2*rd,2)}, v{vV+rd} offset:{koff(i)+256*j}")
                for j in range(2) for rd in range(2)]
    def qk(t, i):
        b = KB + 8 * (i & 1); s = S + 16 * t; q = Q + 8 * t
        return [f"v_mfma_f32_32x32x16_bf16 {vr(s,16)}, {vr(b,4)}, {vr(q,4)}, 0",
                f"v_mfma_f32_32x32x16_bf16 {vr(s,16)}, {vr(b+4,4)}, {vr(q+4,4)}, {vr(s,16)}"]
    def pv(t, i):
        b = VB + 8 * (i & 1); o = O + 16 * t; p = P + 8 * t
        c0 = "0" if i == 0 else vr(o, 16)
        return [f"v_mfma_f32_32x32x16_bf16 {vr(o,16)}, {vr(b,4)}, {vr(p,4)}, {c0}",
                f"v_mfma_f32_32x32x16_bf16 {vr(o,16)}, {vr(b+4,4)}, {vr(p+4,4)}, {vr(o,16)}"]

    for it in kread(0) + kread(1) + vread(0): it()
    for t in range(2):
        for m in qk(t, 0): a.I(m)
    a.I("s_mov_b32 s62, 0")
    a.I("s_mov_b32 s63, -1")
    for t in range(2):
        s = S + 16 * t
        a.I(f"v_max3_f32 v{2+t}, v{s}, v{s+1}, v{s+2}")
        for k in range(3, 15, 2):
            a.I(f"v_max3_f32 v{2+t}, v{2+t}, v{s+k}, v{s+k+1}")
        a.I(f"v_max_f32 v{2+t}, v{2+t}, v{s+15}")
        a.I(f"v_mov_b32 v{4+t}, v{2+t}")
        a.I(f"v_permlane32_swap_b32 v{2+t}, v{4+t}")
        a.I(f"v_max_f32 v{2+t}, v{2+t}, v{4+t}")
        a.I(f"v_cvt_pk_bf16_f32 v{2+t}, -v{2+t}, 0")
        a.I(f"v_cndmask_b32 v{Q+8*t+4}, v{Q+8*t+4}, v{2+t}, s[62:63]")
        if t == 0:
            for m in qk(0, 0): a.I(m)

    extra = []
    def half(t, mf, fill):
        s = S + 16 * t; p = P + 8 * t
        mf = list(mf); fill = list(fill)
        for q in range(4):
            if mf:
                a.I(mf.pop(0))
            n = 0
            if fill:
                fill.pop(0)(); n = 1
            while extra and n < 2:
                extra.pop(0)(); n += 1
            for k in range(4):
                a.I(f"v_exp_f32 v{s+4*q+k}, v{s+4*q+k}")
            if q > 0:
                for k in range(2):
                    a.I(f"v_cvt_pk_bf16_f32 v{p+2*(q-1)+k}, v{s+4*(q-1)+2*k}, v{s+4*(q-1)+2*k+1}")
        assert not fill and not mf
        for k in range(2):
            a.I(f"v_cvt_pk_bf16_f32 v{p+6+k}, v{s+12+2*k}, v{s+12+2*k+1}")

    def w2_reads(st):
        out = []
        for f in range(5):
            fl, r = w2reg(st, f)
            for rd in range(2):
                fn = (lambda fl=fl, r=r, rd=rd, f=f: a.I(f"ds_read_b64_tr_b16 {vr(r+2*rd,2,fl)}, v{vTR} offset:{4*5120+rd*1280+f*32}"))
                out.append(fn)
        return out
    class Cheap:
        cheap = True
        def __init__(self, fn): self.fn = fn
        def __call__(self): return self.fn()

    g.stamp()
    half(0, qk(1, 0), [])
    trd = {}
    for i in range(64):
        if (i + 2) % 4 == 0 and i + 2 < 64:
            c = (i + 2) // 4
            a.wait_vm(kv_last[c])
            a.I("s_barrier")
            assert not extra, len(extra)
            if c + 1 < 16: extra += kv_dma(c + 1)
            n = c - 1
            if n >= 1:
                st = n - 1
                extra.append(lambda st=st: a.wait_vm(w_last[("w2", st)]))
                rs = w2_reads(st)
                def last(fn=rs[-1], st=st): trd[st] = fn()
                extra += [Cheap(x) for x in rs[:-1]] + [Cheap(last)]
            if n < 4: extra += w_dma("wo", n)
            if n >= 1: extra.append(lambda st=n-1: a.wait_lg(trd[st]))
            if n < 14: extra += w_dma("w2", n)
            else: extra += w_dma("wo", 4)
        kr = kread(i + 2) if i + 2 < 64 else []
        vrd = vread(i + 1) if i + 1 < 64 else []
        mfb = (qk(0, i + 1) if i + 1 < 64 else []) + pv(0, i)
        half(1, mfb, vrd[:2] + kr[:1])
        if i + 1 < 64:
            half(0, qk(1, i + 1) + pv(1, i), vrd[2:] + kr[1:])
    for m in pv(1, 63): a.I(m)
    while extra: extra.pop(0)()
    g.stamp()
    slow, back = "L_slow", "L_slow_back"
    a.I("s_mov_b32 s61, 0")
    a.fence()
    a.label(back)
    for t in range(2):
        o = O + 16 * t
        a.I(f"v_rcp_f32 v{2+t}, v{o+12}")
    for t in range(2):
        o = O + 16 * t
        for k in range(12):
            a.I(f"v_mul_f32 v{o+k}, v{o+k}, v{2+t}")
    a.I("v_mov_b32 v4, 0")
    for t in range(2):
        o = O + 16 * t
        for k in range(8):
            a.I(f"v_fmac_f32 v4, 0, v{o+k}")
    a.I("v_mov_b32 v5, 0")
    for t in range(2):
        o = O + 16 * t
        for k in range(8, 12):
            a.I(f"v_fmac_f32 v5, 0, v{o+k}")
    a.M(f"""
    s_mov_b32 s62, -1
    s_mov_b32 s63, 0
    v_cndmask_b32 v5, 0, v5, s[62:63]
    v_add_f32 v4, v4, v5
    v_cmp_neq_f32 vcc, 0, v4
    s_mov_b32 s66, {hex(f2u(2.0**100))}
    s_mov_b32 s67, {hex(f2u(2.0**-30))}
    v_cmp_nle_f32 s[62:63], v{O+12}, s66
    s_or_b64 vcc, vcc, s[62:63]
    v_cmp_nle_f32 s[62:63], v{O+28}, s66
    s_or_b64 vcc, vcc, s[62:63]
    v_cmp_nge_f32 s[62:63], v{O+12}, s67
    s_or_b64 vcc, vcc, s[62:63]
    v_cmp_nge_f32 s[62:63], v{O+28}, s67
    s_or_b64 vcc, vcc, s[62:63]
    s_cmp_lg_u32 s61, 0
    s_cselect_b64 vcc, 0, vcc
    s_cmp_lg_u64 vcc, 0
    s_cbranch_scc1 {slow}
    """)
    for t in range(2):
        o = O + 16 * t; p = P + 8 * t
        for k in range(6):
            a.I(f"v_cvt_pk_bf16_f32 v{p+k}, v{o+2*k}, v{o+2*k+1}")
    for t in range(2):
        p = P + 8 * t
        a.I(f"v_permlane32_swap_b32 v{p}, v{p+2}")
        a.I(f"v_permlane32_swap_b32 v{p+1}, v{p+3}")
    a.I(f"v_permlane32_swap_b32 v{P+4}, v{P+12}")
    a.I(f"v_permlane32_swap_b32 v{P+5}, v{P+13}")
    a.M(f"""
    s_mul_i32 s66, s{sBLK}, 80
    s_add_u32 s66, s66, s{sB3}
    s_lshl_b32 s66, s66, 10
    s_add_u32 s66, s66, {O_OFF}
    s_cmp_eq_u32 s{sPAR}, 0
    s_cselect_b32 s67, 2048, 8
    s_add_u32 s67, s67, s66
    buffer_store_dwordx4 {vr(P,4)}, v{vK0}, {srd(sWS)}, s66 offen sc1
    buffer_store_dwordx4 {vr(P+8,4)}, v{vK0}, {srd(sWS)}, s66 offen offset:512 sc1
    buffer_store_dwordx2 {vr(P+4,2)}, v{vKV}, {srd(sWS)}, s67 offen sc1
    s_lshl_b32 s66, s{sH}, 5
    s_add_u32 s66, s66, s{sBLK}
    s_lshl_b32 s66, s66, 7
    s_add_u32 s66, s66, {F2_OFF}
    s_waitcnt vmcnt(0)
    """)
    g.signal(66, 2)
    g.stamp()
    g.slow_args = dict(Q=Q, KB=KB, VB=VB, P=P, S=S, O=O, vK0=vK0, vV=vV, vKV=vKV)

def slow_path(g):
    a = g.a
    A = g.slow_args
    Q, KB, VB, P, S, O, vK0, vV = A["Q"], A["KB"], A["VB"], A["P"], A["S"], A["O"], A["vK0"], A["vV"]
    a.vm = []; a.lg = []; a.hist = []
    a.label("L_slow")
    a.M(f"""
    s_waitcnt vmcnt(0) lgkmcnt(0)
    s_mov_b32 s61, 1
    s_mov_b32 s62, 0
    s_mov_b32 s63, -1
    s_add_u32 s64, s{sB3}, 80
    s_lshl_b32 s64, s64, 10
    v_mov_b32 v6, 0x3f803f80
    v_mov_b32 v2, 0xff800000
    v_mov_b32 v3, 0xff800000
    """)
    for t in range(2):
        for k in range(2):
            a.I(f"v_cndmask_b32 v{Q+8*t+4+k}, v{Q+8*t+4+k}, 0, s[62:63]")
    def load_k(off):
        a.I(f"buffer_load_dwordx4 {vr(KB,4)}, v{vK0}, {srd(sWS)}, s65 offen offset:{off} sc1")
        a.I(f"buffer_load_dwordx4 {vr(KB+4,4)}, v31, {srd(sWS)}, s65 offen offset:{off} sc1")
        for k in range(4):
            a.I(f"v_cndmask_b32 v{KB+4+k}, v{KB+4+k}, v6, s[62:63]")
        for t in range(2):
            s = S + 16 * t; q = Q + 8 * t
            a.I(f"v_mfma_f32_32x32x16_bf16 {vr(s,16)}, {vr(KB,4)}, {vr(q,4)}, 0")
            a.I(f"v_mfma_f32_32x32x16_bf16 {vr(s,16)}, {vr(KB+4,4)}, {vr(q+4,4)}, {vr(s,16)}")
    a.I("s_mov_b32 s66, 0")
    a.fence()
    a.label("L_slow1")
    a.I(f"s_mul_i32 s65, s66, {240*1024}")
    a.I("s_add_u32 s65, s65, s64")
    for tile in range(2):
        load_k(512 * tile)
        for t in range(2):
            s = S + 16 * t
            for k in range(0, 16, 2):
                a.I(f"v_max3_f32 v{2+t}, v{2+t}, v{s+k}, v{s+k+1}")
    a.M("""
    s_add_u32 s66, s66, 1
    s_cmp_lt_u32 s66, 32
    """)
    a.fence()
    a.I("s_cbranch_scc1 L_slow1")
    for t in range(2):
        a.M(f"""
        v_mov_b32 v4, v{2+t}
        v_permlane32_swap_b32 v{2+t}, v4
        v_max_f32 v{2+t}, v{2+t}, v4
        v_and_b32 v4, 0xffff0000, v{2+t}
        v_sub_f32 v5, v{2+t}, v4
        v_and_b32 v7, 0xffff0000, v5
        v_sub_f32 v5, v5, v7
        v_cvt_pk_bf16_f32 v4, -v4, -v7
        v_cvt_pk_bf16_f32 v5, -v5, 0
        v_cndmask_b32 v{Q+8*t+4}, v{Q+8*t+4}, v4, s[62:63]
        v_cndmask_b32 v{Q+8*t+5}, v{Q+8*t+5}, v5, s[62:63]
        """)
    a.M(f"""
    s_lshl_b32 s67, s{sWAVE}, 12
    s_add_u32 s67, s67, {SLOW}
    v_lshl_add_u32 v8, v1, 4, s67
    v_mov_b32 v12, v6
    v_mov_b32 v13, v6
    v_mov_b32 v14, v6
    v_mov_b32 v15, v6
    ds_write_b128 v8, v[12:15] offset:3072
    v_lshlrev_b32 v9, 4, v1
    v_xor_b32 v10, 64, v9
    v_xor_b32 v11, 128, v9
    s_sub_u32 s66, s67, 3072
    v_add_u32 v12, s66, v{vV}
    v_add_u32 v13, s66, v{vV+1}
    s_mov_b32 m0, s67
    """)
    for r in range(32):
        a.I(f"v_mov_b32 v{O+r}, 0")
    a.I("s_mov_b32 s66, 0")
    a.drain(); a.fence()
    a.label("L_slow2")
    a.I(f"s_mul_i32 s65, s66, {240*1024}")
    a.I("s_add_u32 s65, s65, s64")
    a.I(f"s_add_u32 s67, s65, {80*1024}")
    for i in range(3):
        a.I(f"buffer_load_dwordx4 v{9+i}, {srd(sWS)}, s67 offen offset:{1024*i} sc1 lds")
    for tile in range(2):
        load_k(512 * tile)
        a.I("s_waitcnt vmcnt(0)")
        for j in range(2):
            for rd in range(2):
                a.I(f"ds_read_b64_tr_b16 {vr(VB+4*j+2*rd,2)}, v{12+rd} offset:{512*tile+256*j}")
        for t in range(2):
            s = S + 16 * t; p = P + 8 * t; o = O + 16 * t
            for k in range(16):
                a.I(f"v_exp_f32 v{s+k}, v{s+k}")
            for k in range(8):
                a.I(f"v_cvt_pk_bf16_f32 v{p+k}, v{s+2*k}, v{s+2*k+1}")
            a.I(f"v_mfma_f32_32x32x16_bf16 {vr(o,16)}, {vr(VB,4)}, {vr(p,4)}, {vr(o,16)}")
            a.I(f"v_mfma_f32_32x32x16_bf16 {vr(o,16)}, {vr(VB+4,4)}, {vr(p+4,4)}, {vr(o,16)}")
    a.M("""
    s_add_u32 s66, s66, 1
    s_cmp_lt_u32 s66, 32
    """)
    a.drain(); a.fence()
    a.I("s_cbranch_scc1 L_slow2")
    a.I("s_branch L_slow_back")

def rg_reduce(g, r, t):
    a = g.a
    a.M(f"""
    v_mov_b32 v{t}, v{r}
    v_permlane16_swap_b32 v{r}, v{t}
    v_add_f32 v{r}, v{r}, v{t}
    v_mov_b32 v{t}, v{r}
    v_permlane32_swap_b32 v{r}, v{t}
    v_add_f32 v{r}, v{r}, v{t}
    """)

def ksplit_gemm(g, nst, wreg, load, AF, nbuf, ACC0, ACC1, vRW, vRR, after_loads=None):
    a = g.a
    total = 4 * nst
    def areg(n): return AF + 4 * (n % nbuf)
    for n in range(min(nbuf, total)): load(n, areg(n))
    if after_loads: after_loads()
    pendw = []
    for u in range(4):
        acc = ACC0 if u % 2 == 0 else ACC1
        for st in range(nst):
            n = u * nst + st
            for f in range(5):
                fl, r = wreg(st, f)
                cc = "0" if st == 0 else vr(acc + 4*f, 4)
                a.I(f"v_mfma_f32_16x16x32_bf16 {vr(acc+4*f,4)}, {vr(r,4,fl)}, {vr(areg(n),4)}, {cc}")
                if pendw and st >= 2 and f % 2 == 0: pendw.pop(0)()
            if n + nbuf < total: load(n + nbuf, areg(n))
        assert not pendw
        if u < 3:
            pendw = [lambda f=f, acc=acc, u=u: a.I(f"ds_write_b128 v{vRW+u}, {vr(acc+4*f,4)} offset:{1024*f}") for f in range(5)]
    a.I("s_waitcnt lgkmcnt(0)")
    a.I("s_barrier")
    for u in range(3):
        for f in range(5):
            a.I(f"ds_read_b128 {vr(AF+20*u+4*f,4)}, v{vRR} offset:{5120*u+1024*f}")
    for r in range(20):
        a.I(f"v_add_f32 v{ACC1+r}, v{ACC1+r}, v{AF+r}")
    for r in range(20):
        a.I(f"v_add_f32 v{AF+20+r}, v{AF+20+r}, v{AF+40+r}")
    for r in range(20):
        a.I(f"v_add_f32 v{ACC1+r}, v{ACC1+r}, v{AF+20+r}")
    return ACC1

def red_addrs(g, vRW, vRR, vA):
    a = g.a
    a.M(f"""
    v_lshrrev_b32 v2, 4, v1
    v_and_b32 v3, 15, v1
    v_lshlrev_b32 v3, 4, v3
    v_lshl_add_u32 v3, v2, 10, v3
    """)
    for u in range(4):
        a.M(f"""
        s_add_u32 s66, s{sWAVE}, {u+1}
        s_and_b32 s66, s66, 3
        s_lshl_b32 s67, s66, 8
        v_add_u32 v{vA+u}, s67, v3
        s_mul_i32 s66, s66, 15360
        s_add_u32 s66, s66, {RED + (5120*u if u < 3 else 0)}
        v_lshl_add_u32 v{vRW+u if u < 3 else vRR}, v1, 4, s66
        """)

def phase3(g):
    a = g.a
    vTR = 28
    WF, AF, ACC0, ACC1 = 32, 132, 212, 172
    vRW, vRR, vA, vW1, vX = 8, 11, 12, 16, 222
    for st in range(5):
        for f in range(5):
            for rd in range(2):
                a.I(f"ds_read_b64_tr_b16 {vr(WF+20*st+4*f+2*rd,2)}, v{vTR} offset:{st*5120+rd*1280+f*32}")
    a.M(f"""
    s_and_b32 s61, s{sJ}, 15
    """)
    w1_addrs(g, vW1, 61)
    red_addrs(g, vRW, vRR, vA)
    a.M(f"""
    v_and_b32 v2, 7, v1
    s_lshl_b32 s66, s{sWAVE}, 3
    v_add_u32 v2, s66, v2
    v_lshl_add_u32 v2, v2, 5, s{sRB64}
    v_lshlrev_b32 v2, 7, v2
    v_add_u32 v30, {F2_OFF}, v2
    """)
    a.M(f"""
    s_lshl_b32 s66, s{sRB64}, 2
    s_add_u32 s66, s66, s{sWAVE}
    s_lshl_b32 s66, s66, 4
    v_and_b32 v2, 15, v1
    v_add_u32 v24, s66, v2
    v_mul_u32_u24 v2, 1280, v24
    v_lshrrev_b32 v3, 4, v1
    v_lshl_add_u32 v2, v3, 3, v2
    s_mul_i32 s66, s{sCB3}, 160
    v_add_u32 v23, s66, v2
    s_waitcnt lgkmcnt(0)
    s_barrier
    """)
    w1_dma(g, vW1, 0)
    g.poll([30], 2)
    g.stamp()
    a.M(f"""
    s_mul_i32 s62, s{sRB64}, 80
    s_mul_i32 s66, s{sWAVE}, 20
    s_add_u32 s62, s62, s66
    s_lshl_b32 s62, s62, 10
    s_add_u32 s62, s62, {O_OFF}
    """)
    def load(n, r):
        u, st = divmod(n, 5)
        if u == 0 and st > 0:
            a.I(f"s_add_u32 s{62+st}, s62, {4096*st}")
        a.I(f"buffer_load_dwordx4 {vr(r,4)}, v{vA+u}, {srd(sWS)}, s{62+st} offen sc1")
    def after():
        pass
    total = 20
    for n in range(total): load(n, AF + 4 * n)
    pendw = []
    accs = [212, AF, AF + 20, AF + 40]
    for u in range(4):
        acc = accs[u]
        for st in range(5):
            n = u * 5 + st
            for f in range(5):
                cc = "0" if st == 0 else vr(acc + 4*f, 4)
                a.I(f"v_mfma_f32_16x16x32_bf16 {vr(acc+4*f,4)}, {vr(WF+20*st+4*f,4)}, {vr(AF+4*n,4)}, {cc}")
                if pendw and st >= 2 and f % 2 == 0: pendw.pop(0)()
        assert not pendw
        if u == 0:
            w1_dma(g, vW1, 1)
        if u == 1:
            w1_dma(g, vW1, 2)
        if u == 2:
            for f in range(5):
                a.I(f"buffer_load_dwordx2 {vr(vX+2*f,2)}, v23, {srd(sX)}, 0 offen offset:{32*f}")
        if u < 3:
            pendw = [lambda f=f, acc=acc, u=u: a.I(f"ds_write_b128 v{vRW+u}, {vr(acc+4*f,4)} offset:{1024*f}") for f in range(5)]
    a.I("s_waitcnt lgkmcnt(0)")
    a.I("s_barrier")
    R = accs[3]
    T = WF
    for u in range(3):
        for f in range(5):
            a.I(f"ds_read_b128 {vr(T+20*u+4*f,4)}, v{vRR} offset:{5120*u+1024*f}")
    for r in range(20): a.I(f"v_add_f32 v{R+r}, v{R+r}, v{T+r}")
    for r in range(20): a.I(f"v_add_f32 v{T+20+r}, v{T+20+r}, v{T+40+r}")
    for r in range(10):
        a.I(f"v_lshlrev_b32 v{T+2*r}, 16, v{vX+r}")
        a.I(f"v_and_b32 v{T+2*r+1}, 0xffff0000, v{vX+r}")
    for r in range(20): a.I(f"v_add_f32 v{R+r}, v{R+r}, v{T+20+r}")
    for r in range(20): a.I(f"v_add_f32 v{R+r}, v{R+r}, v{T+r}")
    for r in range(10): a.I(f"v_cvt_pk_bf16_f32 v{vH+r}, v{R+2*r}, v{R+2*r+1}")
    for r in range(8): a.I(f"v_mov_b32 v{T+r}, v{vH+r}")
    for pr in range(2):
        a.I(f"v_permlane16_swap_b32 v{T+4*pr}, v{T+4*pr+2}")
        a.I(f"v_permlane16_swap_b32 v{T+4*pr+1}, v{T+4*pr+3}")
    a.M(f"""
    v_bfe_u32 v2, v1, 4, 1
    v_lshrrev_b32 v3, 5, v1
    v_lshl_add_u32 v4, v2, 1, v3
    v_and_b32 v5, 15, v1
    v_lshlrev_b32 v5, 4, v5
    v_lshl_add_u32 v4, v4, 10, v5
    v_lshl_add_u32 v5, v3, 10, v5
    v_lshl_add_u32 v5, v2, 3, v5
    s_mul_i32 s66, s{sRB64}, 80
    s_mul_i32 s67, s{sCB3}, 10
    s_add_u32 s66, s66, s67
    s_lshl_b32 s66, s66, 10
    s_lshl_b32 s67, s{sWAVE}, 8
    s_add_u32 s66, s66, s67
    s_add_u32 s62, s66, {H_OFF}
    s_add_u32 s63, s62, 4096
    s_add_u32 s64, s62, 8192
    buffer_store_dwordx4 {vr(T,4)}, v4, {srd(sWS)}, s62 offen sc1
    buffer_store_dwordx4 {vr(T+4,4)}, v4, {srd(sWS)}, s63 offen sc1
    buffer_store_dwordx2 {vr(vH+8,2)}, v5, {srd(sWS)}, s64 offen sc1
    v_mov_b32 v6, 0
    v_mov_b32 v7, 0
    v_mov_b32 v2, 0x3f803f80
    """)
    for r in range(10):
        a.I(f"v_dot2_f32_bf16 v6, v{vH+r}, v2, v6")
        a.I(f"v_dot2_f32_bf16 v7, v{vH+r}, v{vH+r}, v7")
    rg_reduce(g, 6, 3)
    rg_reduce(g, 7, 3)
    a.M(f"""
    v_lshlrev_b32 v2, 6, v24
    s_lshl_b32 s66, s{sCB3}, 3
    s_add_u32 s66, s66, {ST_OFF}
    s_mov_b64 exec, 0xffff
    buffer_store_dwordx2 v[6:7], v2, {srd(sWS)}, s66 offen sc1
    s_mov_b64 exec, -1
    s_lshl_b32 s66, s{sRB64}, 3
    s_add_u32 s66, s66, s{sCB3}
    s_lshl_b32 s66, s66, 2
    s_add_u32 s66, s66, s{sWAVE}
    s_lshl_b32 s66, s66, 7
    s_add_u32 s66, s66, {F3_OFF}
    s_waitcnt vmcnt(0)
    """)
    g.signal(66, 2)
    g.stamp()
    a.I("s_barrier")
    w1_dma(g, vW1, 3)
    w1_dma(g, vW1, 4)

def phase4(g):
    a = g.a
    sCB4 = 61
    ACC, WF, AF = 32, 88, 136
    WB = [88, 116]
    AF = 144
    NB = 9
    vTR, vA, vCSA = 24, 27, 28
    a.M(f"""
    s_lshr_b32 s66, s{sJ}, 4
    s_lshl_b32 s62, s{sXCD}, 1
    s_add_u32 s62, s62, s66
    s_lshl_b32 s63, s62, 1
    s_lshr_b32 s66, s{sWAVE}, 1
    s_add_u32 s63, s63, s66
    s_and_b32 s64, s{sWAVE}, 1
    """)
    a.M(f"""
    v_and_b32 v2, 7, v1
    s_lshl_b32 s66, s63, 3
    v_add_u32 v2, s66, v2
    v_bfe_u32 v3, v1, 3, 1
    v_lshl_add_u32 v2, v2, 2, v3
    s_lshl_b32 s66, s64, 1
    v_add_u32 v2, s66, v2
    v_lshlrev_b32 v2, 7, v2
    v_add_u32 v30, {F3_OFF}, v2
    s_lshl_b32 s66, s{sCB4}, 7
    s_add_u32 s66, s66, {FC_OFF}
    v_mov_b32 v2, s66
    v_cmp_eq_u32 vcc, 63, v1
    v_cndmask_b32 v30, v30, v2, vcc
    """)
    tr_addr(g, vTR, 224)
    a.M(f"""
    v_add_u32 v{vTR+1}, {8*7168}, v{vTR}
    v_add_u32 v{vTR+2}, {16*7168}, v{vTR}
    v_lshrrev_b32 v2, 4, v1
    v_and_b32 v3, 15, v1
    v_lshlrev_b32 v4, 4, v3
    v_lshl_add_u32 v{vA}, v2, 10, v4
    v_lshlrev_b32 v{vCSA}, 4, v2
    v_lshl_add_u32 v29, v3, 6, v{vCSA}
    s_mul_i32 s65, s63, 80
    s_lshl_b32 s65, s65, 10
    s_lshl_b32 s66, s64, 9
    s_add_u32 s65, s65, s66
    s_add_u32 s65, s65, {H_OFF}
    """)
    g.poll([30], 2)
    a.I("s_barrier")
    g.stamp()
    a.M(f"""
    s_lshl_b32 s66, s63, 6
    s_lshl_b32 s67, s64, 5
    s_add_u32 s66, s66, s67
    s_lshl_b32 s66, s66, 6
    s_add_u32 s66, s66, {ST_OFF}
    """)
    def load(st):
        r = AF + 8 * (st % NB)
        if st > 0: a.I(f"s_add_u32 s65, s65, 4096")
        for tu in range(2):
            a.I(f"buffer_load_dwordx4 {vr(r+4*tu,4)}, v{vA}, {srd(sWS)}, s65 offen offset:{256*tu} sc1")
    for st in range(NB): load(st)
    for tu in range(2):
        a.I(f"buffer_load_dwordx4 {vr(8+4*tu,4)}, v29, {srd(sWS)}, s66 offen offset:{1024*tu} sc1")
    def wreads(st):
        b = WB[st & 1]
        return [lambda f=f, rd=rd: a.I(f"ds_read_b64_tr_b16 {vr(b+4*f+2*rd,2)}, v{vTR+st//8} offset:{(st%8)*7168+rd*1792+f*32}")
                for f in range(7) for rd in range(2)]
    for it in wreads(0): it()
    for st in range(20):
        rd = wreads(st + 1) if st + 1 < 20 else []
        b = WB[st & 1]; r = AF + 8 * (st % NB)
        for f in range(7):
            for tu in range(2):
                d = ACC + 8 * f + 4 * tu
                cc = "0" if st == 0 else vr(d, 4)
                a.I(f"v_mfma_f32_16x16x32_bf16 {vr(d,4)}, {vr(b+4*f,4)}, {vr(r+4*tu,4)}, {cc}")
                if rd: rd.pop(0)()
        if st + NB < 20: load(st + NB)
        if st == 12:
            a.I(f"s_lshl_b32 s66, s{sCB4}, 9")
            a.I(f"s_add_u32 s66, s66, {CS_OFF}")
        if st == 16:
            CS = AF + 16
            for f in range(7):
                a.I(f"buffer_load_dwordx4 {vr(CS+4*f,4)}, v{vCSA}, {srd(sWS)}, s66 offen offset:{64*f} sc1")
    g.stamp()
    for tu in range(2):
        a.I(f"v_add_f32 v{8+4*tu}, v{8+4*tu}, v{10+4*tu}")
        rg_reduce(g, 8 + 4*tu, 2)
        a.I(f"v_mul_f32 v{8+4*tu}, {hex(f2u(-1.0/640))}, v{8+4*tu}")
        g.bf16r(8 + 4*tu, 8 + 4*tu)
    P = WB[0]
    a.M(f"""
    v_and_b32 v2, 31, v1
    v_lshlrev_b32 v2, 4, v2
    v_lshrrev_b32 v3, 5, v1
    v_lshl_add_u32 v2, v3, 10, v2
    s_mul_i32 s65, s63, 216
    s_mul_i32 s66, s{sCB4}, 14
    s_add_u32 s65, s65, s66
    s_lshl_b32 s65, s65, 10
    s_lshl_b32 s66, s64, 9
    s_add_u32 s65, s65, s66
    s_add_u32 s65, s65, {H1_OFF}
    """)
    skip = g.lab("h1")
    for f in range(7):
        if f == 3:
            a.I(f"s_cmp_eq_u32 s{sCB4}, 15")
            a.I(f"s_cbranch_scc1 {skip}")
        for tu in range(2):
            d = ACC + 8 * f + 4 * tu
            for e in range(4):
                a.I(f"v_fmac_f32 v{d+e}, v{8+4*tu}, v{CS+4*f+e}")
        for tu in range(2):
            d = ACC + 8 * f + 4 * tu
            for k in range(2):
                a.I(f"v_cvt_pk_bf16_f32 v{P+4*f+2*tu+k}, v{d+2*k}, v{d+2*k+1}")
        for k in range(4):
            a.I(f"v_pk_max_i16 v{P+4*f+k}, v{P+4*f+k}, 0")
        a.I(f"v_permlane16_swap_b32 v{P+4*f}, v{P+4*f+2}")
        a.I(f"v_permlane16_swap_b32 v{P+4*f+1}, v{P+4*f+3}")
        if f % 2 == 0 and f > 0: a.I("s_add_u32 s65, s65, 4096")
        a.I(f"buffer_store_dwordx4 {vr(P+4*f,4)}, v2, {srd(sWS)}, s65 offen offset:{2048*(f%2)} sc1")
    a.fence()
    a.label(skip)
    a.M(f"""
    s_lshl_b32 s66, s62, 4
    s_add_u32 s66, s66, s{sCB4}
    s_lshl_b32 s66, s66, 2
    s_add_u32 s66, s66, s{sWAVE}
    s_lshl_b32 s66, s66, 7
    s_add_u32 s66, s66, {F4_OFF}
    s_waitcnt vmcnt(0) lgkmcnt(0)
    """)
    g.signal(66, 2)
    g.stamp()

def phase5(g):
    a = g.a
    vRW, vRR, vA = 8, 11, 12
    AF, NB, ACC0, ACC1 = 32, 36, 176, 196
    red_addrs(g, vRW, vRR, vA)
    a.M(f"""
    s_lshr_b32 s66, s{sRB64}, 1
    s_lshl_b32 s66, s66, 4
    s_lshl_b32 s67, s{sWAVE}, 2
    s_add_u32 s66, s66, s67
    v_and_b32 v2, 3, v1
    v_add_u32 v2, s66, v2
    v_bfe_u32 v3, v1, 2, 1
    v_lshl_add_u32 v2, v2, 2, v3
    s_and_b32 s66, s{sRB64}, 1
    s_lshl_b32 s66, s66, 1
    v_add_u32 v2, s66, v2
    v_lshlrev_b32 v2, 7, v2
    v_add_u32 v30, {F4_OFF}, v2
    s_mul_i32 s62, s{sRB64}, 216
    s_mul_i32 s66, s{sWAVE}, 56
    s_add_u32 s63, s62, 212
    s_add_u32 s62, s62, s66
    s_lshl_b32 s62, s62, 10
    s_add_u32 s62, s62, {H1_OFF}
    s_lshl_b32 s63, s63, 10
    s_add_u32 s63, s63, {H1_OFF}
    s_lshl_b32 s66, s{sRB64}, 2
    s_add_u32 s66, s66, s{sWAVE}
    s_lshl_b32 s66, s66, 4
    v_and_b32 v2, 15, v1
    v_add_u32 v24, s66, v2
    v_lshrrev_b32 v3, 4, v1
    v_lshlrev_b32 v4, 6, v24
    v_lshl_add_u32 v25, v3, 4, v4
    s_barrier
    """)
    g.poll([30], 2)
    g.stamp()
    def load(n, r):
        u, st = divmod(n, 14)
        if st == 0:
            a.I(f"buffer_load_dwordx4 {vr(r,4)}, v{vA+u}, {srd(sWS)}, s62 offen sc1")
        else:
            a.I(f"s_add_u32 s64, s62, {4096*st}")
            if st >= 12: a.I("s_min_u32 s64, s64, s63")
            a.I(f"buffer_load_dwordx4 {vr(r,4)}, v{vA+u}, {srd(sWS)}, s64 offen sc1")
    def after():
        a.I(f"s_mov_b32 s66, {ST_OFF}")
        a.I(f"buffer_load_dwordx4 v[16:19], v25, {srd(sWS)}, s66 offen sc1")
    R = ksplit_gemm(g, 14, w2reg, load, AF, NB, ACC0, ACC1, vRW, vRR, after)
    g.stamp()
    a.I("v_add_f32 v16, v16, v18")
    a.I("v_add_f32 v17, v17, v19")
    rg_reduce(g, 16, 2)
    rg_reduce(g, 17, 2)
    g.ln_stats(16, 17, 18, 19, 2)
    T = AF
    for r in range(10):
        a.I(f"v_lshlrev_b32 v{T+2*r}, 16, v{vH+r}")
        a.I(f"v_and_b32 v{T+2*r+1}, 0xffff0000, v{vH+r}")
    for r in range(20): a.I(f"v_fmac_f32 v{T+r}, v18, v{R+r}")
    P = T + 20
    for r in range(10): a.I(f"v_cvt_pk_bf16_f32 v{P+r}, v{T+2*r}, v{T+2*r+1}")
    for pr in range(2):
        a.I(f"v_permlane16_swap_b32 v{P+4*pr}, v{P+4*pr+2}")
        a.I(f"v_permlane16_swap_b32 v{P+4*pr+1}, v{P+4*pr+3}")
    a.M(f"""
    v_mul_u32_u24 v4, 1280, v24
    v_bfe_u32 v2, v1, 4, 1
    v_lshrrev_b32 v3, 5, v1
    v_lshl_add_u32 v5, v2, 1, v3
    v_lshl_add_u32 v5, v5, 4, v4
    v_lshrrev_b32 v6, 4, v1
    v_lshl_add_u32 v6, v6, 3, v4
    s_mul_i32 s66, s{sCB3}, 160
    buffer_store_dwordx4 {vr(P,4)}, v5, {srd(sOUT)}, s66 offen
    buffer_store_dwordx4 {vr(P+4,4)}, v5, {srd(sOUT)}, s66 offen offset:64
    buffer_store_dwordx2 {vr(P+8,2)}, v6, {srd(sOUT)}, s66 offen offset:128
    """)
    g.stamp()
```

```python
import sys, math, struct
from asmlib import Asm, vr

NAME = "sequential_preLN__mha_block__dense_activation_relu__prompt"
KNAME = NAME + "_kernel"

QKV_OFF = 0
O_OFF = 32 * 240 * 1024
H_OFF = O_OFF + 32 * 80 * 1024
H1_OFF = H_OFF + 32 * 80 * 1024
ST_OFF = H1_OFF + 32 * 216 * 1024
F1_OFF = ST_OFF + 2048 * 64
F2_OFF = F1_OFF + 256 * 128
F3_OFF = F2_OFF + 1024 * 128
F4_OFF = F3_OFF + 1024 * 128
TS_OFF = F4_OFF + 1024 * 128
CS_OFF = TS_OFF + 1024 * 128
WS_USED = CS_OFF + 8192

def f2u(x):
    return struct.unpack("<I", struct.pack("<f", x))[0]

QSCALE = math.log2(math.e) / math.sqrt(20.0)
SPIN_MAX = 200000

sX, sWQKV, sWO, sW1, sW2, sOUT, sWS, sDBG = 8, 12, 16, 20, 24, 28, 32, 36
sWAVE, sXCD, sJ, sNONCE = 3, 40, 41, 42
def srd(b): return f"s[{b}:{b+3}]"

class Gen:
    def __init__(self, stop=99, stamps=False, p1_ahead=2):
        self.a = Asm()
        self.stop = stop
        self.stamps = stamps
        self.p1_ahead = p1_ahead
        self.nstamp = 0
        self.nlab = 0

    def lab(self, base):
        self.nlab += 1
        return f"L_{base}_{self.nlab}"

    def stamp(self):
        if not self.stamps: return
        k = self.nstamp
        self.nstamp += 1
        assert k < 30
        a = self.a
        a.I("s_waitcnt lgkmcnt(0)")
        a.I(f"s_memtime s[68:69]")
        a.I("s_waitcnt lgkmcnt(0)")
        a.I(f"s_mov_b32 s{71+k}, s68")

    def dump_stamps(self):
        if not self.stamps: return
        a = self.a
        a.drain()
        a.fence()
        a.M(f"""
        s_lshl_b32 s44, s2, 2
        s_add_u32 s44, s44, s{sWAVE}
        s_lshl_b32 s44, s44, 7
        s_add_u32 s44, s44, {TS_OFF}
        v_mov_b32 v2, 0
        s_mov_b64 exec, 1
        """)
        for k in range(self.nstamp):
            a.I(f"v_mov_b32 v3, s{70 if k == 0 else 71+k}")
            a.I(f"buffer_store_dword v3, v2, {srd(sWS)}, s44 offen offset:{4*k}")
        a.I("s_memrealtime s[44:45]")
        a.I("s_waitcnt lgkmcnt(0)")
        a.I("s_mov_b64 exec, -1")
        a.drain()

    def prologue(self):
        a = self.a
        a.M(f"""
        s_cmp_ge_u32 s2, 256
        s_cbranch_scc1 L_end
        s_load_dwordx16 s[48:63], s[0:1], 0
        s_load_dwordx2 s[64:65], s[0:1], 64
        """)
        if self.stamps:
            a.I("s_memtime s[70:71]"); self.nstamp = 1
        a.M(f"""
        v_lshrrev_b32 v2, 6, v0
        v_and_b32 v1, 63, v0
        v_readfirstlane_b32 s{sWAVE}, v2
        s_and_b32 s{sXCD}, s2, 7
        s_lshr_b32 s{sJ}, s2, 3
        s_mov_b32 s{sX+2}, {2048*1280}
        s_mov_b32 s{sX+3}, 0x20000
        s_mov_b32 s{sWQKV+2}, {640*3840}
        s_mov_b32 s{sWQKV+3}, 0x20000
        s_mov_b32 s{sWO+2}, {640*1280}
        s_mov_b32 s{sWO+3}, 0x20000
        s_mov_b32 s{sW1+2}, {640*3456}
        s_mov_b32 s{sW1+3}, 0x20000
        s_mov_b32 s{sW2+2}, {1728*1280}
        s_mov_b32 s{sW2+3}, 0x20000
        s_mov_b32 s{sOUT+2}, {2048*1280}
        s_mov_b32 s{sOUT+3}, 0x20000
        s_mov_b32 s{sWS+2}, {WS_USED}
        s_mov_b32 s{sWS+3}, 0x20000
        s_mov_b32 s{sDBG+2}, 256
        s_mov_b32 s{sDBG+3}, 0x20000
        """)

    def prologue_finish(self):
        a = self.a
        a.M(f"""
        s_waitcnt lgkmcnt(0)
        s_mov_b64 s[{sX}:{sX+1}], s[48:49]
        s_mov_b64 s[{sWQKV}:{sWQKV+1}], s[50:51]
        s_mov_b64 s[{sWO}:{sWO+1}], s[52:53]
        s_mov_b64 s[{sW1}:{sW1+1}], s[56:57]
        s_mov_b64 s[{sW2}:{sW2+1}], s[58:59]
        s_mov_b64 s[{sOUT}:{sOUT+1}], s[60:61]
        s_mov_b64 s[{sDBG}:{sDBG+1}], s[62:63]
        s_mov_b64 s[{sWS}:{sWS+1}], s[64:65]
        """)

    def publish_nonce(self):
        a = self.a
        skip = self.lab("nn")
        a.M(f"""
        s_or_b32 s44, s2, s{sWAVE}
        s_cmp_lg_u32 s44, 0
        s_cbranch_scc1 {skip}
        s_memrealtime s[68:69]
        s_waitcnt lgkmcnt(0)
        s_or_b32 s44, s68, 1
        v_mov_b32 v2, s44
        v_mov_b32 v3, 0
        s_mov_b64 exec, 1
        """)
        a.raw(f"    buffer_store_dword v2, v3, {srd(sDBG)}, 0 offen sc1")
        a.raw("    s_waitcnt vmcnt(0)")
        a.I("s_mov_b64 exec, -1")
        a.label(skip)

    def get_nonce(self, vt):
        a = self.a
        lp, done = self.lab("gn"), self.lab("gnd")
        a.I(f"v_mov_b32 v{vt+1}, 0")
        a.I(f"s_mov_b32 s44, 0")
        a.drain(); a.fence()
        a.label(lp)
        a.M(f"""
        buffer_load_dword v{vt}, v{vt+1}, {srd(sDBG)}, 0 offen sc1
        s_waitcnt vmcnt(0)
        v_readfirstlane_b32 s{sNONCE}, v{vt}
        s_add_u32 s44, s44, 1
        s_cmp_gt_u32 s44, {SPIN_MAX}
        s_cbranch_scc1 {done}
        s_cmp_eq_u32 s{sNONCE}, 0
        s_cbranch_scc1 {lp}
        """)
        a.label(done)
        a.fence(False)

    def signal(self, soff, vt):
        a = self.a
        a.M(f"""
        v_mov_b32 v{vt}, s{sNONCE}
        v_mov_b32 v{vt+1}, 0
        s_mov_b64 exec, 1
        buffer_store_dword v{vt}, v{vt+1}, {srd(sWS)}, s{soff} offen sc1
        s_mov_b64 exec, -1
        """)

    def poll(self, vaddrs, vt):
        a = self.a
        lp, done = self.lab("pl"), self.lab("pld")
        a.I("s_mov_b32 s44, 0")
        a.fence()
        a.label(lp)
        for i, va in enumerate(vaddrs):
            a.I(f"buffer_load_dword v{vt+i}, v{va}, {srd(sWS)}, 0 offen sc1")
        a.I("s_waitcnt vmcnt(0)")
        a.I(f"v_cmp_ne_u32 vcc, s{sNONCE}, v{vt}")
        for i in range(1, len(vaddrs)):
            a.I(f"v_cmp_ne_u32 s[46:47], s{sNONCE}, v{vt+i}")
            a.I(f"s_or_b64 vcc, vcc, s[46:47]")
        a.M(f"""
        s_add_u32 s44, s44, 1
        s_cmp_gt_u32 s44, {SPIN_MAX}
        s_cbranch_scc1 {done}
        s_cmp_lg_u64 vcc, 0
        s_cbranch_scc1 {lp}
        """)
        a.label(done)
        a.fence(False)

    def bf16r(self, d, s):
        a = self.a
        a.I(f"v_cvt_pk_bf16_f32 v{d}, v{s}, v{s}")
        a.I(f"v_and_b32 v{d}, 0xffff0000, v{d}")

    def ln_stats(self, vsum, vsq, vr_, vm_, t):
        a = self.a
        a.I(f"v_mul_f32 v{vm_}, {hex(f2u(1.0/640))}, v{vsum}")
        a.I(f"v_mul_f32 v{t}, {hex(f2u(1.0/640))}, v{vsq}")
        a.I(f"v_fma_f32 v{t}, -v{vm_}, v{vm_}, v{t}")
        a.I(f"v_max_f32 v{t}, 0, v{t}")
        self.bf16r(t, t)
        a.I(f"v_add_f32 v{t}, {hex(f2u(1e-5))}, v{t}")
        self.bf16r(t, t)
        a.I(f"v_sqrt_f32 v{t}, v{t}")
        self.bf16r(t, t)
        a.I(f"v_rcp_f32 v{vr_}, v{t}")
        self.bf16r(vm_, vm_)

    def phase1(self):
        a = self.a
        AH = self.p1_ahead
        sRB, sCB, sKC, sT0, sT1 = 43, 45, 46, 47, 48
        sWT, sWF = 49, 50
        vDX, vDW, vRX, vRW = 16, 20, 24, 32
        vSUM, vSQ, vCS, vONE = 34, 36, 38, 40
        ACC, XF, WF = 64, 128, 144
        skip = "L_p1_skip"
        a.M(f"""
        s_and_b32 s66, s{sXCD}, 1
        s_mul_i32 s66, s66, 30
        s_add_u32 s66, s66, s{sJ}
        s_lshr_b32 s{sCB}, s66, 2
        s_and_b32 s67, s66, 3
        s_lshr_b32 s{sRB}, s{sXCD}, 1
        s_lshl_b32 s{sRB}, s{sRB}, 2
        s_add_u32 s{sRB}, s{sRB}, s67
        """)
        a.M(f"""
        s_mul_i32 s67, s67, 3
        s_add_u32 s{sKC}, s{sCB}, s67
        s_cmp_ge_u32 s{sKC}, 20
        s_cselect_b32 s67, 20, 0
        s_sub_u32 s{sKC}, s{sKC}, s67
        s_cmp_ge_u32 s{sKC}, 10
        s_cselect_b32 s67, 10, 0
        s_sub_u32 s{sKC}, s{sKC}, s67
        """)
        a.M(f"""
        s_lshl_b32 s66, s{sRB}, 7
        s_lshl_b32 s67, s{sWAVE}, 5
        s_add_u32 s66, s66, s67
        v_lshrrev_b32 v2, 3, v1
        v_add_u32 v2, s66, v2
        v_mul_u32_u24 v2, 1280, v2
        v_and_b32 v3, 7, v1
        v_lshrrev_b32 v4, 4, v1
        v_xor_b32 v3, v3, v4
        v_lshlrev_b32 v3, 4, v3
        v_xor_b32 v5, 64, v3
        v_add_u32 v{vDX}, v2, v3
        v_add_u32 v{vDX+1}, v2, v5
        v_add_u32 v{vDX+1}, {10240-1024}, v{vDX+1}
        v_add_u32 v{vDX+2}, {2*(10240-1024)}, v{vDX}
        v_add_u32 v{vDX+3}, {2*(10240-1024)}, v{vDX+1}
        """)
        a.M(f"""
        s_lshl_b32 s67, s{sWAVE}, 4
        v_add_u32 v2, s67, v4
        v_mul_u32_u24 v2, 3840, v2
        v_and_b32 v3, 15, v1
        v_lshlrev_b32 v5, 2, v4
        v_xor_b32 v3, v3, v5
        v_lshlrev_b32 v3, 4, v3
        s_lshl_b32 s67, s{sCB}, 8
        v_add3_u32 v{vDW}, v2, v3, s67
        v_add_u32 v{vDW+1}, {4*3840-1024}, v{vDW}
        v_add_u32 v{vDW+2}, {2*(4*3840-1024)}, v{vDW}
        v_add_u32 v{vDW+3}, {3*(4*3840-1024)}, v{vDW}
        """)
        self.prologue_finish()
        self.publish_nonce()
        a.M(f"""
        s_cmp_ge_u32 s{sJ}, 30
        s_cbranch_scc1 {skip}
        """)
        dma_last = {}
        def dma_setup_x(c):
            a.I(f"s_lshl_b32 s{sT0}, s{sKC}, 7")
            a.I(f"s_add_u32 m0, s51, {(c % 4) * 16384}")
        def dma_x(c, i):
            dma_last[c] = a.I(f"buffer_load_dwordx4 v{vDX+i}, {srd(sX)}, s{sT0} offen offset:{1024*i} lds")
        def dma_setup_w(c):
            a.I(f"s_mul_i32 s{sT1}, s{sKC}, {64*3840}")
            a.I(f"s_add_u32 m0, s51, {65536 + (c % 4) * 16384}")
        def dma_w(c, i):
            dma_last[c] = a.I(f"buffer_load_dwordx4 v{vDW+i}, {srd(sWQKV)}, s{sT1} offen offset:{1024*i} lds")
        def kc_next():
            a.I(f"s_add_u32 s{sKC}, s{sKC}, 1")
            a.I(f"s_cmp_eq_u32 s{sKC}, 10")
            a.I(f"s_cselect_b32 s{sKC}, 0, s{sKC}")
        def dma_items(c):
            it = [lambda: (dma_setup_x(c), dma_x(c, 0))] + [lambda i=i: dma_x(c, i) for i in (1, 2, 3)]
            it += [lambda: (dma_setup_w(c), dma_w(c, 0))] + [lambda i=i: dma_w(c, i) for i in (1, 2)]
            it += [lambda: (dma_w(c, 3), kc_next())]
            return it
        a.I(f"s_lshl_b32 s51, s{sWAVE}, 12")
        for c in range(AH + 1):
            for it in dma_items(c): it()
        a.M(f"""
        s_lshr_b32 s{sWT}, s{sWAVE}, 1
        s_and_b32 s{sWF}, s{sWAVE}, 1
        v_and_b32 v2, 31, v1
        v_lshrrev_b32 v3, 5, v1
        v_bfe_u32 v4, v1, 1, 3
        v_xor_b32 v4, v4, v3
        v_lshlrev_b32 v4, 4, v4
        v_lshl_add_u32 v4, v2, 7, v4
        s_lshl_b32 s66, s{sWT}, 13
        s_lshl_b32 s67, s{sWF}, 12
        s_add_u32 s66, s66, s67
        v_add_u32 v{vRX}, s66, v4
        v_xor_b32 v{vRX+1}, 32, v{vRX}
        v_xor_b32 v{vRX+2}, 64, v{vRX}
        v_xor_b32 v{vRX+3}, 96, v{vRX}
        """)
        for k in range(4):
            a.I(f"v_xor_b32 v{vRX+4+k}, 4096, v{vRX+k}")
        a.M(f"""
        v_bfe_u32 v4, v1, 2, 2
        v_lshl_add_u32 v5, v3, 3, v4
        v_lshlrev_b32 v5, 8, v5
        s_lshl_b32 s66, s{sWF}, 1
        s_add_u32 s66, s66, s{sWT}
        v_xor_b32 v4, s66, v4
        v_lshl_add_u32 v5, v4, 6, v5
        v_bfe_u32 v4, v1, 4, 1
        v_lshl_add_u32 v5, v4, 5, v5
        v_and_b32 v4, 3, v1
        v_lshl_add_u32 v5, v4, 3, v5
        v_add_u32 v{vRW}, 65536, v5
        v_xor_b32 v{vRW+1}, 64, v{vRW}
        v_mov_b32 v{vONE}, 0x3f803f80
        """)
        for r in range(vSUM, vSUM + 6):
            a.I(f"v_mov_b32 v{r}, 0")

        def reads(g):
            c, ks = divmod(g, 4)
            b = g & 1
            so = (c % 4) * 16384
            it = []
            for u in range(2):
                it.append(lambda u=u: a.I(f"ds_read_b128 {vr(XF+8*b+4*u,4)}, v{vRX+4*u+ks} offset:{so}"))
            for u in range(2):
                for rd in range(2):
                    it.append(lambda u=u, rd=rd: a.I(f"ds_read_b64_tr_b16 {vr(WF+8*b+4*u+2*rd,2)}, v{vRW+u} offset:{so+ks*4096+rd*1024}"))
            return [it[0], it[2], it[3], it[1], it[4], it[5]]

        a.wait_vm(dma_last[0])
        a.I("s_barrier")
        self.stamp()
        for it in reads(0): it()
        pend = []
        for g in range(40):
            c, ks = divmod(g, 4)
            b = g & 1
            X = [XF + 8*b, XF + 8*b + 4]
            W = [WF + 8*b, WF + 8*b + 4]
            rd = reads(g + 1) if g + 1 < 40 else []
            dots = []
            for k in range(4):
                dots.append(f"v_dot2_f32_bf16 v{vSQ+(k&1)}, v{X[0]+k}, v{X[0]+k}, v{vSQ+(k&1)}")
                dots.append(f"v_dot2_f32_bf16 v{vSUM+(k&1)}, v{X[0]+k}, v{vONE}, v{vSUM+(k&1)}")
                dots.append(f"v_dot2_f32_bf16 v{vCS+(k&1)}, v{W[0]+k}, v{vONE}, v{vCS+(k&1)}")
            boundary = (ks == 3 and g + 1 < 40)
            if boundary:
                a.I("s_waitcnt lgkmcnt(0)")
            order = [(0, 0), (0, 1), (1, 0), (1, 1)]
            for n, (fu, tu) in enumerate(order):
                d = ACC + 16 * (2*fu + tu)
                cc = "0" if g == 0 else vr(d, 16)
                a.I(f"v_mfma_f32_32x32x16_bf16 {vr(d,16)}, {vr(W[fu],4)}, {vr(X[tu],4)}, {cc}")
                if n == 0 and boundary:
                    a.wait_vm(dma_last[c + 1])
                    a.I("s_barrier")
                    if c + 2 + AH < 10 + 0 or c + 1 + AH < 10:
                        pass
                    if c + 2 + AH - 1 < 10 and (c + 1 + AH) < 10:
                        pend += dma_items(c + 1 + AH)
                take = {0: 2, 1: 2, 2: 2, 3: 0}[n]
                for it in rd[:take]: it()
                rd = rd[take:]
                if n in (1, 3) and pend:
                    pend.pop(0)()
                if n == 3:
                    for t in dots: a.I(t)
        assert not pend
        self.stamp()
        LST = 131072
        a.M(f"""
        v_add_f32 v{vSUM}, v{vSUM}, v{vSUM+1}
        v_add_f32 v{vSQ}, v{vSQ}, v{vSQ+1}
        v_add_f32 v{vCS}, v{vCS}, v{vCS+1}
        v_mov_b32 v{vSUM+1}, v{vSUM}
        v_mov_b32 v{vSQ+1}, v{vSQ}
        v_mov_b32 v{vCS+1}, v{vCS}
        v_permlane32_swap_b32 v{vSUM}, v{vSUM+1}
        v_permlane32_swap_b32 v{vSQ}, v{vSQ+1}
        v_permlane32_swap_b32 v{vCS}, v{vCS+1}
        v_add_f32 v{vSUM}, v{vSUM}, v{vSUM+1}
        v_add_f32 v{vSQ}, v{vSQ}, v{vSQ+1}
        v_add_f32 v{vCS}, v{vCS}, v{vCS+1}
        """)
        a.M(f"""
        v_and_b32 v2, 31, v1
        s_lshl_b32 s66, s{sWF}, 1
        s_add_u32 s66, s66, s{sWT}
        s_lshl_b32 s66, s66, 7
        s_add_u32 s66, s66, {LST+1024}
        v_lshl_add_u32 v3, v2, 2, s66
        ds_write_b32 v3, v{vCS}
        """)
        ST0, ST1 = 42, 44
        self.ln_stats(vSUM, vSQ, ST0, ST0 + 1, 4)
        a.M(f"""
        s_cmp_lt_u32 s{sCB}, 5
        s_cselect_b32 s66, {hex(f2u(QSCALE))}, 1.0
        v_mul_f32 v{ST0}, s66, v{ST0}
        v_mul_f32 v{ST0+1}, -v{ST0}, v{ST0+1}
        s_lshl_b32 s66, s{sWAVE}, 8
        s_add_u32 s66, s66, {LST}
        v_lshl_add_u32 v3, v2, 3, s66
        ds_write_b64 v3, v[{ST0}:{ST0+1}]
        v_xor_b32 v3, 256, v3
        v_lshrrev_b32 v4, 5, v1
        s_lshl_b32 s66, s{sWF}, 1
        s_add_u32 s66, s66, s{sWT}
        s_lshl_b32 s66, s66, 7
        s_add_u32 s66, s66, {LST+1024}
        v_lshl_add_u32 v5, v4, 4, s66
        v_xor_b32 v6, 128, v5
        s_waitcnt lgkmcnt(0)
        s_barrier
        ds_read_b64 v[{ST1}:{ST1+1}], v3
        """)
        CS = 128
        for fu in range(2):
            for g in range(4):
                a.I(f"ds_read_b128 {vr(CS+16*fu+4*g,4)}, v{5+fu} offset:{32*g}")
        a.M(f"""
        v_lshlrev_b32 v7, 4, v2
        v_lshl_add_u32 v7, v4, 10, v7
        s_lshl_b32 s66, s{sRB}, 1
        s_add_u32 s66, s66, s{sWT}
        s_mul_i32 s66, s66, 240
        s_lshl_b32 s67, s{sCB}, 4
        s_add_u32 s66, s66, s67
        s_lshl_b32 s67, s{sWF}, 3
        s_add_u32 s66, s66, s67
        s_lshl_b32 s66, s66, 10
        s_lshl_b32 s67, s{sWT}, 12
        s_add_u32 s66, s66, s67
        s_lshl_b32 s67, s{sWF}, 9
        s_add_u32 s52, s66, s67
        s_xor_b32 s53, s52, 512
        s_xor_b32 s54, s52, 4096
        s_xor_b32 s55, s53, 4096
        """)
        T = 160
        P = 176
        for n, (fu, tu) in enumerate([(0, 0), (1, 0), (0, 1), (1, 1)]):
            d = ACC + 16 * (2*fu + tu)
            st = ST0 if tu == 0 else ST1
            p = P + 8 * n
            for k in range(8):
                a.I(f"v_pk_mul_f32 {vr(T+2*k,2)}, {vr(CS+16*fu+2*k,2)}, {vr(st,2)} op_sel:[0,1] op_sel_hi:[1,1]")
            for k in range(8):
                a.I(f"v_pk_fma_f32 {vr(d+2*k,2)}, {vr(d+2*k,2)}, {vr(st,2)}, {vr(T+2*k,2)} op_sel:[0,0,0] op_sel_hi:[1,0,1]")
            for k in range(8):
                a.I(f"v_cvt_pk_bf16_f32 v{p+k}, v{d+2*k}, v{d+2*k+1}")
            for pr in range(2):
                a.I(f"v_permlane32_swap_b32 v{p+4*pr}, v{p+4*pr+2}")
                a.I(f"v_permlane32_swap_b32 v{p+4*pr+1}, v{p+4*pr+3}")
            for pr in range(2):
                a.I(f"buffer_store_dwordx4 {vr(p+4*pr,4)}, v7, {srd(sWS)}, s{52+2*fu+tu} offen offset:{2048*pr} sc1")
        self.stamp()
        self.get_nonce(2)
        a.I("s_barrier")
        sk = self.lab("sg")
        a.M(f"""
        s_cmp_lg_u32 s{sWAVE}, 0
        s_cbranch_scc1 L_p1_done
        s_lshl_b32 s66, s{sCB}, 4
        s_add_u32 s66, s66, s{sRB}
        s_lshl_b32 s66, s66, 7
        s_add_u32 s66, s66, {F1_OFF}
        """)
        self.signal(66, 2)
        a.I("s_branch L_p1_done")
        a.vm = []
        a.label(skip)
        a.fence(False)
        if self.stamps:
            for k in (1, 2, 3):
                a.I(f"s_mov_b32 s{71+k}, s70")
        from gen2 import colsum_w1
        colsum_w1(self)
        a.label("L_p1_done")
        a.fence(False)
        a.vm = [(-1, set(), None)]

    def build(self):
        a = self.a
        self.prologue()
        self.phase1()
        self.stamp()
        if self.stop >= 2:
            from gen2 import phase2, phase3, phase4, phase5
            phase2(self)
            if self.stop >= 3: phase3(self)
            if self.stop >= 4: phase4(self)
            if self.stop >= 5: phase5(self)
        self.dump_stamps()
        a.drain()
        a.label("L_end")
        a.I("s_endpgm")
        if self.stop >= 2:
            from gen2 import slow_path
            slow_path(self)
        head = open(f"cdna_kernels/{NAME}.s.ref").read().split("; Override launch")[0]
        out = head + f"""; @launch grid=(256,1,1) block=(256,1,1) lds=163840
.amdgcn_target "amdgcn-amd-amdhsa--gfx950"
.text
.globl {KNAME}
.p2align 8
.type {KNAME},@function
{KNAME}:
""" + a.text() + f""".section .rodata,"a"
.p2align 6
.amdhsa_kernel {KNAME}
  .amdhsa_next_free_vgpr 512
  .amdhsa_next_free_sgpr 102
  .amdhsa_accum_offset 256
  .amdhsa_group_segment_fixed_size 0
  .amdhsa_kernarg_size 72
  .amdhsa_user_sgpr_count 2
  .amdhsa_user_sgpr_kernarg_segment_ptr 1
  .amdhsa_system_sgpr_workgroup_id_x 1
.end_amdhsa_kernel
"""
        return out

if __name__ == "__main__":
    import argparse
    ap = argparse.ArgumentParser()
    ap.add_argument("-o", default="out.s")
    ap.add_argument("--stop", type=int, default=99)
    ap.add_argument("--stamps", action="store_true")
    ap.add_argument("--ahead", type=int, default=2)
    args = ap.parse_args()
    g = Gen(stop=args.stop, stamps=args.stamps, p1_ahead=args.ahead)
    s = g.build()
    open(args.o, "w").write(s)
    print(f"instrs {g.a.nins} nops {g.a.nnop} autowaits {g.a.nwait} bytes {len(s)}")
```

```python
import sys, math, struct
from asmlib import Asm, vr

NAME = "sequential_preLN__mha_block__dense_activation_relu__prompt"
KNAME = NAME + "_kernel"

QKV_OFF = 0
O_OFF = 32 * 240 * 1024
H_OFF = O_OFF + 32 * 80 * 1024
H1_OFF = H_OFF + 32 * 80 * 1024
ST_OFF = H1_OFF + 32 * 216 * 1024
F1_OFF = ST_OFF + 2048 * 64
F2_OFF = F1_OFF + 256 * 128
F3_OFF = F2_OFF + 1024 * 128
F4_OFF = F3_OFF + 1024 * 128
TS_OFF = F4_OFF + 1024 * 128
CS_OFF = TS_OFF + 1024 * 128
WS_USED = CS_OFF + 8192

def f2u(x):
    return struct.unpack("<I", struct.pack("<f", x))[0]

QSCALE = math.log2(math.e) / math.sqrt(20.0)
SPIN_MAX = 200000

sX, sWQKV, sWO, sW1, sW2, sOUT, sWS, sDBG = 8, 12, 16, 20, 24, 28, 32, 36
sWAVE, sXCD, sJ, sNONCE = 3, 40, 41, 42
def srd(b): return f"s[{b}:{b+3}]"

class Gen:
    def __init__(self, stop=99, stamps=False, p1_ahead=2, probe=None, **kw):
        self.a = Asm()
        self.stop = stop
        self.stamps = stamps
        self.p1_ahead = p1_ahead
        self.nstamp = 0
        self.fine = (stop == 1)
        self.nlab = 0
        self.probe = probe
        self.opt = kw

    def lab(self, base):
        self.nlab += 1
        return f"L_{base}_{self.nlab}"

    def stamp(self):
        if not self.stamps: return
        k = self.nstamp
        self.nstamp += 1
        assert k < 30
        a = self.a
        a.I("s_waitcnt lgkmcnt(0)")
        a.I(f"s_memtime s[68:69]")
        a.I("s_waitcnt lgkmcnt(0)")
        a.I(f"s_mov_b32 s{71+k}, s68")

    def dump_stamps(self):
        if not self.stamps: return
        a = self.a
        a.drain()
        a.fence()
        if self.probe is not None:
            i, j = self.probe
            if j < 0: j += self.nstamp
            ri = 70 if i == 0 else 71 + i
            rj = 70 if j == 0 else 71 + j
            a.M(f'''
            s_sub_u32 s44, s{rj}, s{ri}
            s_memtime s[68:69]
            s_waitcnt lgkmcnt(0)
            s_mov_b32 s45, s68
            L_probe:
            s_memtime s[68:69]
            s_waitcnt lgkmcnt(0)
            s_sub_u32 s46, s68, s45
            s_cmp_lt_u32 s46, s44
            s_cbranch_scc1 L_probe
            ''')
            return
        a.M(f"""
        s_lshl_b32 s44, s2, 2
        s_add_u32 s44, s44, s{sWAVE}
        s_lshl_b32 s44, s44, 7
        s_add_u32 s44, s44, {TS_OFF}
        v_mov_b32 v2, 0
        s_mov_b64 exec, 1
        """)
        for k in range(self.nstamp):
            a.I(f"v_mov_b32 v3, s{70 if k == 0 else 71+k}")
            a.I(f"buffer_store_dword v3, v2, {srd(sWS)}, s44 offen offset:{4*k}")
        a.I("s_memrealtime s[44:45]")
        a.I("s_waitcnt lgkmcnt(0)")
        a.I("s_mov_b64 exec, -1")
        a.drain()

    def prologue(self):
        a = self.a
        a.M(f"""
        s_cmp_ge_u32 s2, 256
        s_cbranch_scc1 L_end
        s_load_dwordx16 s[48:63], s[0:1], 0
        s_load_dwordx2 s[64:65], s[0:1], 64
        """)
        if self.stamps:
            a.I("s_memtime s[70:71]"); self.nstamp = 1
        a.M(f"""
        v_lshrrev_b32 v2, 6, v0
        v_and_b32 v1, 63, v0
        v_readfirstlane_b32 s{sWAVE}, v2
        s_and_b32 s{sXCD}, s2, 7
        s_lshr_b32 s{sJ}, s2, 3
        s_mov_b32 s{sX+2}, {2048*1280}
        s_mov_b32 s{sX+3}, 0x20000
        s_mov_b32 s{sWQKV+2}, {640*3840}
        s_mov_b32 s{sWQKV+3}, 0x20000
        s_mov_b32 s{sWO+2}, {640*1280}
        s_mov_b32 s{sWO+3}, 0x20000
        s_mov_b32 s{sW1+2}, {640*3456}
        s_mov_b32 s{sW1+3}, 0x20000
        s_mov_b32 s{sW2+2}, {1728*1280}
        s_mov_b32 s{sW2+3}, 0x20000
        s_mov_b32 s{sOUT+2}, {2048*1280}
        s_mov_b32 s{sOUT+3}, 0x20000
        s_mov_b32 s{sWS+2}, {WS_USED}
        s_mov_b32 s{sWS+3}, 0x20000
        s_mov_b32 s{sDBG+2}, 256
        s_mov_b32 s{sDBG+3}, 0x20000
        """)

    def prologue_finish(self):
        a = self.a
        a.M(f"""
        s_waitcnt lgkmcnt(0)
        s_mov_b64 s[{sX}:{sX+1}], s[48:49]
        s_mov_b64 s[{sWQKV}:{sWQKV+1}], s[50:51]
        s_mov_b64 s[{sWO}:{sWO+1}], s[52:53]
        s_mov_b64 s[{sW1}:{sW1+1}], s[56:57]
        s_mov_b64 s[{sW2}:{sW2+1}], s[58:59]
        s_mov_b64 s[{sOUT}:{sOUT+1}], s[60:61]
        s_mov_b64 s[{sDBG}:{sDBG+1}], s[62:63]
        s_mov_b64 s[{sWS}:{sWS+1}], s[64:65]
        """)

    def publish_nonce(self):
        a = self.a
        skip = self.lab("nn")
        a.M(f"""
        s_or_b32 s44, s2, s{sWAVE}
        s_cmp_lg_u32 s44, 0
        s_cbranch_scc1 {skip}
        s_memrealtime s[68:69]
        s_waitcnt lgkmcnt(0)
        s_or_b32 s44, s68, 1
        v_mov_b32 v2, s44
        v_mov_b32 v3, 0
        s_mov_b64 exec, 1
        """)
        a.raw(f"    buffer_store_dword v2, v3, {srd(sDBG)}, 0 offen sc1")
        a.raw("    s_waitcnt vmcnt(0)")
        a.I("s_mov_b64 exec, -1")
        a.label(skip)

    def get_nonce(self, vt):
        a = self.a
        lp, done = self.lab("gn"), self.lab("gnd")
        a.I(f"v_mov_b32 v{vt+1}, 0")
        a.I(f"s_mov_b32 s44, 0")
        a.drain(); a.fence()
        a.label(lp)
        a.M(f"""
        buffer_load_dword v{vt}, v{vt+1}, {srd(sDBG)}, 0 offen sc1
        s_waitcnt vmcnt(0)
        v_readfirstlane_b32 s{sNONCE}, v{vt}
        s_add_u32 s44, s44, 1
        s_cmp_gt_u32 s44, {SPIN_MAX}
        s_cbranch_scc1 {done}
        s_cmp_eq_u32 s{sNONCE}, 0
        s_cbranch_scc1 {lp}
        """)
        a.label(done)
        a.fence(False)

    def signal(self, soff, vt):
        a = self.a
        a.M(f"""
        v_mov_b32 v{vt}, s{sNONCE}
        v_mov_b32 v{vt+1}, 0
        s_mov_b64 exec, 1
        buffer_store_dword v{vt}, v{vt+1}, {srd(sWS)}, s{soff} offen sc1
        s_mov_b64 exec, -1
        """)

    def poll(self, vaddrs, vt):
        a = self.a
        lp, done = self.lab("pl"), self.lab("pld")
        a.I("s_mov_b32 s44, 0")
        a.fence()
        a.label(lp)
        for i, va in enumerate(vaddrs):
            a.I(f"buffer_load_dword v{vt+i}, v{va}, {srd(sWS)}, 0 offen sc1")
        a.I("s_waitcnt vmcnt(0)")
        a.I(f"v_cmp_ne_u32 vcc, s{sNONCE}, v{vt}")
        for i in range(1, len(vaddrs)):
            a.I(f"v_cmp_ne_u32 s[46:47], s{sNONCE}, v{vt+i}")
            a.I(f"s_or_b64 vcc, vcc, s[46:47]")
        a.M(f"""
        s_add_u32 s44, s44, 1
        s_cmp_gt_u32 s44, {SPIN_MAX}
        s_cbranch_scc1 {done}
        s_cmp_lg_u64 vcc, 0
        s_cbranch_scc1 {lp}
        """)
        a.label(done)
        a.fence(False)

    def bf16r(self, d, s):
        a = self.a
        a.I(f"v_cvt_pk_bf16_f32 v{d}, v{s}, v{s}")
        a.I(f"v_and_b32 v{d}, 0xffff0000, v{d}")

    def ln_stats(self, vsum, vsq, vr_, vm_, t):
        a = self.a
        a.I(f"v_mul_f32 v{vm_}, {hex(f2u(1.0/640))}, v{vsum}")
        a.I(f"v_mul_f32 v{t}, {hex(f2u(1.0/640))}, v{vsq}")
        a.I(f"v_fma_f32 v{t}, -v{vm_}, v{vm_}, v{t}")
        a.I(f"v_max_f32 v{t}, 0, v{t}")
        self.bf16r(t, t)
        a.I(f"v_add_f32 v{t}, {hex(f2u(1e-5))}, v{t}")
        self.bf16r(t, t)
        a.I(f"v_sqrt_f32 v{t}, v{t}")
        self.bf16r(t, t)
        a.I(f"v_rcp_f32 v{vr_}, v{t}")
        self.bf16r(vm_, vm_)

    def phase1(self):
        a = self.a
        AH = self.p1_ahead
        sRB, sCB, sKC, sT0, sT1 = 43, 45, 46, 47, 48
        sWT, sWF = 49, 50
        vDX, vDW, vRX, vRW = 16, 20, 24, 32
        vSUM, vSQ, vCS, vONE = 34, 36, 38, 40
        ACC, XF, WF = 64, 128, 144
        skip = "L_p1_skip"
        a.M(f"""
        s_and_b32 s66, s{sXCD}, 1
        s_mul_i32 s66, s66, 30
        s_add_u32 s66, s66, s{sJ}
        s_lshr_b32 s{sCB}, s66, 2
        s_and_b32 s67, s66, 3
        s_lshr_b32 s{sRB}, s{sXCD}, 1
        s_lshl_b32 s{sRB}, s{sRB}, 2
        s_add_u32 s{sRB}, s{sRB}, s67
        """)
        a.M(f"""
        s_mul_i32 s67, s67, 3
        s_add_u32 s{sKC}, s{sCB}, s67
        s_cmp_ge_u32 s{sKC}, 20
        s_cselect_b32 s67, 20, 0
        s_sub_u32 s{sKC}, s{sKC}, s67
        s_cmp_ge_u32 s{sKC}, 10
        s_cselect_b32 s67, 10, 0
        s_sub_u32 s{sKC}, s{sKC}, s67
        """)
        a.M(f"""
        s_lshl_b32 s66, s{sRB}, 7
        s_lshl_b32 s67, s{sWAVE}, 5
        s_add_u32 s66, s66, s67
        v_lshrrev_b32 v2, 3, v1
        v_add_u32 v2, s66, v2
        v_mul_u32_u24 v2, 1280, v2
        v_and_b32 v3, 7, v1
        v_lshrrev_b32 v4, 4, v1
        v_xor_b32 v3, v3, v4
        v_lshlrev_b32 v3, 4, v3
        v_xor_b32 v5, 64, v3
        v_add_u32 v{vDX}, v2, v3
        v_add_u32 v{vDX+1}, v2, v5
        v_add_u32 v{vDX+1}, {10240-1024}, v{vDX+1}
        v_add_u32 v{vDX+2}, {2*(10240-1024)}, v{vDX}
        v_add_u32 v{vDX+3}, {2*(10240-1024)}, v{vDX+1}
        """)
        a.M(f"""
        s_lshl_b32 s67, s{sWAVE}, 4
        v_add_u32 v2, s67, v4
        v_mul_u32_u24 v2, 3840, v2
        v_and_b32 v3, 15, v1
        v_lshlrev_b32 v5, 2, v4
        v_xor_b32 v3, v3, v5
        v_lshlrev_b32 v3, 4, v3
        s_lshl_b32 s67, s{sCB}, 8
        v_add3_u32 v{vDW}, v2, v3, s67
        v_add_u32 v{vDW+1}, {4*3840-1024}, v{vDW}
        v_add_u32 v{vDW+2}, {2*(4*3840-1024)}, v{vDW}
        v_add_u32 v{vDW+3}, {3*(4*3840-1024)}, v{vDW}
        """)
        self.prologue_finish()
        self.stamp()
        self.publish_nonce()
        a.M(f"""
        s_cmp_ge_u32 s{sJ}, 30
        s_cbranch_scc1 {skip}
        """)
        dma_last = {}
        def dma_setup_x(c):
            a.I(f"s_lshl_b32 s{sT0}, s{sKC}, 7")
            a.I(f"s_add_u32 m0, s51, {(c % 4) * 16384}")
        def dma_x(c, i):
            dma_last[c] = a.I(f"buffer_load_dwordx4 v{vDX+i}, {srd(sX)}, s{sT0} offen offset:{1024*i} lds")
        def dma_setup_w(c):
            a.I(f"s_mul_i32 s{sT1}, s{sKC}, {64*3840}")
            a.I(f"s_add_u32 m0, s51, {65536 + (c % 4) * 16384}")
        def dma_w(c, i):
            dma_last[c] = a.I(f"buffer_load_dwordx4 v{vDW+i}, {srd(sWQKV)}, s{sT1} offen offset:{1024*i} lds")
        def kc_next():
            a.I(f"s_add_u32 s{sKC}, s{sKC}, 1")
            a.I(f"s_cmp_eq_u32 s{sKC}, 10")
            a.I(f"s_cselect_b32 s{sKC}, 0, s{sKC}")
        def dma_items(c):
            it = [lambda: (dma_setup_x(c), dma_x(c, 0))] + [lambda i=i: dma_x(c, i) for i in (1, 2, 3)]
            it += [lambda: (dma_setup_w(c), dma_w(c, 0))] + [lambda i=i: dma_w(c, i) for i in (1, 2)]
            it += [lambda: (dma_w(c, 3), kc_next())]
            return it
        a.I(f"s_lshl_b32 s51, s{sWAVE}, 12")
        for c in range(AH + 1):
            for it in dma_items(c): it()
            self.stamp()
        a.M(f"""
        s_lshr_b32 s{sWT}, s{sWAVE}, 1
        s_and_b32 s{sWF}, s{sWAVE}, 1
        v_and_b32 v2, 31, v1
        v_lshrrev_b32 v3, 5, v1
        v_bfe_u32 v4, v1, 1, 3
        v_xor_b32 v4, v4, v3
        v_lshlrev_b32 v4, 4, v4
        v_lshl_add_u32 v4, v2, 7, v4
        s_lshl_b32 s66, s{sWT}, 13
        s_lshl_b32 s67, s{sWF}, 12
        s_add_u32 s66, s66, s67
        v_add_u32 v{vRX}, s66, v4
        v_xor_b32 v{vRX+1}, 32, v{vRX}
        v_xor_b32 v{vRX+2}, 64, v{vRX}
        v_xor_b32 v{vRX+3}, 96, v{vRX}
        """)
        for k in range(4):
            a.I(f"v_xor_b32 v{vRX+4+k}, 4096, v{vRX+k}")
        a.M(f"""
        v_bfe_u32 v4, v1, 2, 2
        v_lshl_add_u32 v5, v3, 3, v4
        v_lshlrev_b32 v5, 8, v5
        s_lshl_b32 s66, s{sWF}, 1
        s_add_u32 s66, s66, s{sWT}
        v_xor_b32 v4, s66, v4
        v_lshl_add_u32 v5, v4, 6, v5
        v_bfe_u32 v4, v1, 4, 1
        v_lshl_add_u32 v5, v4, 5, v5
        v_and_b32 v4, 3, v1
        v_lshl_add_u32 v5, v4, 3, v5
        v_add_u32 v{vRW}, 65536, v5
        v_xor_b32 v{vRW+1}, 64, v{vRW}
        v_mov_b32 v{vONE}, 0x3f803f80
        """)
        for r in range(vSUM, vSUM + 6):
            a.I(f"v_mov_b32 v{r}, 0")

        def reads(g):
            c, ks = divmod(g, 4)
            b = g & 1
            so = (c % 4) * 16384
            it = []
            for u in range(2):
                it.append(lambda u=u: a.I(f"ds_read_b128 {vr(XF+8*b+4*u,4)}, v{vRX+4*u+ks} offset:{so}"))
            for u in range(2):
                for rd in range(2):
                    it.append(lambda u=u, rd=rd: a.I(f"ds_read_b64_tr_b16 {vr(WF+8*b+4*u+2*rd,2)}, v{vRW+u} offset:{so+ks*4096+rd*1024}"))
            return [it[0], it[2], it[3], it[1], it[4], it[5]]

        a.wait_vm(dma_last[0])
        a.I("s_barrier")
        self.stamp()
        for it in reads(0): it()
        pend = []
        for g in range(40):
            c, ks = divmod(g, 4)
            b = g & 1
            X = [XF + 8*b, XF + 8*b + 4]
            W = [WF + 8*b, WF + 8*b + 4]
            rd = reads(g + 1) if g + 1 < 40 else []
            dots = []
            for k in range(4):
                dots.append(f"v_dot2_f32_bf16 v{vSQ+(k&1)}, v{X[0]+k}, v{X[0]+k}, v{vSQ+(k&1)}")
                dots.append(f"v_dot2_f32_bf16 v{vSUM+(k&1)}, v{X[0]+k}, v{vONE}, v{vSUM+(k&1)}")
                dots.append(f"v_dot2_f32_bf16 v{vCS+(k&1)}, v{W[0]+k}, v{vONE}, v{vCS+(k&1)}")
            boundary = (ks == 3 and g + 1 < 40)
            if boundary:
                a.I("s_waitcnt lgkmcnt(0)")
            order = [(0, 0), (0, 1), (1, 0), (1, 1)]
            for n, (fu, tu) in enumerate(order):
                d = ACC + 16 * (2*fu + tu)
                cc = "0" if g == 0 else vr(d, 16)
                a.I(f"v_mfma_f32_32x32x16_bf16 {vr(d,16)}, {vr(W[fu],4)}, {vr(X[tu],4)}, {cc}")
                if n == 0 and boundary:
                    a.wait_vm(dma_last[c + 1])
                    a.I("s_barrier")
                    if self.fine: self.stamp()
                    if c + 2 + AH < 10 + 0 or c + 1 + AH < 10:
                        pass
                    if c + 2 + AH - 1 < 10 and (c + 1 + AH) < 10:
                        pend += dma_items(c + 1 + AH)
                take = {0: 2, 1: 2, 2: 2, 3: 0}[n]
                for it in rd[:take]: it()
                rd = rd[take:]
                if n in (1, 3) and pend:
                    pend.pop(0)()
                if n == 3:
                    for t in dots: a.I(t)
        assert not pend
        self.stamp()
        LST = 131072
        a.M(f"""
        v_add_f32 v{vSUM}, v{vSUM}, v{vSUM+1}
        v_add_f32 v{vSQ}, v{vSQ}, v{vSQ+1}
        v_add_f32 v{vCS}, v{vCS}, v{vCS+1}
        v_mov_b32 v{vSUM+1}, v{vSUM}
        v_mov_b32 v{vSQ+1}, v{vSQ}
        v_mov_b32 v{vCS+1}, v{vCS}
        v_permlane32_swap_b32 v{vSUM}, v{vSUM+1}
        v_permlane32_swap_b32 v{vSQ}, v{vSQ+1}
        v_permlane32_swap_b32 v{vCS}, v{vCS+1}
        v_add_f32 v{vSUM}, v{vSUM}, v{vSUM+1}
        v_add_f32 v{vSQ}, v{vSQ}, v{vSQ+1}
        v_add_f32 v{vCS}, v{vCS}, v{vCS+1}
        """)
        a.M(f"""
        v_and_b32 v2, 31, v1
        s_lshl_b32 s66, s{sWF}, 1
        s_add_u32 s66, s66, s{sWT}
        s_lshl_b32 s66, s66, 7
        s_add_u32 s66, s66, {LST+1024}
        v_lshl_add_u32 v3, v2, 2, s66
        ds_write_b32 v3, v{vCS}
        """)
        ST0, ST1 = 42, 44
        self.ln_stats(vSUM, vSQ, ST0, ST0 + 1, 4)
        a.M(f"""
        s_cmp_lt_u32 s{sCB}, 5
        s_cselect_b32 s66, {hex(f2u(QSCALE))}, 1.0
        v_mul_f32 v{ST0}, s66, v{ST0}
        v_mul_f32 v{ST0+1}, -v{ST0}, v{ST0+1}
        s_lshl_b32 s66, s{sWAVE}, 8
        s_add_u32 s66, s66, {LST}
        v_lshl_add_u32 v3, v2, 3, s66
        ds_write_b64 v3, v[{ST0}:{ST0+1}]
        v_xor_b32 v3, 256, v3
        v_lshrrev_b32 v4, 5, v1
        s_lshl_b32 s66, s{sWF}, 1
        s_add_u32 s66, s66, s{sWT}
        s_lshl_b32 s66, s66, 7
        s_add_u32 s66, s66, {LST+1024}
        v_lshl_add_u32 v5, v4, 4, s66
        v_xor_b32 v6, 128, v5
        s_waitcnt lgkmcnt(0)
        s_barrier
        ds_read_b64 v[{ST1}:{ST1+1}], v3
        """)
        CS = 128
        for fu in range(2):
            for g in range(4):
                a.I(f"ds_read_b128 {vr(CS+16*fu+4*g,4)}, v{5+fu} offset:{32*g}")
        a.M(f"""
        v_lshlrev_b32 v7, 4, v2
        v_lshl_add_u32 v7, v4, 10, v7
        s_lshl_b32 s66, s{sRB}, 1
        s_add_u32 s66, s66, s{sWT}
        s_mul_i32 s66, s66, 240
        s_lshl_b32 s67, s{sCB}, 4
        s_add_u32 s66, s66, s67
        s_lshl_b32 s67, s{sWF}, 3
        s_add_u32 s66, s66, s67
        s_lshl_b32 s66, s66, 10
        s_lshl_b32 s67, s{sWT}, 12
        s_add_u32 s66, s66, s67
        s_lshl_b32 s67, s{sWF}, 9
        s_add_u32 s52, s66, s67
        s_xor_b32 s53, s52, 512
        s_xor_b32 s54, s52, 4096
        s_xor_b32 s55, s53, 4096
        """)
        T = 160
        P = 176
        for n, (fu, tu) in enumerate([(0, 0), (1, 0), (0, 1), (1, 1)]):
            d = ACC + 16 * (2*fu + tu)
            st = ST0 if tu == 0 else ST1
            p = P + 8 * n
            for k in range(8):
                a.I(f"v_pk_mul_f32 {vr(T+2*k,2)}, {vr(CS+16*fu+2*k,2)}, {vr(st,2)} op_sel:[0,1] op_sel_hi:[1,1]")
            for k in range(8):
                a.I(f"v_pk_fma_f32 {vr(d+2*k,2)}, {vr(d+2*k,2)}, {vr(st,2)}, {vr(T+2*k,2)} op_sel:[0,0,0] op_sel_hi:[1,0,1]")
            for k in range(8):
                a.I(f"v_cvt_pk_bf16_f32 v{p+k}, v{d+2*k}, v{d+2*k+1}")
            for pr in range(2):
                a.I(f"v_permlane32_swap_b32 v{p+4*pr}, v{p+4*pr+2}")
                a.I(f"v_permlane32_swap_b32 v{p+4*pr+1}, v{p+4*pr+3}")
            for pr in range(2):
                a.I(f"buffer_store_dwordx4 {vr(p+4*pr,4)}, v7, {srd(sWS)}, s{52+2*fu+tu} offen offset:{2048*pr} sc1")
        self.stamp()
        self.get_nonce(2)
        a.I("s_barrier")
        sk = self.lab("sg")
        a.M(f"""
        s_cmp_lg_u32 s{sWAVE}, 0
        s_cbranch_scc1 L_p1_done
        s_lshl_b32 s66, s{sCB}, 4
        s_add_u32 s66, s66, s{sRB}
        s_lshl_b32 s66, s66, 7
        s_add_u32 s66, s66, {F1_OFF}
        """)
        self.signal(66, 2)
        a.I("s_branch L_p1_done")
        a.vm = []
        a.label(skip)
        a.fence(False)
        if self.stamps:
            for k in range(2, self.nstamp):
                a.I(f"s_mov_b32 s{71+k}, s70")
        from gen2 import colsum_w1
        colsum_w1(self)
        a.label("L_p1_done")
        a.fence(False)
        a.vm = [(-1, set(), None)]

    def build(self):
        a = self.a
        self.prologue()
        self.phase1()
        self.stamp()
        if self.stop >= 2:
            from gen2 import phase2, phase3, phase4, phase5
            phase2(self)
            if self.stop >= 3: phase3(self)
            if self.stop >= 4: phase4(self)
            if self.stop >= 5: phase5(self)
        self.dump_stamps()
        a.drain()
        a.label("L_end")
        a.I("s_endpgm")
        if self.stop >= 2:
            from gen2 import slow_path
            slow_path(self)
        head = open(f"cdna_kernels/{NAME}.s.ref").read().split("; Override launch")[0]
        out = head + f"""; @launch grid=(256,1,1) block=(256,1,1) lds=163840
.amdgcn_target "amdgcn-amd-amdhsa--gfx950"
.text
.globl {KNAME}
.p2align 8
.type {KNAME},@function
{KNAME}:
""" + a.text() + f""".section .rodata,"a"
.p2align 6
.amdhsa_kernel {KNAME}
  .amdhsa_next_free_vgpr 512
  .amdhsa_next_free_sgpr 102
  .amdhsa_accum_offset 256
  .amdhsa_group_segment_fixed_size 0
  .amdhsa_kernarg_size 72
  .amdhsa_user_sgpr_count 2
  .amdhsa_user_sgpr_kernarg_segment_ptr 1
  .amdhsa_system_sgpr_workgroup_id_x 1
.end_amdhsa_kernel
"""
        return out

if __name__ == "__main__":
    import argparse
    ap = argparse.ArgumentParser()
    ap.add_argument("-o", default="out.s")
    ap.add_argument("--stop", type=int, default=99)
    ap.add_argument("--stamps", action="store_true")
    ap.add_argument("--ahead", type=int, default=2)
    ap.add_argument("--probe", default=None)
    ap.add_argument("--opt", default="")
    args = ap.parse_args()
    kw = {k: int(v) for k, v in (x.split('=') for x in args.opt.split(',') if x)}
    g = Gen(stop=args.stop, stamps=args.stamps or args.probe is not None, p1_ahead=args.ahead, probe=tuple(map(int, args.probe.split(':'))) if args.probe else None, **kw)
    s = g.build()
    open(args.o, "w").write(s)
    print(f"stamps {g.nstamp} instrs {g.a.nins} nops {g.a.nnop} autowaits {g.a.nwait} bytes {len(s)}")
```

```python
from asmlib import vr
from gen import *

SLOT = 14336
NSLOT = 5
RING = 163840 - NSLOT * SLOT
RED = 163840 - 61440
FC_OFF = F1_OFF + 960 * 128

sH, sQB, sPAR, sB3, sBLK = 43, 45, 48, 49, 50
sCB3, sRB64 = 51, 52
sW1S = 53
sKVS = 54
sQS = 55
sT0, sT1 = 56, 57
sKVD = 58
sW2S, sWOS = 59, 60
vXR = 160
sOWN = 6
vH = 222

def w2reg(step, f):
    q = (step * 5 + f) * 4
    return ("a", q) if q < 256 else ("v", 232 + q - 256)

def worege(st, f):
    return 172 + 20*st + 4*f if st < 3 else 52 + 20*(st-3) + 4*f

def repack_setup(g):
    a = g.a
    sR = 96
    a.M(f"""
    s_mul_i32 s83, s2, 3
    s_add_u32 s83, s83, s{sWAVE}
    s_cmp_eq_u32 s{sWAVE}, 3
    s_cselect_b32 s83, 1023, s83
    s_lshl_b32 s88, s83, 7
    s_add_u32 s88, s88, {FR_OFF}
    s_mov_b32 s85, {W2F_OFF}
    s_movk_i32 s86, 1280
    s_movk_i32 s87, 13108
    s_cmp_lt_u32 s83, 270
    s_cselect_b64 s[{sR}:{sR+1}], s[{sW2}:{sW2+1}], s[{sWO}:{sWO+1}]
    s_cselect_b32 s{sR+2}, s{sW2+2}, s{sWO+2}
    s_cselect_b32 s84, 0, 270
    s_cselect_b32 s85, s85, {WOF_OFF}
    s_cmp_lt_u32 s83, 370
    s_cselect_b64 s[{sR}:{sR+1}], s[{sR}:{sR+1}], s[{sW1}:{sW1+1}]
    s_cselect_b32 s{sR+2}, s{sR+2}, {640*3456}
    s_cselect_b32 s84, s84, 370
    s_cselect_b32 s85, s85, {W1F_OFF}
    s_cselect_b32 s86, s86, 3456
    s_cselect_b32 s87, s87, 4682
    s_cselect_b32 s89, 5, 14
    s_mov_b32 s{sR+3}, 0x20000
    s_sub_u32 s84, s83, s84
    s_lshl_b32 s90, s84, 13
    s_add_u32 s85, s85, s90
    s_mul_i32 s87, s87, s84
    s_lshr_b32 s87, s87, 16
    s_mul_i32 s89, s89, s87
    s_sub_u32 s84, s84, s89
    s_mul_i32 s87, s87, s86
    s_lshl_b32 s87, s87, 5
    s_lshl_b32 s84, s84, 8
    s_add_u32 s87, s87, s84
    s_cmp_ge_u32 s83, 650
    s_cselect_b32 s{sR+2}, 0, s{sR+2}
    s_cselect_b32 s100, 0x7f000000, s85
    s_cselect_b32 s101, 0x7f000000, s88
    s_lshl_b32 s89, s86, 2
    s_sub_u32 s89, s89, 1024
    s_lshl_b32 s83, s{sWAVE}, 13
    s_add_u32 s83, s83, 131072
    v_lshrrev_b32 v2, 4, v1
    v_mul_u32_u24 v3, s86, v2
    v_and_b32 v4, 15, v1
    v_lshlrev_b32 v5, 1, v2
    v_xor_b32 v4, v4, v5
    v_lshlrev_b32 v4, 4, v4
    v_add_u32 v56, v3, v4
    v_xor_b32 v4, 128, v4
    v_add_u32 v57, v3, v4
    v_bfe_u32 v3, v1, 2, 2
    v_lshl_add_u32 v4, v2, 3, v3
    v_lshlrev_b32 v4, 8, v4
    v_bfe_u32 v5, v1, 2, 3
    v_lshl_add_u32 v4, v5, 5, v4
    v_and_b32 v5, 3, v1
    v_lshl_add_u32 v4, v5, 3, v4
    v_add_u32 v58, s83, v4
    """)
    last = [None]
    def dma(i):
        if i % 4 == 0:
            a.I(f"s_add_u32 m0, s83, {1024*i}")
        if i == 4: a.I("s_add_u32 s87, s87, 4096")
        if i > 0: a.I("s_add_u32 s87, s87, s89")
        last[0] = a.I(f"buffer_load_dwordx4 v{56+((i>>1)&1)}, {srd(sR)}, s87 offen offset:{1024*(i%4)} lds")
    RP = 208
    def rd(t):
        a.I(f"v_xor_b32 v60, {32*t}, v58")
        for r in range(2):
            a.I(f"ds_read_b64_tr_b16 {vr(RP+4*t+2*r,2)}, v60 offset:{1024*r}")
    def st(t):
        if t == 4: a.I("s_add_u32 s100, s100, 4096")
        a.I(f"buffer_store_dwordx4 {vr(RP+4*t,4)}, v16, {srd(sWS)}, s100 offen offset:{1024*(t%4)} sc1")
    return ([lambda i=i: dma(i) for i in range(8)], lambda: a.wait_vm(last[0]),
            [lambda t=t: rd(t) for t in range(8)], [lambda t=t: st(t) for t in range(8)])

def w1f_dma(g, sub, vlin):
    a = g.a
    def p(k):
        a.I(f"s_add_u32 m0, s7, {sub*4*7168 + 4096*k}")
        a.I(f"s_add_u32 s{sT1}, s{sW1S}, {sub*4*112*1024 + 4096*k}")
    def f(i):
        return a.I(f"buffer_load_dwordx4 v{vlin}, {srd(sWS)}, s{sT1} offen offset:{1024*(i%4)} sc1 lds")
    return [(lambda: p(0), lambda: (f(0), f(1))), (None, lambda: (f(2), f(3))), (lambda: p(1), lambda: (f(4), f(5))), (None, lambda: f(6))]

def wb_l2(g):
    a = g.a
    sk = g.lab("wb")
    a.I(f"s_or_b32 s66, s{sJ}, s{sWAVE}")
    a.I(f"s_cbranch_scc1 {sk}")
    a.raw("    buffer_wbl2 sc1")
    a.label(sk)

def run(items):
    for pre, fn in items:
        if pre: pre()
        fn()

def tr_addr(g, vd, stride):
    a = g.a
    a.M(f"""
    v_bfe_u32 v2, v1, 2, 3
    v_lshrrev_b32 v3, 5, v1
    v_lshl_add_u32 v2, v3, 4, v2
    v_mul_u32_u24 v2, {stride}, v2
    v_and_b32 v3, 3, v1
    v_lshl_add_u32 v{vd}, v3, 3, v2
    """)

def w1_addrs(g, vbase, scb):
    a = g.a
    a.I(f"s_mul_i32 s66, s{scb}, 224")
    for i in range(7):
        a.M(f"""
        v_add_u32 v2, {64*i}, v1
        v_mul_u32_u24 v3, 4682, v2
        v_lshrrev_b32 v3, 16, v3
        v_mul_u32_u24 v4, 14, v3
        v_sub_u32 v4, v2, v4
        v_and_b32 v5, 0x13, v3
        v_bfe_u32 v6, v3, 2, 1
        v_lshl_add_u32 v5, v6, 3, v5
        v_bfe_u32 v6, v3, 3, 1
        v_lshl_add_u32 v5, v6, 2, v5
        v_mul_u32_u24 v5, 3456, v5
        v_lshl_add_u32 v5, v4, 4, v5
        v_add_u32 v{vbase+i}, s66, v5
        """)
        if i % 4:
            a.I(f"v_subrev_u32 v{vbase+i}, {1024*(i%4)}, v{vbase+i}")

def w1_dma(g, vbase, sub):
    a = g.a
    a.M(f"""
    s_add_u32 s66, s{sWAVE}, {4*sub}
    s_mul_i32 s67, s66, {32*3456}
    s_mul_i32 s66, s66, 7168
    s_mov_b32 m0, s66
    """)
    last = None
    for i in range(7):
        if i == 4:
            a.I("s_add_u32 m0, s66, 4096")
        last = a.I(f"buffer_load_dwordx4 v{vbase+i}, {srd(sW1)}, s67 offen offset:{1024*(i%4)} lds")
    return last

def colsum_w1_issue(g):
    a = g.a
    a.M(f"""
    s_sub_u32 s43, s{sJ}, 30
    s_lshl_b32 s43, s43, 3
    s_add_u32 s43, s43, s{sXCD}
    """)
    w1_addrs(g, 200, 43)

def colsum_w1(g):
    a = g.a
    a.I("s_mov_b32 s45, s43")
    tr_addr(g, 24, 224)
    a.M(f"""
    s_mul_i32 s66, s{sWAVE}, 7168
    v_add_u32 v24, s66, v24
    v_add_u32 v25, {2*28672}, v24
    v_add_u32 v26, {4*28672}, v24
    v_mov_b32 v28, 0x3f803f80
    v_mov_b32 v29, 0x3f803f80
    v_mov_b32 v30, 0x3f803f80
    v_mov_b32 v31, 0x3f803f80
    """)
    for sub in range(5):
        a.wait_vm(g.cs_ids[sub])
        for f in range(7):
            for rd in range(2):
                a.I(f"ds_read_b64_tr_b16 {vr(64+4*f+2*rd,2)}, v{24+sub//2} offset:{(sub%2)*28672+rd*1792+f*32}")
        for f in range(7):
            cc = "0" if sub == 0 else vr(32+4*f, 4)
            a.I(f"v_mfma_f32_16x16x32_bf16 {vr(32+4*f,4)}, {vr(64+4*f,4)}, v[28:31], {cc}")
    a.M(f"""
    s_barrier
    s_mul_i32 s66, s{sWAVE}, 7168
    v_lshl_add_u32 v24, v1, 4, s66
    v_lshlrev_b32 v25, 4, v1
    """)
    for f in range(7):
        a.I(f"ds_write_b128 v24, {vr(32+4*f,4)} offset:{1024*f}")
    a.I("s_waitcnt lgkmcnt(0)")
    a.I("s_barrier")
    for w in range(4):
        for f in range(7):
            a.I(f"ds_read_b128 {vr(64+28*w+4*f,4)}, v25 offset:{7168*w+1024*f}")
    for r in range(28):
        a.I(f"v_add_f32 v{64+r}, v{64+r}, v{92+r}")
        a.I(f"v_add_f32 v{120+r}, v{120+r}, v{148+r}")
        a.I(f"v_add_f32 v{64+r}, v{64+r}, v{120+r}")
    a.M(f"""
    v_lshrrev_b32 v24, 4, v1
    v_lshlrev_b32 v24, 4, v24
    s_lshl_b32 s66, s45, 9
    s_add_u32 s66, s66, {CS_OFF}
    s_mov_b32 exec_lo, 0x00010001
    s_mov_b32 exec_hi, 0x00010001
    """)
    for f in range(7):
        a.I(f"buffer_store_dwordx4 {vr(64+4*f,4)}, v24, {srd(sWS)}, s66 offen offset:{64*f} sc1")
    a.I("s_mov_b64 exec, -1")
    a.M(f"""
    s_lshl_b32 s4, s45, 7
    s_add_u32 s4, s4, {FC_OFF}
    """)

def ln1_stats(g):
    a = g.a
    colsum_w1_issue(g)
    a.M(f"""
    s_lshl_b32 s45, s{sXCD}, 1
    s_add_u32 s45, s45, s{sJ}
    s_sub_u32 s45, s45, 30
    s_lshl_b32 s66, s45, 2
    s_add_u32 s66, s66, s{sWAVE}
    s_lshl_b32 s66, s66, 5
    v_lshrrev_b32 v2, 4, v1
    v_add_u32 v6, s66, v2
    v_mul_u32_u24 v3, 1280, v6
    v_and_b32 v4, 15, v1
    v_lshl_add_u32 v3, v4, 4, v3
    v_mov_b32 v5, 0x3f803f80
    """)
    B = 32
    for rgp in range(8):
        a.I(f"s_mov_b32 s67, {rgp*4*1280}")
        for c in range(5):
            a.I(f"buffer_load_dwordx4 {vr(B+20*rgp+4*c,4)}, v3, {srd(sX)}, s67 offen offset:{256*c}")
    a.I(f"v_mov_b32 v9, 0")
    a.I(f"buffer_load_dword v10, v9, {srd(sDBG)}, 0 offen sc1")
    SM, SQ = 12, 20
    for rgp in range(8):
        for k in range(20):
            r = B + 20*rgp + k
            cs = "0" if k == 0 else f"v{SM+rgp}"
            cq = "0" if k == 0 else f"v{SQ+rgp}"
            a.I(f"v_dot2_f32_bf16 v{SM+rgp}, v{r}, v5, {cs}")
            a.I(f"v_dot2_f32_bf16 v{SQ+rgp}, v{r}, v{r}, {cq}")
        if rgp == 3: g.cs_ids = [w1_dma(g, 200, 0)]
        if rgp == 7: g.cs_ids.append(w1_dma(g, 200, 1))
    for sh in (8, 4, 2, 1):
        for r in range(SM, SM + 16):
            a.I(f"v_add_f32_dpp v{r}, v{r}, v{r} row_ror:{sh} row_mask:0xf bank_mask:0xf")
    for rgp in range(1, 8):
        a.I(f"v_cmp_eq_u32 vcc, {rgp}, v4")
        a.I(f"v_cndmask_b32 v{SM}, v{SM}, v{SM+rgp}, vcc")
        a.I(f"v_cndmask_b32 v{SQ}, v{SQ}, v{SQ+rgp}, vcc")
    g.ln_stats(SM, SQ, 28, 29, 2)
    lp, ok = g.lab("nz"), g.lab("nzo")
    a.I("s_mov_b32 s44, 0")
    a.I("v_mov_b32 v11, v10")
    a.fence()
    keep = list(a.vm)
    a.label(lp)
    a.M(f"""
    v_readfirstlane_b32 s{sNONCE}, v10
    s_add_u32 s44, s44, 1
    s_cmp_gt_u32 s44, {SPIN_MAX}
    s_cbranch_scc1 {ok}
    s_cmp_lg_u32 s{sNONCE}, 0
    s_cbranch_scc1 {ok}
    buffer_load_dword v10, v9, {srd(sDBG)}, 0 offen sc1
    s_waitcnt vmcnt(0)
    s_branch {lp}
    """)
    a.label(ok)
    a.fence(False)
    a.vm = keep
    a.M(f"""
    v_mov_b32 v30, s{sNONCE}
    v_mov_b32 v31, s{sNONCE}
    v_lshl_add_u32 v6, v4, 2, v6
    v_lshlrev_b32 v6, 4, v6
    s_mov_b32 s66, {S1_OFF}
    s_mov_b32 exec_lo, 0x00ff00ff
    s_mov_b32 exec_hi, 0x00ff00ff
    buffer_store_dwordx4 v[28:31], v6, {srd(sWS)}, s66 offen sc1
    s_mov_b64 exec, -1
    """)
    g.xg_publish(2)
    for sub in range(2, 5):
        g.cs_ids.append(w1_dma(g, 200, sub))

vKV, vK0, vK1, vV, vQ0 = 16, 24, 25, 26, 28
def phase2_setup(g):
    a = g.a
    a.M(f"""
    s_lshr_b32 s66, s{sJ}, 3
    s_lshl_b32 s{sRB64}, s{sXCD}, 2
    s_add_u32 s{sRB64}, s{sRB64}, s66
    s_mov_b32 s{sH}, s{sJ}
    s_and_b32 s{sCB3}, s{sJ}, 7
    s_mov_b32 s{sQB}, s{sXCD}
    s_and_b32 s{sPAR}, s{sH}, 1
    s_lshr_b32 s66, s{sH}, 1
    s_mul_i32 s66, s66, 5
    s_lshl_b32 s67, s{sPAR}, 1
    s_add_u32 s{sB3}, s66, s67
    s_lshl_b32 s{sBLK}, s{sQB}, 2
    s_add_u32 s{sBLK}, s{sBLK}, s{sWAVE}
    s_lshr_b32 s61, s{sWAVE}, 1
    s_and_b32 s62, s{sWAVE}, 1
    """)
    a.M(f"""
    s_lshr_b32 s66, s{sB3}, 3
    s_add_u32 s67, s{sB3}, 2
    s_lshr_b32 s67, s67, 3
    s_sub_u32 s67, s67, s66
    v_bfe_u32 v2, v1, 4, 1
    v_mul_u32_u24 v2, s67, v2
    v_add_u32 v2, s66, v2
    s_mul_i32 s63, s61, 10
    s_add_u32 s63, s63, 10
    v_add_u32 v3, s63, v2
    v_and_b32 v4, 15, v1
    v_lshl_add_u32 v4, v4, 1, s62
    v_lshl_add_u32 v5, v3, 5, v4
    v_lshlrev_b32 v5, 7, v5
    v_add_u32 v19, {F0_OFF}, v5
    v_and_b32 v4, 3, v4
    s_lshl_b32 s63, s{sQB}, 2
    v_add_u32 v4, s63, v4
    v_lshl_add_u32 v3, v3, 5, v4
    v_lshl_add_u32 v2, v2, 5, s{sBLK}
    v_cmp_gt_u32 vcc, 32, v1
    v_cndmask_b32 v2, v2, v3, vcc
    v_lshlrev_b32 v2, 7, v2
    v_add_u32 v30, {F1_OFF}, v2
    """)
    a.M(f"""
    s_lshl_b32 s66, s61, 2
    v_lshlrev_b32 v{vKV}, 4, v1
    v_xor_b32 v2, s66, v1
    v_lshlrev_b32 v{vKV+1}, 4, v2
    s_lshl_b32 s66, s61, 3
    v_xor_b32 v2, s66, v1
    v_lshlrev_b32 v{vKV+2}, 4, v2
    s_mul_i32 s66, s61, 80
    s_add_u32 s66, s66, 80
    s_add_u32 s66, s66, s{sB3}
    s_lshl_b32 s67, s62, 8
    s_add_u32 s66, s66, s67
    s_lshl_b32 s67, s{sQB}, 10
    s_add_u32 s66, s66, s67
    s_lshl_b32 s{sKVS}, s66, 10
    s_mul_i32 s{sKVD}, s62, 7168
    s_mul_i32 s66, s61, 3072
    s_add_u32 s{sKVD}, s{sKVD}, s66
    s_add_u32 s{sKVD}, s{sKVD}, {RING}
    """)
    a.M(f"""
    v_and_b32 v2, 31, v1
    v_lshrrev_b32 v3, 5, v1
    v_lshlrev_b32 v2, 4, v2
    v_add_u32 v4, s{sPAR}, v3
    v_lshl_add_u32 v{vQ0}, v4, 10, v2
    v_add_u32 v{vK0}, {RING}, v{vQ0}
    s_cmp_eq_u32 s{sPAR}, 0
    s_cselect_b32 s63, 2048, 0
    v_add_u32 v31, s63, v2
    v_add_u32 v4, 6144, v2
    v_cndmask_b32 v{vK1}, v4, v31, vcc
    v_add_u32 v{vK1}, {RING}, v{vK1}
    """)
    a.M(f"""
    v_bfe_u32 v4, v1, 4, 1
    v_and_b32 v5, 3, v1
    v_lshl_add_u32 v4, v4, 2, v5
    v_lshrrev_b32 v5, 1, v4
    v_add_u32 v6, s{sPAR}, v5
    s_lshr_b32 s63, s63, 10
    v_mov_b32 v7, s63
    v_cmp_eq_u32 vcc, 2, v5
    v_cndmask_b32 v6, v6, v7, vcc
    v_and_b32 v8, 1, v4
    v_xor_b32 v9, s{sPAR}, v8
    v_cndmask_b32 v8, v8, v9, vcc
    v_cmp_eq_u32 vcc, 3, v5
    v_cndmask_b32 v6, v6, v5, vcc
    v_bfe_u32 v9, v1, 2, 2
    v_lshl_add_u32 v9, v3, 2, v9
    v_lshlrev_b32 v10, 2, v6
    v_xor_b32 v9, v9, v10
    v_lshlrev_b32 v9, 4, v9
    v_lshl_add_u32 v9, v6, 10, v9
    v_lshl_add_u32 v9, v8, 3, v9
    v_add_u32 v{vV}, {RING+3072}, v9
    v_xor_b32 v{vV+1}, 128, v{vV}
    """)
    a.M(f"""
    s_mul_i32 s66, s{sCB3}, 5
    s_mul_i32 s67, s{sWAVE}, {14*40}
    s_add_u32 s67, s67, s66
    s_lshl_b32 s67, s67, 10
    s_add_u32 s{sW2S}, s67, {W2F_OFF}
    s_mul_i32 s67, s{sWAVE}, {5*40}
    s_add_u32 s67, s67, s66
    s_lshl_b32 s67, s67, 10
    s_add_u32 s{sWOS}, s67, {WOF_OFF}
    s_and_b32 s5, s{sJ}, 15
    s_mul_i32 s63, s5, 7
    s_mul_i32 s67, s{sWAVE}, 112
    s_add_u32 s67, s67, s63
    s_lshl_b32 s67, s67, 10
    s_add_u32 s{sW1S}, s67, {W1F_OFF}
    s_mul_i32 s7, s{sWAVE}, 7168
    v_and_b32 v2, 1, v1
    v_lshrrev_b32 v3, 1, v1
    v_lshl_add_u32 v4, v2, 2, s66
    v_lshrrev_b32 v4, 3, v4
    v_mul_u32_u24 v5, 6, v2
    v_add_u32 v5, s63, v5
    v_lshrrev_b32 v5, 3, v5
    s_mul_i32 s67, s{sWAVE}, 14
    v_add_u32 v6, s67, v3
    v_min_u32 v6, 53, v6
    v_mad_u32_u24 v6, v6, 5, v4
    s_mul_i32 s67, s{sWAVE}, 5
    s_add_u32 s67, s67, {54-14}
    v_add_u32 v7, s67, v3
    v_mad_u32_u24 v7, v7, 5, v4
    v_cmp_le_u32 vcc, 14, v3
    v_cndmask_b32 v6, v6, v7, vcc
    v_subrev_u32 v7, 19, v3
    v_min_u32 v7, 4, v7
    v_lshl_add_u32 v7, v7, 2, s{sWAVE}
    v_mad_u32_u24 v7, v7, 14, v5
    v_add_u32 v7, 370, v7
    v_cmp_le_u32 vcc, 19, v3
    v_cndmask_b32 v6, v6, v7, vcc
    v_lshlrev_b32 v6, 7, v6
    v_add_u32 v29, {FR_OFF}, v6
    s_add_u32 s{sOWN}, s{sWAVE}, s{sCB3}
    s_and_b32 s{sOWN}, s{sOWN}, 3
    s_add_u32 s67, s{sOWN}, 1
    s_and_b32 s67, s67, 3
    s_lshl_b32 s66, s{sRB64}, 2
    s_add_u32 s66, s66, s67
    s_lshl_b32 s66, s66, 4
    v_and_b32 v2, 15, v1
    v_add_u32 v2, s66, v2
    v_mul_u32_u24 v2, 1280, v2
    v_lshrrev_b32 v3, 4, v1
    v_lshl_add_u32 v2, v3, 3, v2
    s_mul_i32 s66, s{sCB3}, 160
    v_add_u32 v14, s66, v2
    """)
    g.xg_addr(20)
    a.M(f"""
    s_lshl_b32 s66, s{sJ}, 2
    s_add_u32 s66, s66, s{sWAVE}
    s_lshl_b32 s67, s{sXCD}, 7
    s_add_u32 s66, s66, s67
    s_mul_i32 s67, s66, {54*128}
    s_add_u32 s67, s67, {H1_OFF}
    v_min_u32 v2, 53, v1
    v_lshl_add_u32 v22, v2, 7, s67
    s_mul_i32 s67, s66, {20*128}
    s_add_u32 s67, s67, {O_OFF}
    v_lshl_add_u32 v23, v1, 7, s67
    v_add_u32 v2, {H_OFF - O_OFF - 20*128}, v23
    v_cmp_le_u32 vcc, 20, v1
    v_cndmask_b32 v23, v23, v2, vcc
    s_lshl_b32 s67, s66, 7
    s_add_u32 s67, s67, {ST_OFF}
    v_mov_b32 v2, s67
    v_cmp_le_u32 vcc, 40, v1
    v_cndmask_b32 v23, v23, v2, vcc
    """)
    a.M(f"""
    s_lshl_b32 s66, s5, 7
    s_add_u32 s66, s66, {FC_OFF}
    v_mov_b32 v3, s66
    v_cmp_eq_u32 vcc, 63, v1
    v_cndmask_b32 v29, v29, v3, vcc
    s_lshl_b32 s66, s{sWAVE}, 8
    s_add_u32 s66, s66, {RING+6144}
    v_lshl_add_u32 v21, v1, 2, s66
    s_lshl_b32 s{sQS}, s{sBLK}, 8
    s_add_u32 s{sQS}, s{sQS}, s{sB3}
    s_lshl_b32 s{sQS}, s{sQS}, 10
    s_add_u32 s{sQS}, s{sQS}, {QKL_OFF}
    """)

def phase2(g):
    a = g.a
    Q, KB, VB, P, S, O = 32, 48, 64, 80, 96, 128
    a.M(f"""
    s_barrier
    v_mov_b32 v4, 0x3f803f80
    """)
    for k in range(2 * NSLOT):
        a.I(f"ds_write_b32 v21, v4 offset:{k*7168}")

    def wfrag(kind, st):
        base = sW2S if kind == "w2" else sWOS
        def p(k): a.I(f"s_add_u32 s{sT1}, s{base}, {st*40*1024 + 4096*k}")
        def f(i):
            fl, r = w2reg(st, i) if kind == "w2" else ("v", worege(st, i))
            a.I(f"buffer_load_dwordx4 {vr(r,4,fl)}, v{vKV}, {srd(sWS)}, s{sT1} offen offset:{1024*(i%4)} sc1")
        return [(lambda: p(0), lambda: (f(0), f(1))), (None, lambda: (f(2), f(3))), (lambda: p(1), lambda: f(4))]
    g.wfrag = wfrag
    wq = [wfrag("w2", st) for st in range(14)] + [wfrag("wo", st) for st in range(3)] + [w1f_dma(g, sub, vKV) for sub in range(3)]
    g.poll([30], 2)
    g.stamp()

    kv_last = {}
    def kv_dma(c):
        def p0():
            a.I(f"s_add_u32 m0, s{sKVD}, {(c % NSLOT) * SLOT}")
            a.I(f"s_xor_b32 s{sT0}, s{sKVS}, {(c << 19) + (QKL_OFF if c < 2 else 0)}")
        def f(i):
            kv_last[c] = a.I(f"buffer_load_dwordx4 v{vKV+i}, {srd(sWS)}, s{sT0} offen offset:{1024*i} sc1 lds")
        return [(p0, lambda: (f(0), f(1))), (None, lambda: f(2))]
    run(kv_dma(0))
    for t in range(2):
        a.I(f"buffer_load_dwordx4 {vr(Q+8*t,4)}, v{vQ0}, {srd(sWS)}, s{sQS} offen offset:{512*t} sc1")
        a.I(f"buffer_load_dwordx4 {vr(Q+8*t+4,4)}, v31, {srd(sWS)}, s{sQS} offen offset:{512*t} sc1")
    run(kv_dma(1))
    for x in g.g_store: gst = a.I(x)
    a.M(f"""
    s_cmp_eq_u32 s{sPAR}, 0
    s_cselect_b32 s62, -1, 0
    s_cselect_b32 s64, 0, -1
    s_mov_b32 s63, 0
    s_mov_b32 s65, 0
    """)
    for t in range(2):
        for k in range(4):
            m = "s[62:63]" if k < 2 else "s[64:65]"
            a.I(f"v_cndmask_b32 v{Q+8*t+4+k}, 0, v{Q+8*t+4+k}, {m}")
    a.wait_vm(kv_last[0])
    a.I("s_waitcnt lgkmcnt(0)")
    a.I("s_barrier")

    def koff(i):
        c, t = divmod(i, 4)
        return (c % NSLOT) * SLOT + (t >> 1) * 7168 + (t & 1) * 512
    def kread(i):
        b = KB + 8 * (i & 1)
        return [lambda: a.I(f"ds_read_b128 {vr(b,4)}, v{vK0} offset:{koff(i)}"),
                lambda: a.I(f"ds_read_b128 {vr(b+4,4)}, v{vK1} offset:{koff(i)}")]
    def vread(i):
        b = VB + 8 * (i & 1)
        return [lambda j=j, rd=rd: a.I(f"ds_read_b64_tr_b16 {vr(b+4*j+2*rd,2)}, v{vV+rd} offset:{koff(i)+256*j}")
                for j in range(2) for rd in range(2)]
    def qk(t, i):
        b = KB + 8 * (i & 1); s = S + 16 * t; q = Q + 8 * t
        return [f"v_mfma_f32_32x32x16_bf16 {vr(s,16)}, {vr(b,4)}, {vr(q,4)}, 0",
                f"v_mfma_f32_32x32x16_bf16 {vr(s,16)}, {vr(b+4,4)}, {vr(q+4,4)}, {vr(s,16)}"]
    def pv(t, i):
        b = VB + 8 * (i & 1); o = O + 16 * t; p = P + 8 * t
        c0 = "0" if i == 0 else vr(o, 16)
        return [f"v_mfma_f32_32x32x16_bf16 {vr(o,16)}, {vr(b,4)}, {vr(p,4)}, {c0}",
                f"v_mfma_f32_32x32x16_bf16 {vr(o,16)}, {vr(b+4,4)}, {vr(p+4,4)}, {vr(o,16)}"]

    for it in kread(0) + kread(1) + vread(0): it()
    for t in range(2):
        for m in qk(t, 0): a.I(m)
    a.I("s_mov_b32 s62, 0")
    a.I("s_mov_b32 s63, -1")
    for t in range(2):
        s = S + 16 * t
        a.I(f"v_max3_f32 v{2+t}, v{s}, v{s+1}, v{s+2}")
        for k in range(3, 15, 2):
            a.I(f"v_max3_f32 v{2+t}, v{2+t}, v{s+k}, v{s+k+1}")
        a.I(f"v_max_f32 v{2+t}, v{2+t}, v{s+15}")
        a.I(f"v_mov_b32 v{4+t}, v{2+t}")
        a.I(f"v_permlane32_swap_b32 v{2+t}, v{4+t}")
        a.I(f"v_max_f32 v{2+t}, v{2+t}, v{4+t}")
        a.I(f"v_cvt_pk_bf16_f32 v{2+t}, -v{2+t}, 0")
        a.I(f"v_cndmask_b32 v{Q+8*t+4}, v{Q+8*t+4}, v{2+t}, s[62:63]")
        if t == 0:
            for m in qk(0, 0): a.I(m)

    lastfill = [None]
    extra = []
    def half(t, mf, fill):
        s = S + 16 * t; p = P + 8 * t
        mf = list(mf); fill = list(fill)
        for q in range(4):
            item = extra.pop(0) if extra else None
            if item and item[0]: item[0]()
            if mf:
                a.I(mf.pop(0))
            if item: item[1]()
            if fill: lastfill[0] = fill.pop(0)()
            for k in range(4):
                a.I(f"v_exp_f32 v{s+4*q+k}, v{s+4*q+k}")
            if q > 0:
                for k in range(2):
                    a.I(f"v_cvt_pk_bf16_f32 v{p+2*(q-1)+k}, v{s+4*(q-1)+2*k}, v{s+4*(q-1)+2*k+1}")
        assert not fill and not mf
        for k in range(2):
            a.I(f"v_cvt_pk_bf16_f32 v{p+6+k}, v{s+12+2*k}, v{s+12+2*k+1}")

    g.stamp()
    nop = (None, lambda: None)
    SP = g.opt.get("spread", 2)
    def spaced(items):
        out = []
        for it in items: out += [it] + [nop] * SP
        return out
    IG, IL, IC = g.opt.get("ig", 1), g.opt.get("il", 3), g.opt.get("ic", 4)
    def ld15(va): return [(None, lambda: a.I(f"buffer_load_dword v15, v{va}, {srd(sWS)}, 0 offen sc1"))]
    half(0, qk(1, 0), [])
    for i in range(64):
        if i == IG:
            a.wait_vm(gst)
            g.signal(98, 2)
            if g.opt.get("att"): g.stamp()
        if i == IL: extra += ld15(19)
        if i == IC:
            g.check_flags(15, 19)
            if g.opt.get("att"): g.stamp()
            extra += kv_dma(2) + kv_dma(3)
        if i == 2 or ((i + 2) % 8 == 0 and i + 2 < 64):
            c = (i + 2) // 4
            while extra and extra[0] is nop: extra.pop(0)
            assert not extra, len(extra)
            a.wait_vm(kv_last[c if c == 1 else c + 1])
            a.I("s_barrier")
            if g.opt.get("att"): g.stamp()
            if c == 2:
                extra += spaced([(None, lambda k=k: (g.rp_store[k](), g.rp_store[k+1]())) for k in range(0, 8, 2)])
                extra += [(None, lambda: g.xg_publish(2))]
            if c > 1 and c + 2 < 16: extra += spaced(kv_dma(c + 2) + kv_dma(c + 3))
            if c == 2:
                extra += spaced([(None, lambda f=f: a.I(f"buffer_load_dwordx2 {vr(vXR+2*f,2)}, v14, {srd(sX)}, 0 offen offset:{32*f}")) for f in range(5)])
            if c == 4:
                g.signal(101, 2)
                extra += [nop] * 16 + ld15(29) + [nop] * 12 + [(lambda: g.check_flags(15, 29), lambda: None)]
                for _ in range(2): extra += spaced(wq.pop(0))
                if g.opt.get("wb", 1): extra += [(lambda: wb_l2(g), lambda: None)]
            if c > 4:
                rounds_left = 8 - c // 2
                n = len(wq) if rounds_left <= 1 else int(len(wq) / (rounds_left - 0.5) + 0.99)
                for _ in range(n): extra += spaced(wq.pop(0))
            if c == g.opt.get("tc", 14) and g.opt.get("pt", 1):
                extra += spaced([(None, lambda k=k: a.I(f"buffer_load_dword v3, v{22+k}, {srd(sWS)}, 0 offen sc1")) for k in range(2)])
            if c == 12: extra += ld15(20)
            if c == 14: g.xg_mode(15)
        kr = kread(i + 2) if i + 2 < 64 else []
        vrd = vread(i + 1) if i + 1 < 64 else []
        mfb = (qk(0, i + 1) if i + 1 < 64 else []) + pv(0, i)
        if lastfill[0] is not None: a.wait_lg(lastfill[0])
        fl = kr + vrd
        half(1, mfb, fl[:4])
        if i + 1 < 64:
            half(0, qk(1, i + 1) + pv(1, i), fl[4:])
    for m in pv(1, 63): a.I(m)
    run(extra)
    g.stamp()
    slow, back = "L_slow", "L_slow_back"
    a.I("s_mov_b32 s61, 0")
    a.I("s_waitcnt vmcnt(0)")
    a.fence()
    a.label(back)
    for t in range(2):
        o = O + 16 * t
        a.I(f"v_rcp_f32 v{2+t}, v{o+12}")
    for t in range(2):
        o = O + 16 * t
        for k in range(12):
            a.I(f"v_mul_f32 v{o+k}, v{o+k}, v{2+t}")
    a.I("v_mov_b32 v4, 0")
    for t in range(2):
        o = O + 16 * t
        for k in range(8):
            a.I(f"v_fmac_f32 v4, 0, v{o+k}")
    a.I("v_mov_b32 v5, 0")
    for t in range(2):
        o = O + 16 * t
        for k in range(8, 12):
            a.I(f"v_fmac_f32 v5, 0, v{o+k}")
    a.M(f"""
    s_mov_b32 s62, -1
    s_mov_b32 s63, 0
    v_cndmask_b32 v5, 0, v5, s[62:63]
    v_add_f32 v4, v4, v5
    v_cmp_neq_f32 vcc, 0, v4
    s_mov_b32 s66, {hex(f2u(2.0**100))}
    s_mov_b32 s67, {hex(f2u(2.0**-30))}
    v_cmp_nle_f32 s[62:63], v{O+12}, s66
    s_or_b64 vcc, vcc, s[62:63]
    v_cmp_nle_f32 s[62:63], v{O+28}, s66
    s_or_b64 vcc, vcc, s[62:63]
    v_cmp_nge_f32 s[62:63], v{O+12}, s67
    s_or_b64 vcc, vcc, s[62:63]
    v_cmp_nge_f32 s[62:63], v{O+28}, s67
    s_or_b64 vcc, vcc, s[62:63]
    s_cmp_lg_u32 s61, 0
    s_cselect_b64 vcc, 0, vcc
    s_cmp_lg_u64 vcc, 0
    s_cbranch_scc1 {slow}
    """)
    for t in range(2):
        o = O + 16 * t; p = P + 8 * t
        for k in range(6):
            a.I(f"v_cvt_pk_bf16_f32 v{p+k}, v{o+2*k}, v{o+2*k+1}")
    for t in range(2):
        p = P + 8 * t
        a.I(f"v_permlane32_swap_b32 v{p}, v{p+2}")
        a.I(f"v_permlane32_swap_b32 v{p+1}, v{p+3}")
    a.I(f"v_permlane32_swap_b32 v{P+4}, v{P+12}")
    a.I(f"v_permlane32_swap_b32 v{P+5}, v{P+13}")
    a.M(f"""
    s_mul_i32 s66, s{sBLK}, 80
    s_add_u32 s66, s66, s{sB3}
    s_lshl_b32 s66, s66, 10
    s_add_u32 s66, s66, {O_OFF}
    s_cmp_eq_u32 s{sPAR}, 0
    s_cselect_b32 s67, 2048, 8
    s_add_u32 s67, s67, s66
    s_lshl_b32 s4, s{sH}, 5
    s_add_u32 s4, s4, s{sBLK}
    s_lshl_b32 s4, s4, 7
    s_add_u32 s4, s4, {F2_OFF}
    """)
    g.dual(lambda: a.M(f"""
    buffer_store_dwordx4 {vr(P,4)}, v{vQ0}, {srd(sWS)}, s66 offen SCX
    buffer_store_dwordx4 {vr(P+8,4)}, v{vQ0}, {srd(sWS)}, s66 offen offset:512 SCX
    buffer_store_dwordx2 {vr(P+4,2)}, v{vKV}, {srd(sWS)}, s67 offen SCX
    """))
    g.stamp()
    g.slow_args = dict(Q=Q, KB=KB, VB=VB, P=P, S=S, O=O, vK0=vQ0, vV=vV, vKV=vKV)

def slow_path(g):
    a = g.a
    A = g.slow_args
    Q, KB, VB, P, S, O, vK0, vV = A["Q"], A["KB"], A["VB"], A["P"], A["S"], A["O"], A["vK0"], A["vV"]
    a.vm = []; a.lg = []; a.hist = []
    a.label("L_slow")
    a.M(f"""
    s_waitcnt vmcnt(0) lgkmcnt(0)
    s_mov_b32 s61, 1
    s_mov_b32 s62, 0
    s_mov_b32 s63, -1
    s_add_u32 s64, s{sB3}, 80
    s_lshl_b32 s64, s64, 10
    v_mov_b32 v6, 0x3f803f80
    v_mov_b32 v2, 0xff800000
    v_mov_b32 v3, 0xff800000
    """)
    for t in range(2):
        for k in range(2):
            a.I(f"v_cndmask_b32 v{Q+8*t+4+k}, v{Q+8*t+4+k}, 0, s[62:63]")
    def load_k(off):
        a.I(f"buffer_load_dwordx4 {vr(KB,4)}, v{vK0}, {srd(sWS)}, s65 offen offset:{off} sc1")
        a.I(f"buffer_load_dwordx4 {vr(KB+4,4)}, v31, {srd(sWS)}, s65 offen offset:{off} sc1")
        for k in range(4):
            a.I(f"v_cndmask_b32 v{KB+4+k}, v{KB+4+k}, v6, s[62:63]")
        for t in range(2):
            s = S + 16 * t; q = Q + 8 * t
            a.I(f"v_mfma_f32_32x32x16_bf16 {vr(s,16)}, {vr(KB,4)}, {vr(q,4)}, 0")
            a.I(f"v_mfma_f32_32x32x16_bf16 {vr(s,16)}, {vr(KB+4,4)}, {vr(q+4,4)}, {vr(s,16)}")
    a.I("s_mov_b32 s66, 0")
    a.fence()
    a.label("L_slow1")
    a.I(f"s_mul_i32 s65, s66, {256*1024}")
    a.I("s_add_u32 s65, s65, s64")
    for tile in range(2):
        load_k(512 * tile)
        for t in range(2):
            s = S + 16 * t
            for k in range(0, 16, 2):
                a.I(f"v_max3_f32 v{2+t}, v{2+t}, v{s+k}, v{s+k+1}")
    a.M("""
    s_add_u32 s66, s66, 1
    s_cmp_lt_u32 s66, 32
    """)
    a.fence()
    a.I("s_cbranch_scc1 L_slow1")
    for t in range(2):
        a.M(f"""
        v_mov_b32 v4, v{2+t}
        v_permlane32_swap_b32 v{2+t}, v4
        v_max_f32 v{2+t}, v{2+t}, v4
        v_and_b32 v4, 0xffff0000, v{2+t}
        v_sub_f32 v5, v{2+t}, v4
        v_and_b32 v7, 0xffff0000, v5
        v_sub_f32 v5, v5, v7
        v_cvt_pk_bf16_f32 v4, -v4, -v7
        v_cvt_pk_bf16_f32 v5, -v5, 0
        v_cndmask_b32 v{Q+8*t+4}, v{Q+8*t+4}, v4, s[62:63]
        v_cndmask_b32 v{Q+8*t+5}, v{Q+8*t+5}, v5, s[62:63]
        """)
    a.M(f"""
    s_mov_b32 s67, s7
    v_lshl_add_u32 v8, v1, 4, s67
    v_mov_b32 v12, v6
    v_mov_b32 v13, v6
    v_mov_b32 v14, v6
    v_mov_b32 v15, v6
    ds_write_b128 v8, v[12:15] offset:3072
    v_lshlrev_b32 v9, 4, v1
    v_xor_b32 v10, 64, v9
    v_xor_b32 v11, 128, v9
    s_sub_u32 s66, s67, {RING+3072}
    v_add_u32 v12, s66, v{vV}
    v_add_u32 v13, s66, v{vV+1}
    s_mov_b32 m0, s67
    """)
    for r in range(32):
        a.I(f"v_mov_b32 v{O+r}, 0")
    a.I("s_mov_b32 s66, 0")
    a.drain(); a.fence()
    a.label("L_slow2")
    a.I(f"s_mul_i32 s65, s66, {256*1024}")
    a.I("s_add_u32 s65, s65, s64")
    a.I(f"s_add_u32 s67, s65, {80*1024}")
    for i in range(3):
        a.I(f"buffer_load_dwordx4 v{9+i}, {srd(sWS)}, s67 offen offset:{1024*i} sc1 lds")
    for tile in range(2):
        load_k(512 * tile)
        a.I("s_waitcnt vmcnt(0)")
        for j in range(2):
            for rd in range(2):
                a.I(f"ds_read_b64_tr_b16 {vr(VB+4*j+2*rd,2)}, v{12+rd} offset:{512*tile+256*j}")
        for t in range(2):
            s = S + 16 * t; p = P + 8 * t; o = O + 16 * t
            for k in range(16):
                a.I(f"v_exp_f32 v{s+k}, v{s+k}")
            for k in range(8):
                a.I(f"v_cvt_pk_bf16_f32 v{p+k}, v{s+2*k}, v{s+2*k+1}")
            a.I(f"v_mfma_f32_32x32x16_bf16 {vr(o,16)}, {vr(VB,4)}, {vr(p,4)}, {vr(o,16)}")
            a.I(f"v_mfma_f32_32x32x16_bf16 {vr(o,16)}, {vr(VB+4,4)}, {vr(p+4,4)}, {vr(o,16)}")
    a.M("""
    s_add_u32 s66, s66, 1
    s_cmp_lt_u32 s66, 32
    """)
    a.drain(); a.fence()
    a.I("s_cbranch_scc1 L_slow2")
    run(w1f_dma(g, 0, A["vKV"]))
    a.drain(); a.fence()
    a.I("s_branch L_slow_back")

def rg_ops(r, t):
    return [f"v_mov_b32 v{t}, v{r}", f"v_permlane16_swap_b32 v{r}, v{t}", f"v_add_f32 v{r}, v{r}, v{t}",
            f"v_mov_b32 v{t}, v{r}", f"v_permlane32_swap_b32 v{r}, v{t}", f"v_add_f32 v{r}, v{r}, v{t}"]

def rg_reduce(g, r, t):
    for x in rg_ops(r, t): g.a.I(x)

vCK, vFL, vFA = 2, 3, 30

def max_ops(regs):
    regs = list(regs)
    if len(regs) == 1: return [], regs[0]
    ops = []
    cur = regs.pop(0)
    while regs:
        if len(regs) >= 2:
            ops.append(f"v_max3_u32 v{vCK}, v{cur}, v{regs[0]}, v{regs[1]}"); regs = regs[2:]
        else:
            ops.append(f"v_max_u32 v{vCK}, v{cur}, v{regs[0]}"); regs = regs[1:]
        cur = vCK
    return ops, vCK

def check_data(g, regs, reload):
    a = g.a
    slow, back, lp = g.lab("ck"), g.lab("ckb"), g.lab("ckl")
    ops, r = max_ops(regs)
    for x in ops: a.I(x)
    a.I(f"v_cmp_eq_u32 vcc, -1, v{r}")
    a.I(f"s_cbranch_vccnz {slow}")
    a.label(back)
    def stub():
        a.vm = []; a.lg = []; a.hist = []
        a.label(slow)
        a.I("s_mov_b32 s44, 0")
        a.I("s_mov_b32 s46, 0")
        a.label(lp)
        a.I(f"buffer_load_dword v{vFL}, v{vFA}, {srd(sWS)}, 0 offen sc1")
        reload()
        a.I("s_waitcnt vmcnt(0)")
        for x in ops: a.I(x)
        a.M(f"""
        v_cmp_eq_u32 vcc, -1, v{r}
        s_cbranch_vccz {back}
        s_cmp_lg_u32 s46, 0
        s_cbranch_scc1 {back}
        v_cmp_ne_u32 vcc, s{sNONCE}, v{vFL}
        s_add_u32 s44, s44, 1
        s_cmp_eq_u64 vcc, 0
        s_cselect_b32 s46, 1, 0
        s_cmp_gt_u32 s44, {SPIN_MAX}
        s_cbranch_scc0 {lp}
        s_branch {back}
        """)
    g.stubs.append(stub)

def ksplit_gemm(g, nst, wreg, load, areg, chk, nup, accs, cinit0, vRW, vRR, T, fillers, first_batch, bar_st):
    a = g.a
    total = 4 * nst
    first_batch()
    pendw = []
    fillers = list(fillers)
    late = []
    for u in range(4):
        acc = accs[u]
        for st in range(nst):
            n = u * nst + st
            if u == 3 and st == bar_st:
                assert not pendw
                a.I("s_waitcnt lgkmcnt(0)")
                a.I("s_barrier")
                late = [f"ds_read_b128 {vr(T+20*k+4*f,4)}, v{vRR} offset:{5120*k+1024*f}" for k in range(3) for f in range(5)]
                late += [None] * 4
                late += [f"v_add_f32 v{T+r}, v{T+r}, v{T+20+r}" for r in range(20)]
                late += [f"v_add_f32 v{T+r}, v{T+r}, v{T+40+r}" for r in range(20)]
            for f in range(5):
                fl, r = wreg(st, f)
                cc = "0" if (st == 0 and not (u == 0 and cinit0)) else vr(acc + 4*f, 4)
                a.I(f"v_mfma_f32_16x16x32_bf16 {vr(acc+4*f,4)}, {vr(r,4,fl)}, {vr(areg(n),4)}, {cc}")
                if pendw and (st >= 1 or f >= 4): pendw.pop(0)()
                elif late:
                    for _ in range(3 if nst - bar_st <= 4 else 2):
                        if late:
                            x = late.pop(0)
                            if x: a.I(x)
                elif f == 0 and n + nup < total and n + nup - 1 >= nup - 1 and n > 0:
                    pass
                elif fillers and n >= nup + 1:
                    for _ in range(2):
                        if fillers: a.I(fillers.pop(0))
            if n + nup < total: load(n + nup, False)
        if u < 3:
            assert not pendw
            pendw = [lambda f=f, acc=acc, u=u: a.I(f"ds_write_b128 v{vRW+u}, {vr(acc+4*f,4)} offset:{1024*f}") for f in range(5)]
    for x in late + fillers:
        if x: a.I(x)

def red_addrs(g, vRW, vRR, vA):
    a = g.a
    a.M(f"""
    v_lshrrev_b32 v2, 4, v1
    v_and_b32 v3, 15, v1
    v_lshlrev_b32 v3, 4, v3
    v_lshl_add_u32 v3, v2, 10, v3
    """)
    for u in range(4):
        a.M(f"""
        s_add_u32 s66, s{sOWN}, {u+1}
        s_and_b32 s66, s66, 3
        s_lshl_b32 s67, s66, 8
        v_add_u32 v{vA+u}, s67, v3
        s_mul_i32 s66, s66, 15360
        s_add_u32 s66, s66, {RED + (5120*u if u < 3 else 0)}
        v_lshl_add_u32 v{vRW+u if u < 3 else vRR}, v1, 4, s66
        """)

def phase3(g):
    a = g.a
    AF = 92
    vRW, vRR, vA, vL = 8, 11, 12, 16
    accs = [32, AF, AF + 20, 32]
    for r in range(10):
        a.I(f"v_lshlrev_b32 v{accs[0]+2*r}, 16, v{vXR+r}")
        a.I(f"v_and_b32 v{accs[0]+2*r+1}, 0xffff0000, v{vXR+r}")
    red_addrs(g, vRW, vRR, vA)
    a.M(f"""
    v_and_b32 v2, 7, v1
    s_lshl_b32 s66, s{sWAVE}, 3
    v_add_u32 v2, s66, v2
    v_lshl_add_u32 v2, v2, 5, s{sRB64}
    v_lshlrev_b32 v2, 7, v2
    v_add_u32 v{vFA}, {F2_OFF}, v2
    s_mul_i32 s62, s{sRB64}, 80
    s_mul_i32 s66, s{sWAVE}, 20
    s_add_u32 s62, s62, s66
    s_lshl_b32 s62, s62, 10
    s_add_u32 s62, s62, {O_OFF}
    s_add_u32 s63, s62, 4096
    s_add_u32 s64, s62, 8192
    s_add_u32 s65, s62, 12288
    s_add_u32 s58, s62, 16384
    """)
    so = [62, 63, 64, 65, 58]
    def load(n, retry):
        u, st = divmod(n, 5)
        a.I(f"buffer_load_dwordx4 {vr(AF+4*n,4)}, v{vA+u}, {srd(sWS)}, s{so[st]} offen sc1")
    NUP = g.opt.get("nb3", 10)
    chk = lambda n: [AF + 4*n, AF + 4*n + 2]
    def first():
        a.I("s_waitcnt vmcnt(0)")
        g.dual(lambda: g.signal(4, 4, "SCX"))
        g.stamp()
        run(g.wfrag("wo", 3) + g.wfrag("wo", 4))
        g.poll([vFA], 2)
        g.stamp()
        for n in range(NUP): load(n, False)
        a.M(f"""
        s_lshl_b32 s66, s{sRB64}, 2
        s_add_u32 s66, s66, s{sOWN}
        s_lshl_b32 s66, s66, 4
        v_and_b32 v5, 15, v1
        v_add_u32 v24, s66, v5
        v_lshlrev_b32 v24, 6, v24
        v_bfe_u32 v2, v1, 4, 1
        v_lshrrev_b32 v3, 5, v1
        v_lshl_add_u32 v4, v2, 1, v3
        v_lshlrev_b32 v5, 4, v5
        v_lshl_add_u32 v25, v4, 10, v5
        v_lshl_add_u32 v5, v3, 10, v5
        v_lshl_add_u32 v26, v2, 3, v5
        s_mul_i32 s66, s{sRB64}, 80
        s_mul_i32 s67, s{sCB3}, 10
        s_add_u32 s66, s66, s67
        s_lshl_b32 s66, s66, 10
        s_lshl_b32 s67, s{sOWN}, 8
        s_add_u32 s66, s66, s67
        s_add_u32 s54, s66, {H_OFF}
        s_add_u32 s55, s54, 4096
        s_add_u32 s56, s54, 8192
        s_lshl_b32 s59, s{sCB3}, 3
        s_add_u32 s59, s59, {ST_OFF}
        v_mov_b32 v23, 0x3f803f80
        s_barrier
        s_lshl_b32 s4, s{sRB64}, 3
        s_add_u32 s4, s4, s{sCB3}
        s_lshl_b32 s4, s4, 2
        s_add_u32 s4, s4, s{sOWN}
        s_lshl_b32 s4, s4, 7
        s_add_u32 s4, s4, {F3_OFF}
        """)
    T = AF
    ksplit_gemm(g, 5, lambda st, f: ("v", worege(st, f)), load, lambda n: AF + 4*n, chk, NUP, accs, True,
                vRW, vRR, T, [], first, 2)
    R = accs[3]
    for r in range(0, 20, 2): a.I(f"v_pk_add_f32 {vr(R+r,2)}, {vr(R+r,2)}, {vr(T+r,2)}")
    for r in range(8): a.I(f"v_cvt_pk_bf16_f32 v{T+r}, v{R+2*r}, v{R+2*r+1}")
    for r in range(8, 10): a.I(f"v_cvt_pk_bf16_f32 v{vH+r}, v{R+2*r}, v{R+2*r+1}")
    for pr in range(2):
        a.I(f"v_permlane16_swap_b32 v{T+4*pr}, v{T+4*pr+2}")
        a.I(f"v_permlane16_swap_b32 v{T+4*pr+1}, v{T+4*pr+3}")
    def tail():
        a.M(f"""
        buffer_store_dwordx4 {vr(T,4)}, v25, {srd(sWS)}, s54 offen SCX
        buffer_store_dwordx4 {vr(T+4,4)}, v25, {srd(sWS)}, s55 offen SCX
        buffer_store_dwordx2 {vr(vH+8,2)}, v26, {srd(sWS)}, s56 offen SCX
        """)
        src = [T + r for r in range(8)] + [vH + 8, vH + 9]
        for i, r in enumerate(src):
            a.I(f"v_dot2_f32_bf16 v6, v{r}, v23, {'0' if i == 0 else 'v6'}")
            a.I(f"v_dot2_f32_bf16 v7, v{r}, v{r}, {'0' if i == 0 else 'v7'}")
        for x, y in zip(rg_ops(6, 2), rg_ops(7, 3)):
            a.I(x); a.I(y)
        a.M(f"""
        s_mov_b64 exec, 0xffff
        buffer_store_dwordx2 v[6:7], v24, {srd(sWS)}, s59 offen SCX
        s_mov_b64 exec, -1
        """)
    g.dual(tail)
    g.stamp()
    for r in range(8): a.I(f"v_cvt_pk_bf16_f32 v{vH+r}, v{R+2*r}, v{R+2*r+1}")
    if g.stop == 3:
        a.I("s_waitcnt vmcnt(0)")

def phase4(g):
    a = g.a
    sCB4 = 5
    ACC = 32
    WB = [88, 116]
    AF = 144
    NB = 9
    vTR, vA, vCSA = 24, 27, 28
    a.M(f"""
    s_lshr_b32 s66, s{sJ}, 4
    s_lshl_b32 s62, s{sXCD}, 1
    s_add_u32 s62, s62, s66
    s_lshl_b32 s63, s62, 1
    s_lshr_b32 s66, s{sWAVE}, 1
    s_add_u32 s63, s63, s66
    s_and_b32 s64, s{sWAVE}, 1
    v_lshrrev_b32 v2, 4, v1
    v_and_b32 v3, 15, v1
    v_lshlrev_b32 v4, 4, v3
    v_lshl_add_u32 v{vA}, v2, 10, v4
    v_lshlrev_b32 v{vCSA}, 4, v2
    v_lshl_add_u32 v29, v3, 6, v{vCSA}
    s_mul_i32 s65, s63, 80
    s_lshl_b32 s65, s65, 10
    s_lshl_b32 s66, s64, 9
    s_add_u32 s65, s65, s66
    s_add_u32 s65, s65, {H_OFF}
    s_lshl_b32 s58, s63, 6
    s_lshl_b32 s67, s64, 5
    s_add_u32 s58, s58, s67
    s_lshl_b32 s58, s58, 6
    s_add_u32 s58, s58, {ST_OFF}
    """)
    def load(st):
        r = AF + 8 * (st % NB)
        a.I(f"s_add_u32 s66, s65, {4096*st}")
        for tu in range(2):
            a.I(f"buffer_load_dwordx4 {vr(r+4*tu,4)}, v{vA}, {srd(sWS)}, s66 offen offset:{256*tu} sc1")
    def chk(st):
        r = AF + 8 * (st % NB)
        return [r, r + 2, r + 4, r + 6]
    NU4 = g.opt.get("nb4", 4)
    def batch():
        for st in range(NU4): load(st)
        for tu in range(2):
            a.I(f"buffer_load_dwordx4 {vr(8+4*tu,4)}, v29, {srd(sWS)}, s58 offen offset:{1024*tu} sc1")
    a.M(f"""
    v_and_b32 v2, 7, v1
    s_lshl_b32 s66, s63, 3
    v_add_u32 v2, s66, v2
    v_bfe_u32 v3, v1, 3, 1
    v_lshl_add_u32 v2, v2, 2, v3
    s_lshl_b32 s66, s64, 1
    v_add_u32 v2, s66, v2
    v_lshlrev_b32 v2, 7, v2
    v_add_u32 v{vFA}, {F3_OFF}, v2
    s_waitcnt vmcnt(0)
    """)
    g.dual(lambda: g.signal(4, 4, "SCX"))
    g.stamp()
    a.I("s_barrier")
    W1PRE = g.opt.get("w1pre", 1)
    if W1PRE >= 1: run(w1f_dma(g, 3, 16))
    if W1PRE >= 2: run(w1f_dma(g, 4, 16))
    g.poll([vFA], 2)
    g.stamp()
    batch()
    a.M(f"""
    v_lshlrev_b32 v{vTR}, 4, v1
    v_add_u32 v{vTR+1}, {8*7168}, v{vTR}
    v_add_u32 v{vTR+2}, {16*7168}, v{vTR}
    v_and_b32 v31, 31, v1
    v_lshlrev_b32 v31, 4, v31
    v_lshrrev_b32 v3, 5, v1
    v_lshl_add_u32 v31, v3, 10, v31
    s_mul_i32 s54, s63, 216
    s_mul_i32 s66, s{sCB4}, 14
    s_add_u32 s54, s54, s66
    s_lshl_b32 s54, s54, 10
    s_lshl_b32 s66, s64, 9
    s_add_u32 s54, s54, s66
    s_add_u32 s54, s54, {H1_OFF}
    s_lshl_b32 s55, s{sCB4}, 9
    s_add_u32 s55, s55, {CS_OFF}
    """)
    def wreads(st):
        b = WB[st & 1]
        return [lambda f=f: a.I(f"ds_read_b128 {vr(b+4*f,4)}, v{vTR+st//8} offset:{(st%8)*7168+f*1024}") for f in range(7)]
    ids = [it() for it in wreads(0)]
    if g.opt.get("wb", 1): wb_l2(g)
    w1q = (w1f_dma(g, 3, 16) if W1PRE < 1 else []) + (w1f_dma(g, 4, 16) if W1PRE < 2 else [])
    a.M(f"""
    s_lshl_b32 s4, s62, 4
    s_add_u32 s4, s4, s{sCB4}
    s_lshl_b32 s4, s4, 2
    s_add_u32 s4, s4, s{sWAVE}
    s_lshl_b32 s4, s4, 7
    s_add_u32 s4, s4, {F4_OFF}
    """)
    fill = []
    for tu in range(2):
        m = 8 + 4*tu
        fill += [f"v_add_f32 v{m}, v{m}, v{m+2}"] + rg_ops(m, m + 1) + [f"v_mul_f32 v{m}, {hex(f2u(-1.0/640))}, v{m}",
                 f"v_cvt_pk_bf16_f32 v{m}, v{m}, v{m}", f"v_and_b32 v{m}, 0xffff0000, v{m}"]
    CS = AF + 8 * (20 % NB)
    for st in range(20):
        if st == 11:
            assert not w1q
            if W1PRE < 2: a.wait_vm(w1id)
            a.I("s_barrier")
        rd = wreads(st + 1) if st + 1 < 20 else []
        b = WB[st & 1]; r = AF + 8 * (st % NB)
        prev, ids = ids, []
        for f in range(7):
            if f == 0: a.wait_lg(prev[6])
            for tu in range(2):
                d = ACC + 8 * f + 4 * tu
                cc = "0" if st == 0 else vr(d, 4)
                a.I(f"v_mfma_f32_16x16x32_bf16 {vr(d,4)}, {vr(b+4*f,4)}, {vr(r+4*tu,4)}, {cc}")
                if rd: ids.append(rd.pop(0)())
                elif f == 4 and tu == 0:
                    if st + NU4 < 20: load(st + NU4)
                elif f == 5 and tu == 1:
                    if w1q:
                        run([w1q.pop(0)])
                        w1id = a.vm[-1][0]
                elif fill: a.I(fill.pop(0))
        if st == 16:
            assert NU4 <= 4
            for f in range(7):
                a.I(f"buffer_load_dwordx4 {vr(CS+4*f,4)}, v{vCSA}, {srd(sWS)}, s55 offen offset:{64*f} sc1")
    assert not fill
    g.stamp()
    P = WB[0]
    def epi():
        skip = g.lab("h1")
        for f in range(7):
            if f == 3:
                a.I(f"s_cmp_eq_u32 s{sCB4}, 15")
                a.I(f"s_cbranch_scc1 {skip}")
            for tu in range(2):
                d = ACC + 8 * f + 4 * tu
                for e in range(0, 4, 2):
                    a.I(f"v_pk_fma_f32 {vr(d+e,2)}, {vr(CS+4*f+e,2)}, {vr(8+4*tu,2)}, {vr(d+e,2)} op_sel:[0,0,0] op_sel_hi:[1,0,1]")
            for tu in range(2):
                d = ACC + 8 * f + 4 * tu
                for k in range(2):
                    a.I(f"v_cvt_pk_bf16_f32 v{P+4*f+2*tu+k}, v{d+2*k}, v{d+2*k+1}")
            for k in (0, 2, 1, 3):
                a.I(f"v_pk_max_i16 v{P+4*f+k}, v{P+4*f+k}, 0")
            if f % 2 == 0 and f > 0: a.I("s_add_u32 s54, s54, 4096")
            a.I(f"v_permlane16_swap_b32 v{P+4*f}, v{P+4*f+2}")
            a.I(f"v_permlane16_swap_b32 v{P+4*f+1}, v{P+4*f+3}")
            a.I(f"buffer_store_dwordx4 {vr(P+4*f,4)}, v31, {srd(sWS)}, s54 offen offset:{2048*(f%2)} SCX")
        a.fence()
        a.label(skip)
    g.dual(epi)
    a.vm = [(-20 - i, set(("v", r) for r in range(CS, CS + 28)), None) for i in range(1)] + a.vm
    g.stamp()
    if g.stop == 4:
        a.I("s_waitcnt vmcnt(0)")

def phase5(g):
    a = g.a
    vRW, vRR, vA = 8, 11, 12
    NUP = g.opt.get('nb5', 10)
    AF, NB, T, HU = 32, NUP + 1, 96, 156
    accs = [176, 196, 176, 196]
    assert AF + 4 * NB <= T
    red_addrs(g, vRW, vRR, vA)
    a.M(f"""
    s_mul_i32 s62, s{sRB64}, 216
    s_mul_i32 s66, s{sWAVE}, 56
    s_add_u32 s63, s62, 212
    s_lshl_b32 s65, s62, 10
    s_add_u32 s65, s65, {H1_OFF}
    s_add_u32 s62, s62, s66
    s_lshl_b32 s62, s62, 10
    s_add_u32 s62, s62, {H1_OFF}
    s_lshl_b32 s63, s63, 10
    s_add_u32 s63, s63, {H1_OFF}
    s_lshl_b32 s66, s{sRB64}, 2
    s_add_u32 s66, s66, s{sOWN}
    s_lshl_b32 s66, s66, 4
    v_and_b32 v2, 15, v1
    v_add_u32 v24, s66, v2
    v_lshrrev_b32 v3, 4, v1
    v_lshlrev_b32 v4, 6, v24
    v_lshl_add_u32 v25, v3, 4, v4
    s_mov_b32 s58, {ST_OFF}
    """)
    def areg(n): return AF + 4 * (n % NB)
    def load(n, retry):
        u, st = divmod(n, 14)
        if st == 0:
            a.I(f"buffer_load_dwordx4 {vr(areg(n),4)}, v{vA+u}, {srd(sWS)}, s62 offen sc1")
        else:
            a.I(f"s_add_u32 s64, s62, {4096*st}")
            if st >= 12: a.I("s_min_u32 s64, s64, s63")
            a.I(f"buffer_load_dwordx4 {vr(areg(n),4)}, v{vA+u}, {srd(sWS)}, s64 offen sc1")
    def first():
        a.M(f"""
        v_and_b32 v2, 3, v1
        s_lshl_b32 s67, s{sWAVE}, 2
        s_lshr_b32 s66, s{sRB64}, 1
        s_lshl_b32 s66, s66, 4
        s_add_u32 s66, s66, s67
        v_add_u32 v2, s66, v2
        v_bfe_u32 v3, v1, 2, 1
        v_lshl_add_u32 v2, v2, 2, v3
        s_and_b32 s66, s{sRB64}, 1
        s_lshl_b32 s66, s66, 1
        v_add_u32 v2, s66, v2
        v_lshlrev_b32 v2, 7, v2
        v_add_u32 v{vFA}, {F4_OFF}, v2
        s_waitcnt vmcnt(0)
        """)
        g.dual(lambda: g.signal(4, 4, "SCX"))
        g.stamp()
        a.I("s_barrier")
        g.poll([vFA], 2)
        g.stamp()
        for n in range(NUP): load(n, False)
        a.I(f"buffer_load_dwordx4 v[16:19], v25, {srd(sWS)}, s58 offen sc1")
        if g.opt.get("wb", 1): wb_l2(g)
        a.M(f"""
        v_mul_u32_u24 v4, 1280, v24
        v_bfe_u32 v2, v1, 4, 1
        v_lshrrev_b32 v3, 5, v1
        v_lshl_add_u32 v5, v2, 1, v3
        v_lshl_add_u32 v27, v5, 4, v4
        v_lshrrev_b32 v6, 4, v1
        v_lshl_add_u32 v28, v6, 3, v4
        s_mul_i32 s59, s{sCB3}, 160
        """)
        for r in range(10):
            a.I(f"v_lshlrev_b32 v{HU+2*r}, 16, v{vH+r}")
            a.I(f"v_and_b32 v{HU+2*r+1}, 0xffff0000, v{vH+r}")
    k = hex(f2u(1.0/640))
    fill = ["v_add_f32 v16, v16, v18", "v_add_f32 v17, v17, v19"]
    for x, y in zip(rg_ops(16, 21), rg_ops(17, 22)): fill += [x, y]
    rnd = lambda r: [f"v_cvt_pk_bf16_f32 v{r}, v{r}, v{r}", f"v_and_b32 v{r}, 0xffff0000, v{r}"]
    fill += [f"v_mul_f32 v16, {k}, v16", f"v_mul_f32 v17, {k}, v17", "v_fma_f32 v17, -v16, v16, v17", "v_max_f32 v17, 0, v17"]
    fill += rnd(17) + [f"v_add_f32 v17, {hex(f2u(1e-5))}, v17"] + rnd(17) + ["v_sqrt_f32 v17, v17"] + rnd(17) + ["v_rcp_f32 v18, v17"]
    ksplit_gemm(g, 14, w2reg, load, areg, lambda n: [areg(n)], NUP, accs, False, vRW, vRR, T, fill, first, 3)
    g.stamp()
    R = accs[3]
    for r in range(0, 20, 2): a.I(f"v_pk_add_f32 {vr(R+r,2)}, {vr(R+r,2)}, {vr(T+r,2)}")
    for r in range(0, 20, 2):
        a.I(f"v_pk_fma_f32 {vr(HU+r,2)}, {vr(R+r,2)}, v[18:19], {vr(HU+r,2)} op_sel:[0,0,0] op_sel_hi:[1,0,1]")
    P = T + 20
    for r in range(10): a.I(f"v_cvt_pk_bf16_f32 v{P+r}, v{HU+2*r}, v{HU+2*r+1}")
    for pr in range(2):
        a.I(f"v_permlane16_swap_b32 v{P+4*pr}, v{P+4*pr+2}")
        a.I(f"v_permlane16_swap_b32 v{P+4*pr+1}, v{P+4*pr+3}")
    a.M(f"""
    buffer_store_dwordx4 {vr(P,4)}, v27, {srd(sOUT)}, s59 offen
    buffer_store_dwordx4 {vr(P+4,4)}, v27, {srd(sOUT)}, s59 offen offset:64
    buffer_store_dwordx2 {vr(P+8,2)}, v28, {srd(sOUT)}, s59 offen offset:128
    """)
    g.stamp()
```

```python
import sys, math, struct, re
from asmlib import Asm, vr

NAME = "sequential_preLN__mha_block__dense_activation_relu__prompt"
KNAME = NAME + "_kernel"

QKV_OFF = 0
QKL_OFF = 32 * 256 * 1024
O_OFF = 2 * 32 * 256 * 1024
H_OFF = O_OFF + 32 * 80 * 1024
H1_OFF = H_OFF + 32 * 80 * 1024
ST_OFF = H1_OFF + 32 * 216 * 1024
F1_OFF = ST_OFF + 2048 * 64
F2_OFF = F1_OFF + 1024 * 128
F3_OFF = F2_OFF + 1024 * 128
F4_OFF = F3_OFF + 1024 * 128
FR_OFF = F4_OFF + 1024 * 128
F0_OFF = FR_OFF + 1024 * 128
XG_OFF = F0_OFF + 1024 * 128
TS_OFF = XG_OFF + 256 * 128
CS_OFF = TS_OFF + 1024 * 128
S1_OFF = CS_OFF + 8192
WOF_OFF = S1_OFF + 2048 * 16
W1F_OFF = WOF_OFF + 20 * 40 * 1024
W2F_OFF = W1F_OFF + 20 * 112 * 1024
WS_USED = W2F_OFF + 54 * 40 * 1024
QOCT = 256

def f2u(x):
    return struct.unpack("<I", struct.pack("<f", x))[0]

QSCALE = math.log2(math.e) / math.sqrt(20.0)
SPIN_MAX = 200000

sX, sWQKV, sWO, sW1, sW2, sOUT, sWS, sDBG = 8, 12, 16, 20, 24, 28, 32, 36
sWAVE, sXCD, sJ, sNONCE = 3, 40, 41, 42
sMODE, sXCC = 94, 95
OOB = '0x7f000000'
def srd(b): return f"s[{b}:{b+3}]"

class Gen:
    def __init__(self, stop=99, stamps=False, p1_ahead=2, probe=None, **kw):
        self.a = Asm()
        self.stop = stop
        self.stamps = stamps
        self.p1_ahead = p1_ahead
        self.nstamp = 0
        self.fine = (stop == 1)
        self.nlab = 0
        self.probe = probe
        self.stubs = []
        self.opt = kw
        self.clk = 's_memrealtime' if kw.get('rt', 1) else 's_memtime'

    def lab(self, base):
        self.nlab += 1
        return f"L_{base}_{self.nlab}"

    def stamp(self):
        if not self.stamps: return
        k = self.nstamp
        self.nstamp += 1
        assert k < 32
        a = self.a
        a.I("s_waitcnt lgkmcnt(0)")
        a.I(f"{self.clk} s[68:69]")
        a.I("s_waitcnt lgkmcnt(0)")
        a.I(f"v_writelane_b32 v0, s68, {k}")

    def dump_stamps(self):
        if not self.stamps: return
        a = self.a
        a.drain()
        a.fence()
        if self.probe is not None:
            i, j = self.probe
            if j < 0: j += self.nstamp
            a.M(f'''
            v_readlane_b32 s44, v0, {j}
            v_readlane_b32 s45, v0, {i}
            s_nop 4
            s_sub_u32 s44, s44, s45
            {self.clk} s[68:69]
            s_waitcnt lgkmcnt(0)
            s_mov_b32 s45, s68
            L_probe:
            {self.clk} s[68:69]
            s_waitcnt lgkmcnt(0)
            s_sub_u32 s46, s68, s45
            s_cmp_lt_u32 s46, s44
            s_cbranch_scc1 L_probe
            ''')
            return
        a.M(f"""
        s_lshl_b32 s44, s2, 2
        s_add_u32 s44, s44, s{sWAVE}
        s_lshl_b32 s44, s44, 7
        s_add_u32 s44, s44, {TS_OFF}
        v_lshlrev_b32 v2, 2, v1
        s_mov_b64 exec, {hex((1 << self.nstamp) - 1)}
        buffer_store_dword v0, v2, {srd(sWS)}, s44 offen
        s_mov_b64 exec, -1
        """)
        a.drain()

    def prologue(self):
        a = self.a
        a.M(f"""
        s_cmp_ge_u32 s2, 256
        s_cbranch_scc1 L_end
        s_load_dwordx16 s[48:63], s[0:1], 0
        s_load_dwordx2 s[64:65], s[0:1], 64
        """)
        if self.stamps:
            a.I(f"{self.clk} s[92:93]"); self.nstamp = 1
        if self.opt.get("cpf", 1):
            a.M(f"""
            s_getpc_b64 s[4:5]
            s_lshr_b32 s{sJ}, s2, 3
            s_mul_i32 s6, s{sJ}, 20
            v_add_u32 v2, s6, v0
            v_lshlrev_b32 v2, 7, v2
            v_min_u32 v2, CODE_BYTES-64, v2
            v_cmp_gt_u32 vcc, 20, v0
            s_and_saveexec_b64 s[6:7], vcc
            s_cbranch_execz L_cpf
            """)
            a.raw("    global_load_dword v255, v2, s[4:5]")
            a.label("L_cpf")
            a.I("s_mov_b64 exec, -1")
            a.vm = [(-1, set(), None)]
        a.M(f"""
        v_lshrrev_b32 v2, 6, v0
        v_and_b32 v1, 63, v0
        v_readfirstlane_b32 s{sWAVE}, v2
        s_and_b32 s{sXCD}, s2, 7
        s_lshr_b32 s{sJ}, s2, 3
        s_getreg_b32 s{sXCC}, hwreg(HW_REG_XCC_ID)
        s_and_b32 s{sXCC}, s{sXCC}, 15
        s_lshl_b32 s{sXCC}, s{sXCC}, 1
        s_mov_b32 s{sX+2}, {2048*1280}
        s_mov_b32 s{sX+3}, 0x20000
        s_mov_b32 s{sWQKV+2}, {640*3840}
        s_mov_b32 s{sWQKV+3}, 0x20000
        s_mov_b32 s{sWO+2}, {640*1280}
        s_mov_b32 s{sWO+3}, 0x20000
        s_mov_b32 s{sW1+2}, {640*3456}
        s_mov_b32 s{sW1+3}, 0x20000
        s_mov_b32 s{sW2+2}, {1728*1280}
        s_mov_b32 s{sW2+3}, 0x20000
        s_mov_b32 s{sOUT+2}, {2048*1280}
        s_mov_b32 s{sOUT+3}, 0x20000
        s_mov_b32 s{sWS+2}, {WS_USED}
        s_mov_b32 s{sWS+3}, 0x20000
        s_mov_b32 s{sDBG+2}, 256
        s_mov_b32 s{sDBG+3}, 0x20000
        """)

    def prologue_finish(self):
        a = self.a
        a.M(f"""
        s_waitcnt lgkmcnt(0)
        s_mov_b64 s[{sX}:{sX+1}], s[48:49]
        s_mov_b64 s[{sWQKV}:{sWQKV+1}], s[50:51]
        s_mov_b64 s[{sWO}:{sWO+1}], s[52:53]
        s_mov_b64 s[{sW1}:{sW1+1}], s[56:57]
        s_mov_b64 s[{sW2}:{sW2+1}], s[58:59]
        s_mov_b64 s[{sOUT}:{sOUT+1}], s[60:61]
        s_mov_b64 s[{sDBG}:{sDBG+1}], s[62:63]
        s_mov_b64 s[{sWS}:{sWS+1}], s[64:65]
        """)
        if self.stamps: a.I("v_mov_b32 v0, s92")

    def publish_nonce(self):
        a = self.a
        skip = self.lab("nn")
        a.M(f"""
        s_or_b32 s44, s2, s{sWAVE}
        s_cmp_lg_u32 s44, 0
        s_cbranch_scc1 {skip}
        s_memrealtime s[68:69]
        s_waitcnt lgkmcnt(0)
        s_or_b32 s44, s68, 1
        v_mov_b32 v2, s44
        v_mov_b32 v3, 0
        s_mov_b64 exec, 1
        """)
        a.raw(f"    buffer_store_dword v2, v3, {srd(sDBG)}, 0 offen sc1")
        a.raw("    s_waitcnt vmcnt(0)")
        a.I("s_mov_b64 exec, -1")
        a.label(skip)

    def get_nonce(self, vt):
        a = self.a
        lp, done = self.lab("gn"), self.lab("gnd")
        a.I(f"v_mov_b32 v{vt+1}, 0")
        a.I(f"s_mov_b32 s44, 0")
        a.drain(); a.fence()
        a.label(lp)
        a.M(f"""
        buffer_load_dword v{vt}, v{vt+1}, {srd(sDBG)}, 0 offen sc1
        s_waitcnt vmcnt(0)
        v_readfirstlane_b32 s{sNONCE}, v{vt}
        s_add_u32 s44, s44, 1
        s_cmp_gt_u32 s44, {SPIN_MAX}
        s_cbranch_scc1 {done}
        s_cmp_eq_u32 s{sNONCE}, 0
        s_cbranch_scc1 {lp}
        """)
        a.label(done)
        a.fence(False)

    def signal(self, soff, vt, sc='sc1'):
        a = self.a
        a.M(f"""
        v_mov_b32 v{vt}, s{sNONCE}
        v_mov_b32 v{vt+1}, 0
        s_mov_b64 exec, 1
        buffer_store_dword v{vt}, v{vt+1}, {srd(sWS)}, s{soff} offen {sc}
        s_mov_b64 exec, -1
        """)

    def poll(self, vaddrs, vt):
        a = self.a
        lp, done = self.lab("pl"), self.lab("pld")
        a.I("s_mov_b32 s44, 0")
        a.fence()
        a.label(lp)
        for i, va in enumerate(vaddrs):
            a.I(f"buffer_load_dword v{vt+i}, v{va}, {srd(sWS)}, 0 offen sc1")
        a.I("s_waitcnt vmcnt(0)")
        a.I(f"v_cmp_ne_u32 vcc, s{sNONCE}, v{vt}")
        for i in range(1, len(vaddrs)):
            a.I(f"v_cmp_ne_u32 s[46:47], s{sNONCE}, v{vt+i}")
            a.I(f"s_or_b64 vcc, vcc, s[46:47]")
        a.M(f"""
        s_add_u32 s44, s44, 1
        s_cmp_gt_u32 s44, {SPIN_MAX}
        s_cbranch_scc1 {done}
        s_cmp_lg_u64 vcc, 0
        s_cbranch_scc1 {lp}
        """)
        a.label(done)
        a.fence(False)

    def dual(self, fn):
        a = self.a
        slow, back = self.lab("gm"), self.lab("gmb")
        a.I(f"s_cmp_lg_u32 s{sMODE}, 0")
        a.I(f"s_cbranch_scc1 {slow}")
        n0 = len(a.lines)
        fn()
        blk = a.lines[n0:]
        a.lines[n0:] = [l.replace(" SCX", "") for l in blk]
        a.label(back)
        labs = [l[:-1] for l in blk if l.endswith(":") and not l.startswith(" ")]
        def stub():
            a.label(slow)
            for l in blk:
                l = l.replace(" SCX", " sc1")
                for lb in labs: l = re.sub(r"\b" + lb + r"\b", lb + "_g", l)
                a.raw(l)
            a.raw(f"    s_branch {back}")
        self.stubs.append(stub)

    def xg_addr(self, vd):
        self.a.M(f"""
        v_and_b32 v{vd}, 31, v1
        v_lshl_add_u32 v{vd}, v{vd}, 3, s{sXCD}
        v_lshlrev_b32 v{vd}, 7, v{vd}
        v_add_u32 v{vd}, {XG_OFF}, v{vd}
        """)

    def xg_publish(self, vt):
        self.a.M(f"""
        s_lshl_b32 s66, s2, 7
        s_add_u32 s66, s66, {XG_OFF}
        s_cmp_eq_u32 s{sNONCE}, 0
        s_cselect_b32 s66, {OOB}, s66
        s_cmp_lg_u32 s{sWAVE}, 0
        s_cselect_b32 s66, {OOB}, s66
        s_xor_b32 s67, s{sNONCE}, s{sXCC}
        v_mov_b32 v{vt}, s67
        v_mov_b32 v{vt+1}, 0
        s_mov_b64 exec, 1
        buffer_store_dword v{vt}, v{vt+1}, {srd(sWS)}, s66 offen sc1
        s_mov_b64 exec, -1
        """)

    def xg_mode(self, vval):
        self.a.M(f"""
        s_xor_b32 s67, s{sNONCE}, s{sXCC}
        v_cmp_ne_u32 vcc, s67, v{vval}
        s_cmp_lg_u64 vcc, 0
        s_cselect_b32 s{sMODE}, 1, {self.opt.get('force_global', 0)}
        """)

    def check_flags(self, vval, vaddr):
        a = self.a
        slow, back = self.lab("cf"), self.lab("cfb")
        a.I(f"v_cmp_ne_u32 vcc, s{sNONCE}, v{vval}")
        a.I(f"s_cbranch_vccnz {slow}")
        a.label(back)
        def stub():
            a.vm = []; a.lg = []; a.hist = []
            a.label(slow)
            self.poll([vaddr], vval)
            a.I(f"s_branch {back}")
        self.stubs.append(stub)

    def bf16r(self, d, s):
        a = self.a
        a.I(f"v_cvt_pk_bf16_f32 v{d}, v{s}, v{s}")
        a.I(f"v_and_b32 v{d}, 0xffff0000, v{d}")

    def ln_stats(self, vsum, vsq, vr_, vm_, t):
        a = self.a
        a.I(f"v_mul_f32 v{vm_}, {hex(f2u(1.0/640))}, v{vsum}")
        a.I(f"v_mul_f32 v{t}, {hex(f2u(1.0/640))}, v{vsq}")
        a.I(f"v_fma_f32 v{t}, -v{vm_}, v{vm_}, v{t}")
        a.I(f"v_max_f32 v{t}, 0, v{t}")
        self.bf16r(t, t)
        a.I(f"v_add_f32 v{t}, {hex(f2u(1e-5))}, v{t}")
        self.bf16r(t, t)
        a.I(f"v_sqrt_f32 v{t}, v{t}")
        self.bf16r(t, t)
        a.I(f"v_rcp_f32 v{vr_}, v{t}")
        self.bf16r(vm_, vm_)

    def phase1(self):
        a = self.a
        AH = self.p1_ahead
        sRB, sCB, sKC, sT0, sT1 = 70, 71, 72, 73, 74
        sWT, sWF = 75, 76
        vDX, vDW, vRX, vRW = 160, 164, 168, 172
        vCS, vSEL = 36, 44
        ACC, XF, WF = 64, 128, 144
        skip = "L_p1_skip"
        a.M(f"""
        s_lshr_b32 s{sCB}, s{sJ}, 1
        s_and_b32 s67, s{sJ}, 1
        s_lshl_b32 s{sRB}, s{sXCD}, 1
        s_add_u32 s{sRB}, s{sRB}, s67
        """)
        rot = self.opt.get("rot", 10)
        if rot == 10:
            a.M(f"""
            s_mul_i32 s67, s67, 3
            s_add_u32 s{sKC}, s{sCB}, s67
            s_cmp_ge_u32 s{sKC}, 20
            s_cselect_b32 s67, 20, 0
            s_sub_u32 s{sKC}, s{sKC}, s67
            s_cmp_ge_u32 s{sKC}, 10
            s_cselect_b32 s67, 10, 0
            s_sub_u32 s{sKC}, s{sKC}, s67
            """)
        elif rot == 1:
            a.I(f"s_mov_b32 s{sKC}, 0")
        else:
            a.M(f"""
            s_add_u32 s{sKC}, s{sCB}, s67
            s_and_b32 s{sKC}, s{sKC}, {rot-1}
            s_mul_i32 s{sKC}, s{sKC}, 10
            s_lshr_b32 s{sKC}, s{sKC}, {rot.bit_length()-1}
            """)
        a.M(f"""
        s_lshl_b32 s66, s{sRB}, 7
        s_lshl_b32 s67, s{sWAVE}, 5
        s_add_u32 s66, s66, s67
        v_lshrrev_b32 v2, 3, v1
        v_add_u32 v2, s66, v2
        v_mul_u32_u24 v2, 1280, v2
        v_and_b32 v3, 7, v1
        v_lshrrev_b32 v4, 4, v1
        v_xor_b32 v3, v3, v4
        v_lshlrev_b32 v3, 4, v3
        v_xor_b32 v5, 64, v3
        v_add_u32 v{vDX}, v2, v3
        v_add_u32 v{vDX+1}, v2, v5
        v_add_u32 v{vDX+1}, {10240-1024}, v{vDX+1}
        v_add_u32 v{vDX+2}, {2*(10240-1024)}, v{vDX}
        v_add_u32 v{vDX+3}, {2*(10240-1024)}, v{vDX+1}
        """)
        a.M(f"""
        s_lshl_b32 s67, s{sWAVE}, 4
        v_add_u32 v2, s67, v4
        v_mul_u32_u24 v2, 3840, v2
        v_and_b32 v3, 15, v1
        v_lshlrev_b32 v5, 2, v4
        v_xor_b32 v3, v3, v5
        v_lshlrev_b32 v3, 4, v3
        s_lshl_b32 s67, s{sCB}, 8
        v_add3_u32 v{vDW}, v2, v3, s67
        v_add_u32 v{vDW+1}, {4*3840-1024}, v{vDW}
        v_add_u32 v{vDW+2}, {2*(4*3840-1024)}, v{vDW}
        v_add_u32 v{vDW+3}, {3*(4*3840-1024)}, v{vDW}
        """)
        self.prologue_finish()
        self.stamp()
        self.publish_nonce()
        a.M(f"""
        s_cmp_ge_u32 s{sJ}, 30
        s_cbranch_scc1 {skip}
        """)
        dma_last = {}
        def dma_setup_x(c):
            a.I(f"s_lshl_b32 s{sT0}, s{sKC}, 7")
            a.I(f"s_add_u32 m0, s77, {(c % 4) * 16384}")
        def dma_x(c, i):
            dma_last[c] = a.I(f"buffer_load_dwordx4 v{vDX+i}, {srd(sX)}, s{sT0} offen offset:{1024*i} lds")
        def dma_setup_w(c):
            a.I(f"s_mul_i32 s{sT1}, s{sKC}, {64*3840}")
            a.I(f"s_add_u32 m0, s77, {65536 + (c % 4) * 16384}")
        def dma_w(c, i):
            dma_last[c] = a.I(f"buffer_load_dwordx4 v{vDW+i}, {srd(sWQKV)}, s{sT1} offen offset:{1024*i} lds")
        def kc_next():
            a.I(f"s_add_u32 s{sKC}, s{sKC}, 1")
            a.I(f"s_cmp_eq_u32 s{sKC}, 10")
            a.I(f"s_cselect_b32 s{sKC}, 0, s{sKC}")
        def dma_items(c):
            it = [lambda: (dma_setup_x(c), dma_x(c, 0))] + [lambda i=i: dma_x(c, i) for i in (1, 2, 3)]
            it += [lambda: (dma_setup_w(c), dma_w(c, 0))] + [lambda i=i: dma_w(c, i) for i in (1, 2)]
            it += [lambda: (dma_w(c, 3), kc_next())]
            return it
        a.I(f"s_lshl_b32 s77, s{sWAVE}, 12")
        for c in range(AH + 1):
            for it in dma_items(c): it()
            if c == 0:
                a.M(f"""
                s_lshr_b32 s{sWT}, s{sWAVE}, 1
                s_and_b32 s{sWF}, s{sWAVE}, 1
                v_and_b32 v2, 31, v1
                v_lshrrev_b32 v3, 5, v1
                v_bfe_u32 v4, v1, 1, 3
                v_xor_b32 v4, v4, v3
                v_lshlrev_b32 v4, 4, v4
                v_lshl_add_u32 v4, v2, 7, v4
                s_lshl_b32 s66, s{sWT}, 13
                v_add_u32 v{vRX}, s66, v4
                v_xor_b32 v{vRX+1}, 32, v{vRX}
                v_xor_b32 v{vRX+2}, 64, v{vRX}
                v_xor_b32 v{vRX+3}, 96, v{vRX}
                """)
                a.M(f"""
                v_bfe_u32 v4, v1, 2, 2
                v_lshl_add_u32 v5, v3, 3, v4
                v_lshlrev_b32 v5, 8, v5
                s_lshl_b32 s66, s{sWF}, 1
                v_xor_b32 v4, s66, v4
                v_lshl_add_u32 v5, v4, 6, v5
                v_bfe_u32 v4, v1, 4, 1
                v_lshl_add_u32 v5, v4, 5, v5
                v_and_b32 v6, 3, v1
                v_lshl_add_u32 v5, v6, 3, v5
                v_add_u32 v{vRW}, 65536, v5
                v_xor_b32 v{vRW+1}, 64, v{vRW}
                """)
                a.M(f"""
                v_and_b32 v6, 15, v1
                v_lshlrev_b32 v4, 2, v4
                v_cmp_eq_u32 vcc, v6, v4
                v_mov_b32 v6, 0x3f803f80
                v_cndmask_b32 v{vSEL}, 0, v6, vcc
                v_cndmask_b32 v{vSEL+1}, 0, v6, vcc
                v_cndmask_b32 v{vSEL+2}, 0, v6, vcc
                v_cndmask_b32 v{vSEL+3}, 0, v6, vcc
                """)
                a.M(f"""
                v_lshlrev_b32 v33, 4, v2
                v_lshl_add_u32 v13, v3, 10, v33
                s_lshl_b32 s79, s{sRB}, 1
                s_add_u32 s79, s79, s{sWT}
                s_lshl_b32 s66, s79, 8
                s_lshl_b32 s67, s{sCB}, 4
                s_add_u32 s66, s66, s67
                s_lshl_b32 s67, s{sWF}, 3
                s_add_u32 s66, s66, s67
                s_lshl_b32 s78, s66, 10
                s_add_u32 s78, s78, {QKL_OFF}
                s_lshl_b32 s80, s79, 10
                s_add_u32 s80, s80, {S1_OFF}
                s_lshl_b32 s66, s{sCB}, 1
                s_add_u32 s66, s66, s{sWF}
                s_lshl_b32 s66, s66, 5
                s_add_u32 s66, s66, s79
                s_lshl_b32 s66, s66, 7
                s_add_u32 s81, s66, {F1_OFF}
                s_add_u32 s79, s78, 4096
                s_cmp_lt_u32 s{sCB}, 5
                s_cselect_b32 s82, {hex(f2u(QSCALE))}, 1.0
                v_mov_b32 v34, 0
                """)
                self.xg_addr(62)
            if self.fine: self.stamp()

        def reads(g):
            c, ks = divmod(g, 4)
            b = g & 1
            so = (c % 4) * 16384
            it = []
            for u in range(2):
                it.append(lambda u=u: a.I(f"ds_read_b128 {vr(XF+8*b+4*u,4)}, v{vRX+ks} offset:{so+4096*u}"))
            for u in range(2):
                for rd in range(2):
                    it.append(lambda u=u, rd=rd: a.I(f"ds_read_b64_tr_b16 {vr(WF+8*b+4*u+2*rd,2)}, v{vRW+u} offset:{so+ks*4096+rd*1024}"))
            return [it[0], it[2], it[3], it[1], it[4], it[5]]

        from gen2 import repack_setup
        rp_dma, rp_wait, rp_read, rp_store = repack_setup(self)
        from gen2 import phase2_setup
        phase2_setup(self)
        a.wait_vm(dma_last[0])
        a.I("s_barrier")
        self.stamp()
        for it in reads(0): it()
        pend = []
        ST = 48
        def stat_loads():
            a.I(f"buffer_load_dword v35, v34, {srd(sDBG)}, 0 offen sc1")
            for tu in range(2):
                r = a.I(f"buffer_load_dwordx4 {vr(ST+4*tu,4)}, v33, {srd(sWS)}, s80 offen offset:{512*tu} sc1")
            return r
        for g in range(40):
            c, ks = divmod(g, 4)
            b = g & 1
            X = [XF + 8*b, XF + 8*b + 4]
            W = [WF + 8*b, WF + 8*b + 4]
            rd = reads(g + 1) if g + 1 < 40 else []
            boundary = (ks == 3 and g + 1 < 40)
            a.I("s_waitcnt lgkmcnt(0)")
            order = [(0, 0), (0, 1), (1, 0), (1, 1)]
            for n, (fu, tu) in enumerate(order):
                d = ACC + 16 * (2*fu + tu)
                cc = "0" if g == 0 else vr(d, 16)
                a.I(f"v_mfma_f32_32x32x16_bf16 {vr(d,16)}, {vr(W[fu],4)}, {vr(X[tu],4)}, {cc}")
                if n == 0 and boundary:
                    a.wait_vm(dma_last[c + 1])
                    a.I("s_barrier")
                    if self.fine: self.stamp()
                    if c + 1 + AH < 10:
                        pend += dma_items(c + 1 + AH)
                    if c + 1 + AH == 10:
                        pend += rp_dma
                take = {0: 3, 1: 3, 2: 0, 3: 0}[n]
                for it in rd[:take]: it()
                rd = rd[take:]
                if n == 2:
                    for _ in range(2):
                        if pend: pend.pop(0)()
                    if g == 37:
                        a.I(f"buffer_load_dword v61, v62, {srd(sWS)}, 0 offen sc1")
                        stat_id = stat_loads()
                    if g == 6: a.I(f"buffer_load_dword v35, v34, {srd(sDBG)}, 0 offen sc1")
                    if g == self.opt.get("tq", 20) and self.opt.get("pt", 1):
                        a.I("v_lshlrev_b32 v2, 7, v1")
                        a.I(f"buffer_load_dword v3, v2, {srd(sWS)}, s78 offen sc1")
                    if g == 16:
                        a.I(f"v_readfirstlane_b32 s{sNONCE}, v35")
                        self.xg_publish(2)
                if n >= 2:
                    u = n - 2
                    cc = "0" if g == 0 else vr(vCS + 4*u, 4)
                    a.I(f"v_mfma_f32_16x16x32_bf16 {vr(vCS+4*u,4)}, {vr(vSEL,4)}, {vr(W[u],4)}, {cc}")
        assert not pend
        self.stamp()
        retry, ok = self.lab("st"), self.lab("sto")
        a.I("s_mov_b32 s44, 0")
        a.wait_vm(stat_id)
        a.fence()
        keep = list(a.vm)
        a.label(retry)
        a.M(f"""
        v_readfirstlane_b32 s{sNONCE}, v35
        s_add_u32 s44, s44, 1
        s_cmp_gt_u32 s44, {SPIN_MAX}
        s_cbranch_scc1 {ok}
        v_cmp_ne_u32 vcc, s{sNONCE}, v{ST+2}
        v_cmp_ne_u32 s[46:47], s{sNONCE}, v{ST+6}
        s_cmp_eq_u32 s{sNONCE}, 0
        s_cselect_b64 s[66:67], -1, 0
        s_or_b64 vcc, vcc, s[46:47]
        s_or_b64 vcc, vcc, s[66:67]
        s_cbranch_scc0 {ok}
        """)
        stat_loads()
        a.I("s_waitcnt vmcnt(0)")
        a.I(f"s_branch {retry}")
        a.label(ok)
        a.fence(False)
        a.vm = keep
        EA, EB = XF, XF + 8
        for u in range(2):
            c0 = vCS + 4*u
            a.M(f"""
            v_and_b32 v2, 0xffff0000, v{c0}
            v_sub_f32 v3, v{c0}, v2
            v_and_b32 v4, 0xffff0000, v3
            v_sub_f32 v3, v3, v4
            v_cvt_pk_bf16_f32 v{EA+4*u}, v2, v4
            v_cvt_pk_bf16_f32 v{EA+4*u+1}, v3, 0
            v_mov_b32 v{EA+4*u+2}, 0
            v_mov_b32 v{EA+4*u+3}, 0
            v_cvt_pk_bf16_f32 v{EB+4*u}, -v{ST+4*u+1}, -v{ST+4*u+1}
            v_mov_b32 v{EB+4*u+1}, v{EB+4*u}
            v_mov_b32 v{EB+4*u+2}, 0
            v_mov_b32 v{EB+4*u+3}, 0
            v_mul_f32 v{ST+4*u}, s82, v{ST+4*u}
            """)
        tiles = [(0, 0), (0, 1), (1, 0), (1, 1)]
        for fu, tu in tiles:
            d = ACC + 16 * (2*fu + tu)
            a.I(f"v_mfma_f32_32x32x16_bf16 {vr(d,16)}, {vr(EA+4*fu,4)}, {vr(EB+4*tu,4)}, {vr(d,16)}")
        P = 176
        self.xg_mode(61)
        def epi():
            for n, (fu, tu) in enumerate(tiles):
                d = ACC + 16 * (2*fu + tu)
                st = ST + 4*tu
                p = P + 8 * n
                for k in range(8):
                    a.I(f"v_pk_mul_f32 {vr(d+2*k,2)}, {vr(d+2*k,2)}, {vr(st,2)} op_sel:[0,0] op_sel_hi:[1,0]")
                for k in range(8):
                    a.I(f"v_cvt_pk_bf16_f32 v{p+k}, v{d+2*k}, v{d+2*k+1}")
                for pr in range(2):
                    a.I(f"v_permlane32_swap_b32 v{p+4*pr}, v{p+4*pr+2}")
                    a.I(f"v_permlane32_swap_b32 v{p+4*pr+1}, v{p+4*pr+3}")
                for pr in range(2):
                    a.I(f"buffer_store_dwordx4 {vr(p+4*pr,4)}, v13, {srd(sWS)}, s{78+fu} offen offset:{2048*pr+512*tu} SCX")
            for it in rp_read: it()
            a.I("s_waitcnt vmcnt(0)")
            self.signal(81, 2, "SCX")
        self.dual(epi)
        self.stamp()
        self.rp_store = rp_store
        self.g_store = [f"buffer_store_dwordx4 {vr(P+8*n+4*pr,4)}, v13, {srd(sWS)}, s{96+fu} offen offset:{2048*pr+512*tu} sc1"
                        for n, (fu, tu) in enumerate(tiles) for pr in range(2)]
        a.M(f"""
        s_sub_u32 s96, s78, {QKL_OFF}
        s_add_u32 s98, s81, {F0_OFF - F1_OFF}
        s_cmp_lt_u32 s{sCB}, 5
        s_cselect_b32 s96, {OOB}, s96
        s_cselect_b32 s98, {OOB}, s98
        s_add_u32 s97, s96, 4096
        s_waitcnt lgkmcnt(0)
        s_branch L_p1_done
        """)
        vm_keep = list(a.vm)
        a.vm = [(-1, set(), None)]
        a.label(skip)
        a.fence(False)
        from gen2 import colsum_w1, ln1_stats
        a.I("s_mov_b32 s100, 0x7f000000")
        a.I("s_mov_b32 s101, 0x7f000000")
        ln1_stats(self)
        colsum_w1(self)
        a.M(f"""
        s_mov_b32 s96, {OOB}
        s_mov_b32 s97, {OOB}
        s_mov_b32 s98, s4
        v_mov_b32 v13, 0
        """)
        phase2_setup(self)
        a.fence()
        a.label("L_p1_done")
        a.fence(False)
        a.vm = [(-1 - i, set(), None) for i in range(8)]
        a.lg = []

    def build(self):
        a = self.a
        self.prologue()
        self.phase1()
        if self.stop == 1:
            a.I("s_waitcnt vmcnt(0)")
        if self.stop >= 2:
            from gen2 import phase2, phase3, phase4, phase5
            phase2(self)
            if self.stop >= 3: phase3(self)
            if self.stop >= 4: phase4(self)
            if self.stop >= 5: phase5(self)
        self.dump_stamps()
        a.drain()
        a.label("L_end")
        a.I("s_endpgm")
        if self.stop >= 2:
            from gen2 import slow_path
            slow_path(self)
        for st in self.stubs: st()
        head = open(f"cdna_kernels/{NAME}.s.ref").read().split("; Override launch")[0]
        out = head + f"""; @launch grid=(256,1,1) block=(256,1,1) lds=163840
.amdgcn_target "amdgcn-amd-amdhsa--gfx950"
.text
.globl {KNAME}
.p2align 8
.type {KNAME},@function
{KNAME}:
""" + a.text() + f"""L_code_end:
.set CODE_BYTES, L_code_end-{KNAME}
.section .rodata,"a"
.p2align 6
.amdhsa_kernel {KNAME}
  .amdhsa_next_free_vgpr 512
  .amdhsa_next_free_sgpr 102
  .amdhsa_accum_offset 256
  .amdhsa_group_segment_fixed_size 0
  .amdhsa_kernarg_size 72
  .amdhsa_user_sgpr_count 2
  .amdhsa_user_sgpr_kernarg_segment_ptr 1
  .amdhsa_system_sgpr_workgroup_id_x 1
.end_amdhsa_kernel
"""
        return out

if __name__ == "__main__":
    import argparse
    ap = argparse.ArgumentParser()
    ap.add_argument("-o", default="out.s")
    ap.add_argument("--stop", type=int, default=99)
    ap.add_argument("--stamps", action="store_true")
    ap.add_argument("--ahead", type=int, default=2)
    ap.add_argument("--probe", default=None)
    ap.add_argument("--opt", default="")
    args = ap.parse_args()
    kw = {k: int(v) for k, v in (x.split('=') for x in args.opt.split(',') if x)}
    g = Gen(stop=args.stop, stamps=args.stamps or args.probe is not None, p1_ahead=args.ahead, probe=tuple(map(int, args.probe.split(':'))) if args.probe else None, **kw)
    s = g.build()
    open(args.o, "w").write(s)
    print(f"stamps {g.nstamp} instrs {g.a.nins} nops {g.a.nnop} autowaits {g.a.nwait} bytes {len(s)}")
```

```python
import sys, math, struct, re
from asmlib import Asm, vr

NAME = "sequential_preLN__mha_block__dense_activation_relu__prompt"
KNAME = NAME + "_kernel"

QKV_OFF = 0
QKL_OFF = 32 * 256 * 1024
O_OFF = 2 * 32 * 256 * 1024
H_OFF = O_OFF + 32 * 80 * 1024
H1_OFF = H_OFF + 32 * 80 * 1024
ST_OFF = H1_OFF + 32 * 216 * 1024
F1_OFF = ST_OFF + 2048 * 64
F2_OFF = F1_OFF + 1024 * 128
F3_OFF = F2_OFF + 1024 * 128
F4_OFF = F3_OFF + 1024 * 128
FR_OFF = F4_OFF + 1024 * 128
F0_OFF = FR_OFF + 1024 * 128
XG_OFF = F0_OFF + 1024 * 128
TS_OFF = XG_OFF + 256 * 128
CS_OFF = TS_OFF + 1024 * 128
S1_OFF = CS_OFF + 8192
WOF_OFF = S1_OFF + 2048 * 16
W1F_OFF = WOF_OFF + 20 * 40 * 1024
W2F_OFF = W1F_OFF + 20 * 112 * 1024
WS_USED = W2F_OFF + 54 * 40 * 1024
QOCT = 256

def f2u(x):
    return struct.unpack("<I", struct.pack("<f", x))[0]

QSCALE = math.log2(math.e) / math.sqrt(20.0)
SPIN_MAX = 200000

sX, sWQKV, sWO, sW1, sW2, sOUT, sWS, sDBG = 8, 12, 16, 20, 24, 28, 32, 36
sWAVE, sXCD, sJ, sNONCE = 3, 40, 41, 42
sMODE, sXCC = 94, 95
OOB = '0x7f000000'
def srd(b): return f"s[{b}:{b+3}]"

class Gen:
    def __init__(self, stop=99, stamps=False, p1_ahead=2, probe=None, **kw):
        self.a = Asm()
        self.stop = stop
        self.stamps = stamps
        self.p1_ahead = p1_ahead
        self.nstamp = 0
        self.fine = (stop == 1)
        self.nlab = 0
        self.probe = probe
        self.stubs = []
        self.opt = kw
        self.clk = 's_memrealtime' if kw.get('rt', 1) else 's_memtime'

    def lab(self, base):
        self.nlab += 1
        return f"L_{base}_{self.nlab}"

    def stamp(self):
        if not self.stamps: return
        k = self.nstamp
        self.nstamp += 1
        assert k < 32
        a = self.a
        a.I("s_waitcnt lgkmcnt(0)")
        a.I(f"{self.clk} s[68:69]")
        a.I("s_waitcnt lgkmcnt(0)")
        a.I(f"v_writelane_b32 v0, s68, {k}")

    def dump_stamps(self):
        if not self.stamps: return
        a = self.a
        a.drain()
        a.fence()
        if self.probe is not None:
            i, j = self.probe
            if j < 0: j += self.nstamp
            a.M(f'''
            v_readlane_b32 s44, v0, {j}
            v_readlane_b32 s45, v0, {i}
            s_nop 4
            s_sub_u32 s44, s44, s45
            ''')
            if "late" in self.opt:
                a.I(f"s_sub_u32 s44, s45, s{sNONCE}")
                if self.opt["late"] < 0: a.I(f"s_sub_u32 s44, s{sNONCE}, s45")
                a.I("s_max_i32 s44, s44, 0")
            if "jlo" in self.opt:
                a.I(f"s_cmp_lt_u32 s{sJ}, {self.opt['jlo']}")
                a.I("s_cselect_b32 s44, 0, s44")
                a.I(f"s_cmp_ge_u32 s{sJ}, {self.opt['jhi']}")
                a.I("s_cselect_b32 s44, 0, s44")
            if "xsel" in self.opt:
                a.I(f"s_cmp_lg_u32 s{sXCD}, {self.opt['xsel']}")
                a.I("s_cselect_b32 s44, 0, s44")
            a.M(f'''
            {self.clk} s[68:69]
            s_waitcnt lgkmcnt(0)
            s_mov_b32 s45, s68
            L_probe:
            {self.clk} s[68:69]
            s_waitcnt lgkmcnt(0)
            s_sub_u32 s46, s68, s45
            s_cmp_lt_u32 s46, s44
            s_cbranch_scc1 L_probe
            ''')
            return
        a.M(f"""
        s_lshl_b32 s44, s2, 2
        s_add_u32 s44, s44, s{sWAVE}
        s_lshl_b32 s44, s44, 7
        s_add_u32 s44, s44, {TS_OFF}
        v_lshlrev_b32 v2, 2, v1
        s_mov_b64 exec, {hex((1 << self.nstamp) - 1)}
        buffer_store_dword v0, v2, {srd(sWS)}, s44 offen
        s_mov_b64 exec, -1
        """)
        a.drain()

    def prologue(self):
        a = self.a
        a.M(f"""
        s_cmp_ge_u32 s2, 256
        s_cbranch_scc1 L_end
        s_load_dwordx16 s[48:63], s[0:1], 0
        s_load_dwordx2 s[64:65], s[0:1], 64
        """)
        if self.stamps:
            a.I(f"{self.clk} s[92:93]"); self.nstamp = 1
        if self.opt.get("cpf", 1):
            a.M(f"""
            s_getpc_b64 s[4:5]
            s_lshr_b32 s{sJ}, s2, 3
            s_mul_i32 s6, s{sJ}, 20
            v_add_u32 v2, s6, v0
            v_lshlrev_b32 v2, 7, v2
            v_min_u32 v2, CODE_BYTES-64, v2
            v_cmp_gt_u32 vcc, 20, v0
            s_and_saveexec_b64 s[6:7], vcc
            s_cbranch_execz L_cpf
            """)
            a.raw("    global_load_dword v255, v2, s[4:5]")
            a.label("L_cpf")
            a.I("s_mov_b64 exec, -1")
            a.vm = [(-1, set(), None)]
        a.M(f"""
        v_lshrrev_b32 v2, 6, v0
        v_and_b32 v1, 63, v0
        v_readfirstlane_b32 s{sWAVE}, v2
        s_and_b32 s{sXCD}, s2, 7
        s_lshr_b32 s{sJ}, s2, 3
        s_getreg_b32 s{sXCC}, hwreg(HW_REG_XCC_ID)
        s_and_b32 s{sXCC}, s{sXCC}, 15
        s_lshl_b32 s{sXCC}, s{sXCC}, 1
        s_mov_b32 s{sX+2}, {2048*1280}
        s_mov_b32 s{sX+3}, 0x20000
        s_mov_b32 s{sWQKV+2}, {640*3840}
        s_mov_b32 s{sWQKV+3}, 0x20000
        s_mov_b32 s{sWO+2}, {640*1280}
        s_mov_b32 s{sWO+3}, 0x20000
        s_mov_b32 s{sW1+2}, {640*3456}
        s_mov_b32 s{sW1+3}, 0x20000
        s_mov_b32 s{sW2+2}, {1728*1280}
        s_mov_b32 s{sW2+3}, 0x20000
        s_mov_b32 s{sOUT+2}, {2048*1280}
        s_mov_b32 s{sOUT+3}, 0x20000
        s_mov_b32 s{sWS+2}, {WS_USED}
        s_mov_b32 s{sWS+3}, 0x20000
        s_mov_b32 s{sDBG+2}, 256
        s_mov_b32 s{sDBG+3}, 0x20000
        """)

    def prologue_finish(self):
        a = self.a
        a.M(f"""
        s_waitcnt lgkmcnt(0)
        s_mov_b64 s[{sX}:{sX+1}], s[48:49]
        s_mov_b64 s[{sWQKV}:{sWQKV+1}], s[50:51]
        s_mov_b64 s[{sWO}:{sWO+1}], s[52:53]
        s_mov_b64 s[{sW1}:{sW1+1}], s[56:57]
        s_mov_b64 s[{sW2}:{sW2+1}], s[58:59]
        s_mov_b64 s[{sOUT}:{sOUT+1}], s[60:61]
        s_mov_b64 s[{sDBG}:{sDBG+1}], s[62:63]
        s_mov_b64 s[{sWS}:{sWS+1}], s[64:65]
        """)
        if self.stamps: a.I("v_mov_b32 v0, s92")

    def publish_nonce(self):
        a = self.a
        skip = self.lab("nn")
        a.M(f"""
        s_or_b32 s44, s2, s{sWAVE}
        s_cmp_lg_u32 s44, 0
        s_cbranch_scc1 {skip}
        s_memrealtime s[68:69]
        s_waitcnt lgkmcnt(0)
        s_or_b32 s44, s68, 1
        v_mov_b32 v2, s44
        v_mov_b32 v3, 0
        s_mov_b64 exec, 1
        """)
        a.raw(f"    buffer_store_dword v2, v3, {srd(sDBG)}, 0 offen sc1")
        a.raw("    s_waitcnt vmcnt(0)")
        a.I("s_mov_b64 exec, -1")
        a.label(skip)

    def get_nonce(self, vt):
        a = self.a
        lp, done = self.lab("gn"), self.lab("gnd")
        a.I(f"v_mov_b32 v{vt+1}, 0")
        a.I(f"s_mov_b32 s44, 0")
        a.drain(); a.fence()
        a.label(lp)
        a.M(f"""
        buffer_load_dword v{vt}, v{vt+1}, {srd(sDBG)}, 0 offen sc1
        s_waitcnt vmcnt(0)
        v_readfirstlane_b32 s{sNONCE}, v{vt}
        s_add_u32 s44, s44, 1
        s_cmp_gt_u32 s44, {SPIN_MAX}
        s_cbranch_scc1 {done}
        s_cmp_eq_u32 s{sNONCE}, 0
        s_cbranch_scc1 {lp}
        """)
        a.label(done)
        a.fence(False)

    def signal(self, soff, vt, sc='sc1'):
        a = self.a
        a.M(f"""
        v_mov_b32 v{vt}, s{sNONCE}
        v_mov_b32 v{vt+1}, 0
        s_mov_b64 exec, 1
        buffer_store_dword v{vt}, v{vt+1}, {srd(sWS)}, s{soff} offen {sc}
        s_mov_b64 exec, -1
        """)

    def poll(self, vaddrs, vt):
        a = self.a
        lp, done = self.lab("pl"), self.lab("pld")
        a.I("s_mov_b32 s44, 0")
        a.fence()
        a.label(lp)
        for i, va in enumerate(vaddrs):
            a.I(f"buffer_load_dword v{vt+i}, v{va}, {srd(sWS)}, 0 offen sc1")
        a.I("s_waitcnt vmcnt(0)")
        a.I(f"v_cmp_ne_u32 vcc, s{sNONCE}, v{vt}")
        for i in range(1, len(vaddrs)):
            a.I(f"v_cmp_ne_u32 s[46:47], s{sNONCE}, v{vt+i}")
            a.I(f"s_or_b64 vcc, vcc, s[46:47]")
        a.M(f"""
        s_add_u32 s44, s44, 1
        s_cmp_gt_u32 s44, {SPIN_MAX}
        s_cbranch_scc1 {done}
        s_cmp_lg_u64 vcc, 0
        s_cbranch_scc1 {lp}
        """)
        a.label(done)
        a.fence(False)

    def dual(self, fn):
        a = self.a
        slow, back = self.lab("gm"), self.lab("gmb")
        a.I(f"s_cmp_lg_u32 s{sMODE}, 0")
        a.I(f"s_cbranch_scc1 {slow}")
        n0 = len(a.lines)
        fn()
        blk = a.lines[n0:]
        a.lines[n0:] = [l.replace(" SCX", "") for l in blk]
        a.label(back)
        labs = [l[:-1] for l in blk if l.endswith(":") and not l.startswith(" ")]
        def stub():
            a.label(slow)
            for l in blk:
                l = l.replace(" SCX", " sc1")
                for lb in labs: l = re.sub(r"\b" + lb + r"\b", lb + "_g", l)
                a.raw(l)
            a.raw(f"    s_branch {back}")
        self.stubs.append(stub)

    def xg_addr(self, vd):
        self.a.M(f"""
        v_and_b32 v{vd}, 31, v1
        v_lshl_add_u32 v{vd}, v{vd}, 3, s{sXCD}
        v_lshlrev_b32 v{vd}, 7, v{vd}
        v_add_u32 v{vd}, {XG_OFF}, v{vd}
        """)

    def xg_publish(self, vt):
        self.a.M(f"""
        s_lshl_b32 s66, s2, 7
        s_add_u32 s66, s66, {XG_OFF}
        s_cmp_eq_u32 s{sNONCE}, 0
        s_cselect_b32 s66, {OOB}, s66
        s_cmp_lg_u32 s{sWAVE}, 0
        s_cselect_b32 s66, {OOB}, s66
        s_xor_b32 s67, s{sNONCE}, s{sXCC}
        v_mov_b32 v{vt}, s67
        v_mov_b32 v{vt+1}, 0
        s_mov_b64 exec, 1
        buffer_store_dword v{vt}, v{vt+1}, {srd(sWS)}, s66 offen sc1
        s_mov_b64 exec, -1
        """)

    def xg_mode(self, vval):
        self.a.M(f"""
        s_xor_b32 s67, s{sNONCE}, s{sXCC}
        v_cmp_ne_u32 vcc, s67, v{vval}
        s_cmp_lg_u64 vcc, 0
        s_cselect_b32 s{sMODE}, 1, {self.opt.get('force_global', 0)}
        """)

    def check_flags(self, vval, vaddr):
        a = self.a
        slow, back = self.lab("cf"), self.lab("cfb")
        a.I(f"v_cmp_ne_u32 vcc, s{sNONCE}, v{vval}")
        a.I(f"s_cbranch_vccnz {slow}")
        a.label(back)
        def stub():
            a.vm = []; a.lg = []; a.hist = []
            a.label(slow)
            self.poll([vaddr], vval)
            a.I(f"s_branch {back}")
        self.stubs.append(stub)

    def bf16r(self, d, s):
        a = self.a
        a.I(f"v_cvt_pk_bf16_f32 v{d}, v{s}, v{s}")
        a.I(f"v_and_b32 v{d}, 0xffff0000, v{d}")

    def ln_stats(self, vsum, vsq, vr_, vm_, t):
        a = self.a
        a.I(f"v_mul_f32 v{vm_}, {hex(f2u(1.0/640))}, v{vsum}")
        a.I(f"v_mul_f32 v{t}, {hex(f2u(1.0/640))}, v{vsq}")
        a.I(f"v_fma_f32 v{t}, -v{vm_}, v{vm_}, v{t}")
        a.I(f"v_max_f32 v{t}, 0, v{t}")
        self.bf16r(t, t)
        a.I(f"v_add_f32 v{t}, {hex(f2u(1e-5))}, v{t}")
        self.bf16r(t, t)
        a.I(f"v_sqrt_f32 v{t}, v{t}")
        self.bf16r(t, t)
        a.I(f"v_rcp_f32 v{vr_}, v{t}")
        self.bf16r(vm_, vm_)

    def phase1(self):
        a = self.a
        AH = self.p1_ahead
        sRB, sCB, sKC, sT0, sT1 = 70, 71, 72, 73, 74
        sWT, sWF = 75, 76
        vDX, vDW, vRX, vRW = 160, 164, 168, 172
        vCS, vSEL = 36, 44
        ACC, XF, WF = 64, 128, 144
        skip = "L_p1_skip"
        a.M(f"""
        s_lshr_b32 s{sCB}, s{sJ}, 1
        s_and_b32 s67, s{sJ}, 1
        s_lshl_b32 s{sRB}, s{sXCD}, 1
        s_add_u32 s{sRB}, s{sRB}, s67
        """)
        rot = self.opt.get("rot", 10)
        if rot == 10:
            a.M(f"""
            s_mul_i32 s67, s67, 3
            s_add_u32 s{sKC}, s{sCB}, s67
            s_cmp_ge_u32 s{sKC}, 20
            s_cselect_b32 s67, 20, 0
            s_sub_u32 s{sKC}, s{sKC}, s67
            s_cmp_ge_u32 s{sKC}, 10
            s_cselect_b32 s67, 10, 0
            s_sub_u32 s{sKC}, s{sKC}, s67
            """)
        elif rot == 1:
            a.I(f"s_mov_b32 s{sKC}, 0")
        else:
            a.M(f"""
            s_add_u32 s{sKC}, s{sCB}, s67
            s_and_b32 s{sKC}, s{sKC}, {rot-1}
            s_mul_i32 s{sKC}, s{sKC}, 10
            s_lshr_b32 s{sKC}, s{sKC}, {rot.bit_length()-1}
            """)
        a.M(f"""
        s_lshl_b32 s66, s{sRB}, 7
        s_lshl_b32 s67, s{sWAVE}, 5
        s_add_u32 s66, s66, s67
        v_lshrrev_b32 v2, 3, v1
        v_add_u32 v2, s66, v2
        v_mul_u32_u24 v2, 1280, v2
        v_and_b32 v3, 7, v1
        v_lshrrev_b32 v4, 4, v1
        v_xor_b32 v3, v3, v4
        v_lshlrev_b32 v3, 4, v3
        v_xor_b32 v5, 64, v3
        v_add_u32 v{vDX}, v2, v3
        v_add_u32 v{vDX+1}, v2, v5
        v_add_u32 v{vDX+1}, {10240-1024}, v{vDX+1}
        v_add_u32 v{vDX+2}, {2*(10240-1024)}, v{vDX}
        v_add_u32 v{vDX+3}, {2*(10240-1024)}, v{vDX+1}
        """)
        a.M(f"""
        s_lshl_b32 s67, s{sWAVE}, 4
        v_add_u32 v2, s67, v4
        v_mul_u32_u24 v2, 3840, v2
        v_and_b32 v3, 15, v1
        v_lshlrev_b32 v5, 2, v4
        v_xor_b32 v3, v3, v5
        v_lshlrev_b32 v3, 4, v3
        s_lshl_b32 s67, s{sCB}, 8
        v_add3_u32 v{vDW}, v2, v3, s67
        v_add_u32 v{vDW+1}, {4*3840-1024}, v{vDW}
        v_add_u32 v{vDW+2}, {2*(4*3840-1024)}, v{vDW}
        v_add_u32 v{vDW+3}, {3*(4*3840-1024)}, v{vDW}
        """)
        self.prologue_finish()
        self.stamp()
        self.publish_nonce()
        a.M(f"""
        s_cmp_ge_u32 s{sJ}, 30
        s_cbranch_scc1 {skip}
        """)
        dma_last = {}
        def dma_setup_x(c):
            a.I(f"s_lshl_b32 s{sT0}, s{sKC}, 7")
            a.I(f"s_add_u32 m0, s77, {(c % 4) * 16384}")
        def dma_x(c, i):
            dma_last[c] = a.I(f"buffer_load_dwordx4 v{vDX+i}, {srd(sX)}, s{sT0} offen offset:{1024*i} lds")
        def dma_setup_w(c):
            a.I(f"s_mul_i32 s{sT1}, s{sKC}, {64*3840}")
            a.I(f"s_add_u32 m0, s77, {65536 + (c % 4) * 16384}")
        def dma_w(c, i):
            dma_last[c] = a.I(f"buffer_load_dwordx4 v{vDW+i}, {srd(sWQKV)}, s{sT1} offen offset:{1024*i} lds")
        def kc_next():
            a.I(f"s_add_u32 s{sKC}, s{sKC}, 1")
            a.I(f"s_cmp_eq_u32 s{sKC}, 10")
            a.I(f"s_cselect_b32 s{sKC}, 0, s{sKC}")
        def dma_items(c):
            it = [lambda: (dma_setup_x(c), dma_x(c, 0))] + [lambda i=i: dma_x(c, i) for i in (1, 2, 3)]
            it += [lambda: (dma_setup_w(c), dma_w(c, 0))] + [lambda i=i: dma_w(c, i) for i in (1, 2)]
            it += [lambda: (dma_w(c, 3), kc_next())]
            return it
        a.I(f"s_lshl_b32 s77, s{sWAVE}, 12")
        for c in range(AH + 1):
            for it in dma_items(c): it()
            if c == 0:
                a.M(f"""
                s_lshr_b32 s{sWT}, s{sWAVE}, 1
                s_and_b32 s{sWF}, s{sWAVE}, 1
                v_and_b32 v2, 31, v1
                v_lshrrev_b32 v3, 5, v1
                v_bfe_u32 v4, v1, 1, 3
                v_xor_b32 v4, v4, v3
                v_lshlrev_b32 v4, 4, v4
                v_lshl_add_u32 v4, v2, 7, v4
                s_lshl_b32 s66, s{sWT}, 13
                v_add_u32 v{vRX}, s66, v4
                v_xor_b32 v{vRX+1}, 32, v{vRX}
                v_xor_b32 v{vRX+2}, 64, v{vRX}
                v_xor_b32 v{vRX+3}, 96, v{vRX}
                """)
                a.M(f"""
                v_bfe_u32 v4, v1, 2, 2
                v_lshl_add_u32 v5, v3, 3, v4
                v_lshlrev_b32 v5, 8, v5
                s_lshl_b32 s66, s{sWF}, 1
                v_xor_b32 v4, s66, v4
                v_lshl_add_u32 v5, v4, 6, v5
                v_bfe_u32 v4, v1, 4, 1
                v_lshl_add_u32 v5, v4, 5, v5
                v_and_b32 v6, 3, v1
                v_lshl_add_u32 v5, v6, 3, v5
                v_add_u32 v{vRW}, 65536, v5
                v_xor_b32 v{vRW+1}, 64, v{vRW}
                """)
                a.M(f"""
                v_and_b32 v6, 15, v1
                v_lshlrev_b32 v4, 2, v4
                v_cmp_eq_u32 vcc, v6, v4
                v_mov_b32 v6, 0x3f803f80
                v_cndmask_b32 v{vSEL}, 0, v6, vcc
                v_cndmask_b32 v{vSEL+1}, 0, v6, vcc
                v_cndmask_b32 v{vSEL+2}, 0, v6, vcc
                v_cndmask_b32 v{vSEL+3}, 0, v6, vcc
                """)
                a.M(f"""
                v_lshlrev_b32 v33, 4, v2
                v_lshl_add_u32 v13, v3, 10, v33
                s_lshl_b32 s79, s{sRB}, 1
                s_add_u32 s79, s79, s{sWT}
                s_lshl_b32 s66, s79, 8
                s_lshl_b32 s67, s{sCB}, 4
                s_add_u32 s66, s66, s67
                s_lshl_b32 s67, s{sWF}, 3
                s_add_u32 s66, s66, s67
                s_lshl_b32 s78, s66, 10
                s_add_u32 s78, s78, {QKL_OFF}
                s_lshl_b32 s80, s79, 10
                s_add_u32 s80, s80, {S1_OFF}
                s_lshl_b32 s66, s{sCB}, 1
                s_add_u32 s66, s66, s{sWF}
                s_lshl_b32 s66, s66, 5
                s_add_u32 s66, s66, s79
                s_lshl_b32 s66, s66, 7
                s_add_u32 s81, s66, {F1_OFF}
                s_add_u32 s79, s78, 4096
                s_cmp_lt_u32 s{sCB}, 5
                s_cselect_b32 s82, {hex(f2u(QSCALE))}, 1.0
                v_mov_b32 v34, 0
                """)
                self.xg_addr(62)
            if self.fine: self.stamp()

        def reads(g):
            c, ks = divmod(g, 4)
            b = g & 1
            so = (c % 4) * 16384
            it = []
            for u in range(2):
                it.append(lambda u=u: a.I(f"ds_read_b128 {vr(XF+8*b+4*u,4)}, v{vRX+ks} offset:{so+4096*u}"))
            for u in range(2):
                for rd in range(2):
                    it.append(lambda u=u, rd=rd: a.I(f"ds_read_b64_tr_b16 {vr(WF+8*b+4*u+2*rd,2)}, v{vRW+u} offset:{so+ks*4096+rd*1024}"))
            return [it[0], it[2], it[3], it[1], it[4], it[5]]

        from gen2 import repack_setup
        rp_dma, rp_wait, rp_read, rp_store = repack_setup(self)
        from gen2 import phase2_setup
        phase2_setup(self)
        a.wait_vm(dma_last[0])
        a.I("s_barrier")
        self.stamp()
        for it in reads(0): it()
        pend = []
        ST = 48
        def stat_loads():
            a.I(f"buffer_load_dword v35, v34, {srd(sDBG)}, 0 offen sc1")
            for tu in range(2):
                r = a.I(f"buffer_load_dwordx4 {vr(ST+4*tu,4)}, v33, {srd(sWS)}, s80 offen offset:{512*tu} sc1")
            return r
        for g in range(40):
            c, ks = divmod(g, 4)
            b = g & 1
            X = [XF + 8*b, XF + 8*b + 4]
            W = [WF + 8*b, WF + 8*b + 4]
            rd = reads(g + 1) if g + 1 < 40 else []
            boundary = (ks == 3 and g + 1 < 40)
            a.I("s_waitcnt lgkmcnt(0)")
            order = [(0, 0), (0, 1), (1, 0), (1, 1)]
            for n, (fu, tu) in enumerate(order):
                d = ACC + 16 * (2*fu + tu)
                cc = "0" if g == 0 else vr(d, 16)
                a.I(f"v_mfma_f32_32x32x16_bf16 {vr(d,16)}, {vr(W[fu],4)}, {vr(X[tu],4)}, {cc}")
                if n == 0 and boundary:
                    a.wait_vm(dma_last[c + 1])
                    a.I("s_barrier")
                    if self.fine: self.stamp()
                    if c + 1 + AH < 10:
                        pend += dma_items(c + 1 + AH)
                    if c + 1 + AH == 10:
                        pend += rp_dma
                take = {0: 3, 1: 3, 2: 0, 3: 0}[n]
                for it in rd[:take]: it()
                rd = rd[take:]
                if n == 2:
                    for _ in range(2):
                        if pend: pend.pop(0)()
                    if g == 37:
                        a.I(f"buffer_load_dword v61, v62, {srd(sWS)}, 0 offen sc1")
                        stat_id = stat_loads()
                    if g == 6: a.I(f"buffer_load_dword v35, v34, {srd(sDBG)}, 0 offen sc1")
                    if g == self.opt.get("tq", 20) and self.opt.get("pt", 1):
                        a.I("v_lshlrev_b32 v2, 7, v1")
                        a.I(f"buffer_load_dword v3, v2, {srd(sWS)}, s78 offen sc1")
                    if g == 16:
                        a.I(f"v_readfirstlane_b32 s{sNONCE}, v35")
                        self.xg_publish(2)
                if n >= 2:
                    u = n - 2
                    cc = "0" if g == 0 else vr(vCS + 4*u, 4)
                    a.I(f"v_mfma_f32_16x16x32_bf16 {vr(vCS+4*u,4)}, {vr(vSEL,4)}, {vr(W[u],4)}, {cc}")
        assert not pend
        self.stamp()
        retry, ok = self.lab("st"), self.lab("sto")
        a.I("s_mov_b32 s44, 0")
        a.wait_vm(stat_id)
        a.fence()
        keep = list(a.vm)
        a.label(retry)
        a.M(f"""
        v_readfirstlane_b32 s{sNONCE}, v35
        s_add_u32 s44, s44, 1
        s_cmp_gt_u32 s44, {SPIN_MAX}
        s_cbranch_scc1 {ok}
        v_cmp_ne_u32 vcc, s{sNONCE}, v{ST+2}
        v_cmp_ne_u32 s[46:47], s{sNONCE}, v{ST+6}
        s_cmp_eq_u32 s{sNONCE}, 0
        s_cselect_b64 s[66:67], -1, 0
        s_or_b64 vcc, vcc, s[46:47]
        s_or_b64 vcc, vcc, s[66:67]
        s_cbranch_scc0 {ok}
        """)
        stat_loads()
        a.I("s_waitcnt vmcnt(0)")
        a.I(f"s_branch {retry}")
        a.label(ok)
        a.fence(False)
        a.vm = keep
        EA, EB = XF, XF + 8
        for u in range(2):
            c0 = vCS + 4*u
            a.M(f"""
            v_and_b32 v2, 0xffff0000, v{c0}
            v_sub_f32 v3, v{c0}, v2
            v_and_b32 v4, 0xffff0000, v3
            v_sub_f32 v3, v3, v4
            v_cvt_pk_bf16_f32 v{EA+4*u}, v2, v4
            v_cvt_pk_bf16_f32 v{EA+4*u+1}, v3, 0
            v_mov_b32 v{EA+4*u+2}, 0
            v_mov_b32 v{EA+4*u+3}, 0
            v_cvt_pk_bf16_f32 v{EB+4*u}, -v{ST+4*u+1}, -v{ST+4*u+1}
            v_mov_b32 v{EB+4*u+1}, v{EB+4*u}
            v_mov_b32 v{EB+4*u+2}, 0
            v_mov_b32 v{EB+4*u+3}, 0
            v_mul_f32 v{ST+4*u}, s82, v{ST+4*u}
            """)
        tiles = [(0, 0), (0, 1), (1, 0), (1, 1)]
        for fu, tu in tiles:
            d = ACC + 16 * (2*fu + tu)
            a.I(f"v_mfma_f32_32x32x16_bf16 {vr(d,16)}, {vr(EA+4*fu,4)}, {vr(EB+4*tu,4)}, {vr(d,16)}")
        P = 176
        self.xg_mode(61)
        def epi():
            for n, (fu, tu) in enumerate(tiles):
                d = ACC + 16 * (2*fu + tu)
                st = ST + 4*tu
                p = P + 8 * n
                for k in range(8):
                    a.I(f"v_pk_mul_f32 {vr(d+2*k,2)}, {vr(d+2*k,2)}, {vr(st,2)} op_sel:[0,0] op_sel_hi:[1,0]")
                for k in range(8):
                    a.I(f"v_cvt_pk_bf16_f32 v{p+k}, v{d+2*k}, v{d+2*k+1}")
                for pr in range(2):
                    a.I(f"v_permlane32_swap_b32 v{p+4*pr}, v{p+4*pr+2}")
                    a.I(f"v_permlane32_swap_b32 v{p+4*pr+1}, v{p+4*pr+3}")
                for pr in range(2):
                    a.I(f"buffer_store_dwordx4 {vr(p+4*pr,4)}, v13, {srd(sWS)}, s{78+fu} offen offset:{2048*pr+512*tu} SCX")
            for it in rp_read: it()
            a.I("s_waitcnt vmcnt(0)")
            self.signal(81, 2, "SCX")
        self.dual(epi)
        self.stamp()
        self.rp_store = rp_store
        self.g_store = [f"buffer_store_dwordx4 {vr(P+8*n+4*pr,4)}, v13, {srd(sWS)}, s{96+fu} offen offset:{2048*pr+512*tu} sc1"
                        for n, (fu, tu) in enumerate(tiles) for pr in range(2)]
        a.M(f"""
        s_sub_u32 s96, s78, {QKL_OFF}
        s_add_u32 s98, s81, {F0_OFF - F1_OFF}
        s_cmp_lt_u32 s{sCB}, 5
        s_cselect_b32 s96, {OOB}, s96
        s_cselect_b32 s98, {OOB}, s98
        s_add_u32 s97, s96, 4096
        s_waitcnt lgkmcnt(0)
        s_branch L_p1_done
        """)
        vm_keep = list(a.vm)
        a.vm = [(-1, set(), None)]
        a.label(skip)
        a.fence(False)
        from gen2 import colsum_w1, ln1_stats
        a.I("s_mov_b32 s100, 0x7f000000")
        a.I("s_mov_b32 s101, 0x7f000000")
        ln1_stats(self)
        colsum_w1(self)
        a.M(f"""
        s_mov_b32 s96, {OOB}
        s_mov_b32 s97, {OOB}
        s_mov_b32 s98, s4
        v_mov_b32 v13, 0
        """)
        phase2_setup(self)
        a.fence()
        a.label("L_p1_done")
        a.fence(False)
        a.vm = [(-1 - i, set(), None) for i in range(8)]
        a.lg = []

    def build(self):
        a = self.a
        self.prologue()
        self.phase1()
        if self.stop == 1:
            a.I("s_waitcnt vmcnt(0)")
        if self.stop >= 2:
            from gen2 import phase2, phase3, phase4, phase5
            phase2(self)
            if self.stop >= 3: phase3(self)
            if self.stop >= 4: phase4(self)
            if self.stop >= 5: phase5(self)
        self.dump_stamps()
        a.drain()
        a.label("L_end")
        a.I("s_endpgm")
        if self.stop >= 2:
            from gen2 import slow_path
            slow_path(self)
        for st in self.stubs: st()
        head = open(f"cdna_kernels/{NAME}.s.ref").read().split("; Override launch")[0]
        out = head + f"""; @launch grid=(256,1,1) block=(256,1,1) lds=163840
.amdgcn_target "amdgcn-amd-amdhsa--gfx950"
.text
.globl {KNAME}
.p2align 8
.type {KNAME},@function
{KNAME}:
""" + a.text() + f"""L_code_end:
.set CODE_BYTES, L_code_end-{KNAME}
.section .rodata,"a"
.p2align 6
.amdhsa_kernel {KNAME}
  .amdhsa_next_free_vgpr 512
  .amdhsa_next_free_sgpr 102
  .amdhsa_accum_offset 256
  .amdhsa_group_segment_fixed_size 0
  .amdhsa_kernarg_size 72
  .amdhsa_user_sgpr_count 2
  .amdhsa_user_sgpr_kernarg_segment_ptr 1
  .amdhsa_system_sgpr_workgroup_id_x 1
.end_amdhsa_kernel
"""
        return out

if __name__ == "__main__":
    import argparse
    ap = argparse.ArgumentParser()
    ap.add_argument("-o", default="out.s")
    ap.add_argument("--stop", type=int, default=99)
    ap.add_argument("--stamps", action="store_true")
    ap.add_argument("--ahead", type=int, default=2)
    ap.add_argument("--probe", default=None)
    ap.add_argument("--opt", default="")
    args = ap.parse_args()
    kw = {k: int(v) for k, v in (x.split('=') for x in args.opt.split(',') if x)}
    g = Gen(stop=args.stop, stamps=args.stamps or args.probe is not None, p1_ahead=args.ahead, probe=tuple(map(int, args.probe.split(':'))) if args.probe else None, **kw)
    s = g.build()
    open(args.o, "w").write(s)
    print(f"stamps {g.nstamp} instrs {g.a.nins} nops {g.a.nnop} autowaits {g.a.nwait} bytes {len(s)}")
```

```python
import re

TRANS = ("v_exp_", "v_log_", "v_rcp_", "v_rsq_", "v_sqrt_", "v_sin_", "v_cos_")

def parse_reg(tok):
    t = tok.strip()
    t = re.sub(r"^(neg|abs)\((.*)\)$", r"\2", t)
    t = t.lstrip("-").strip("|")
    m = re.fullmatch(r"([vas])(\d+)", t)
    if m:
        return [(m.group(1), int(m.group(2)))]
    m = re.fullmatch(r"([vas])\[(\d+):(\d+)\]", t)
    if m:
        return [(m.group(1), i) for i in range(int(m.group(2)), int(m.group(3)) + 1)]
    if t == "vcc":
        return [("s", 106), ("s", 107)]
    if t == "exec":
        return [("s", 126), ("s", 127)]
    if t == "exec_lo":
        return [("s", 126)]
    if t == "exec_hi":
        return [("s", 127)]
    if t == "m0":
        return [("s", 124)]
    return []

class Ins:
    __slots__ = ("text", "op", "dst", "src", "kind", "passes", "srcc", "srcab", "states", "lds")

def split_ops(rest):
    parts = [p.strip() for p in rest.split(",")]
    out = []
    for p in parts:
        out.append(p)
    return out

def decode(text):
    i = Ins()
    i.text = text
    s = text.split(";")[0].strip()
    sp = s.split(None, 1)
    op = sp[0]
    rest = sp[1] if len(sp) > 1 else ""
    rest_nomod = re.sub(r"\b(op_sel|op_sel_hi|neg_lo|neg_hi)\s*:\s*\[[^\]]*\]", "", rest)
    ops = [p.strip() for p in rest_nomod.split(",")] if rest_nomod.strip() else []
    toks = []
    for p in ops:
        toks.append(p.split()[0] if p.split() else p)
    i.op = op
    i.dst, i.src = [], []
    i.passes = 0
    i.srcc, i.srcab = [], []
    i.states = 1
    i.lds = False
    R = [parse_reg(t) for t in toks]
    if op.startswith("v_mfma"):
        i.kind = "mfma"
        i.dst = R[0]
        i.srcab = R[1] + R[2]
        i.srcc = R[3]
        i.src = i.srcab + i.srcc
        if "32x32x16" in op: i.passes = 8
        elif "16x16x32" in op: i.passes = 4
        elif "32x32x4_2b" in op: i.passes = 16
        else: raise ValueError(op)
    elif op.startswith("v_"):
        i.kind = "valu"
        if op.startswith(TRANS): i.kind = "trans"
        if op.startswith("v_dot"): i.kind = "dot"
        if op.startswith("v_permlane"):
            i.kind = "perm"
            i.dst = R[0] + R[1]; i.src = R[0] + R[1]
        elif op.startswith("v_cmp"):
            i.dst = R[0]; i.src = sum(R[1:], [])
        elif op.startswith(("v_add_co", "v_sub_co", "v_addc_co", "v_subb_co")):
            i.dst = R[0] + R[1]; i.src = sum(R[2:], [])
        else:
            i.dst = R[0]; i.src = sum(R[1:], [])
            if op.startswith(("v_fmac", "v_dot2c", "v_pk_fmac")): i.src = i.src + R[0]
            if "dpp" in text or "row_" in text or "quad_perm" in text:
                i.kind = "dpp"; i.src = i.src + R[0]
        if op.startswith(("v_readfirstlane", "v_readlane")): i.kind = "readlane"
    elif op.startswith("ds_"):
        i.kind = "ds"
        if op.startswith(("ds_read", "ds_bpermute", "ds_permute", "ds_swizzle")):
            i.dst = R[0]; i.src = sum(R[1:], [])
        else:
            i.src = sum(R, [])
    elif op.startswith(("buffer_", "global_")):
        i.kind = "vmem"
        words = s.split()
        if op in ("buffer_wbl2", "buffer_inv"):
            pass
        elif "lds" in words[1:] or op.startswith("global_load_lds"):
            i.lds = True
            i.src = sum(R, []) + [("s", 124)]
        elif "load" in op:
            i.dst = R[0]; i.src = sum(R[1:], [])
        elif "atomic" in op:
            i.src = sum(R, [])
            if "sc0" in words: i.dst = R[0]
        else:
            i.src = sum(R, [])
    elif op.startswith("s_load") or op.startswith("s_memtime") or op.startswith("s_memrealtime"):
        i.kind = "smem"
        i.dst = R[0]; i.src = sum(R[1:], [])
    elif op == "s_nop":
        i.kind = "nop"; i.states = int(toks[0], 0) + 1
    elif op == "s_waitcnt":
        i.kind = "wait"
    elif op.startswith("s_"):
        i.kind = "salu"
        if op.startswith(("s_cmp", "s_cbranch", "s_branch", "s_barrier", "s_endpgm", "s_sleep", "s_setprio", "s_bitcmp", "s_setpc")):
            i.src = sum(R, [])
        else:
            i.dst = R[0] if R else []; i.src = sum(R[1:], [])
            if "saveexec" in op: i.dst = i.dst + [("s", 126), ("s", 127)]
    else:
        raise ValueError("unknown instruction: " + text)
    return i

VALU_KINDS = ("valu", "trans", "dot", "perm", "dpp", "readlane")

def need_states(p, c):
    n = 0
    pd = set(p.dst)
    cs, cd = set(c.src), set(c.dst)
    pv = {r for r in pd if r[0] in "va"}
    ps = {r for r in pd if r[0] == "s"}
    if p.kind == "mfma":
        big = {4: 8, 8: 12, 16: 20}[p.passes]
        if c.kind == "mfma":
            if pv & set(c.srcab): n = max(n, big)
            if pv & set(c.srcc):
                if p.dst == c.srcc and p.passes == c.passes: n = max(n, 0)
                else: n = max(n, {4: 6, 8: 10, 16: 18}[p.passes])
            elif pv & cd:
                n = max(n, {4: 6, 8: 10, 16: 18}[p.passes])
        elif c.kind in VALU_KINDS or c.kind in ("ds", "vmem"):
            if pv & (cs | cd): n = max(n, big)
        if c.kind in VALU_KINDS and set(p.srcc) & cd:
            n = max(n, {4: 3, 8: 7, 16: 15}[p.passes])
        if c.kind in ("ds", "vmem") and set(p.srcc) & cd:
            n = max(n, {4: 3, 8: 7, 16: 15}[p.passes])
    elif p.kind in VALU_KINDS:
        if c.kind == "mfma" and pv & cs: n = max(n, 3 if p.kind == "dot" else 2)
        if p.kind == "trans" and c.kind in VALU_KINDS and c.kind != "trans" and pv & cs: n = max(n, 1)
        if p.kind == "trans" and c.kind in ("ds", "vmem") and pv & cs: n = max(n, 1)
        if p.kind == "dot":
            if c.kind == "dot" and c.op == p.op:
                ab = set(c.src[:-1]) if not c.op.startswith("v_dot2c") else set(c.src[:-1])
                if pv & ab: n = max(n, 3)
            elif pv & (cs | cd): n = max(n, 3)
        if c.kind in ("perm", "dpp") and pv & cs: n = max(n, 2)
        if c.kind == "readlane" and pv & cs: n = max(n, 1)
        if ps:
            if c.kind == "vmem" and ps & cs: n = max(n, 5)
            if c.kind in VALU_KINDS and ps & cs: n = max(n, 4 if c.kind == "readlane" else 2)
            if c.kind == "salu" and ps & cs: n = max(n, 1)
            if c.kind == "smem" and ps & cs: n = max(n, 5)
        if ("op_sel" in p.text and not p.op.startswith("v_pk")) or "sdwa" in p.op:
            if c.kind in VALU_KINDS and pv & (cs | cd): n = max(n, 1)
    elif p.kind == "salu":
        if ("s", 124) in ps and c.kind == "vmem" and c.lds: n = max(n, 1)
    elif p.kind == "vmem":
        if ("store" in p.op) and ("x4" in p.op or "x3" in p.op):
            data = set(p.src[:4])
            if data & cd: n = max(n, 2 if c.kind in VALU_KINDS else 1)
    return n

class Asm:
    def __init__(self):
        self.lines = []
        self.hist = []
        self.vm = []
        self.lg = []
        self.nid = 0
        self.nins = 0
        self.nnop = 0
        self.nwait = 0
        self.capture = None

    def raw(self, text):
        self.lines.append(text)

    def comment(self, t):
        self.lines.append("    ; " + t)

    def label(self, name):
        self.lines.append(name + ":")

    def fence(self, nops=True):
        if nops:
            worst = 0
            dist = 0
            for p in reversed(self.hist[-24:]):
                w = {"mfma": {4: 8, 8: 12, 16: 20}.get(p.passes, 0)}.get(p.kind, 5 if p.kind in VALU_KINDS else 2)
                worst = max(worst, w - dist)
                dist += p.states
            while worst > 0:
                k = min(worst, 16)
                self._put(decode(f"s_nop {k-1}"))
                worst -= k
        self.hist = []

    def drain(self):
        if self.vm or self.lg:
            self.I("s_waitcnt vmcnt(0) lgkmcnt(0)")

    def _put(self, ins):
        self.lines.append("    " + ins.text)
        self.hist.append(ins)
        if len(self.hist) > 64: self.hist = self.hist[-32:]
        self.nins += 1

    def _apply_wait(self, text):
        m = re.search(r"vmcnt\((\d+)\)", text)
        if m:
            n = int(m.group(1))
            while len(self.vm) > n: self.vm.pop(0)
        m = re.search(r"lgkmcnt\((\d+)\)", text)
        if m:
            n = int(m.group(1))
            if n == 0: self.lg = []
            else:
                assert not any(x[2] for x in self.lg), "counted lgkmcnt with SMEM outstanding"
                while len(self.lg) > n: self.lg.pop(0)

    def _auto_wait(self, ins):
        regs = set(ins.src) | set(ins.dst)
        nv = None
        for k, (i, d, _) in enumerate(self.vm):
            if d & regs: nv = len(self.vm) - 1 - k
        nl = None
        for k, (i, d, sm) in enumerate(self.lg):
            if d & regs: nl = len(self.lg) - 1 - k
        if nl is not None and any(x[2] for x in self.lg): nl = 0
        parts = []
        if nv is not None: parts.append(f"vmcnt({min(nv, 63)})")
        if nl is not None: parts.append(f"lgkmcnt({min(nl, 15)})")
        if parts:
            t = "s_waitcnt " + " ".join(parts)
            self._apply_wait(t)
            self._put(decode(t))
            self.nwait += 1

    def I(self, text):
        if self.capture is not None:
            self.capture.append(text)
            return None
        ins = decode(text)
        if ins.kind == "wait":
            self._apply_wait(text)
            self._put(ins)
            return None
        self._auto_wait(ins)
        dist = 0
        need = 0
        for p in reversed(self.hist):
            n = need_states(p, ins)
            if n - dist > need: need = n - dist
            dist += p.states
            if dist >= 24: break
        while need > 0:
            k = min(need, 16)
            self._put(decode(f"s_nop {k-1}"))
            self.nnop += 1
            need -= k
        self._put(ins)
        if ins.kind == "vmem" and ins.op not in ("buffer_wbl2", "buffer_inv"):
            self.nid += 1
            self.vm.append((self.nid, set(ins.dst), None))
            assert len(self.vm) <= 63, "too many outstanding vmem"
            return self.nid
        if ins.kind == "ds":
            self.nid += 1
            self.lg.append((self.nid, set(ins.dst), False))
            return self.nid
        if ins.kind == "smem":
            self.nid += 1
            self.lg.append((self.nid, set(ins.dst), True))
            return self.nid
        return None

    def wait_vm(self, opid):
        for k, (i, d, _) in enumerate(self.vm):
            if i == opid:
                self.I(f"s_waitcnt vmcnt({min(len(self.vm) - 1 - k, 63)})")
                return

    def wait_lg(self, opid):
        for k, (i, d, sm) in enumerate(self.lg):
            if i == opid:
                n = len(self.lg) - 1 - k
                if any(x[2] for x in self.lg): n = 0
                self.I(f"s_waitcnt lgkmcnt({min(n, 15)})")
                return

    def M(self, block):
        for l in block.strip().split("\n"):
            l = l.strip()
            if not l or l.startswith(";"):
                continue
            if l.endswith(":"):
                self.label(l[:-1])
            else:
                self.I(l)

    def text(self):
        return "\n".join(self.lines) + "\n"

def vr(b, n=1, f="v"):
    return f"{f}{b}" if n == 1 else f"{f}[{b}:{b+n-1}]"
```

```python
from asmlib import vr
from gen import *

SLOT = 14336
NSLOT = 5
RING = 163840 - NSLOT * SLOT
RED = 163840 - 61440
FC_OFF = F1_OFF + 960 * 128

sH, sQB, sPAR, sB3, sBLK = 43, 45, 48, 49, 50
sCB3, sRB64 = 51, 52
sW1S = 53
sKVS = 54
sQS = 55
sT0, sT1 = 56, 57
sKVD = 58
sW2S, sWOS = 59, 60
vXR = 160
sOS = 90
sOWN = 6
vH = 222

def w2reg(step, f):
    q = (step * 5 + f) * 4
    return ("a", q) if q < 256 else ("v", 232 + q - 256)

def worege(st, f):
    return 172 + 20*st + 4*f if st < 3 else 52 + 20*(st-3) + 4*f

def repack_setup(g):
    a = g.a
    sR = 96
    a.M(f"""
    s_mul_i32 s83, s2, 3
    s_add_u32 s83, s83, s{sWAVE}
    s_cmp_eq_u32 s{sWAVE}, 3
    s_cselect_b32 s83, 1023, s83
    s_lshl_b32 s88, s83, 7
    s_add_u32 s88, s88, {FR_OFF}
    s_mov_b32 s85, {W2F_OFF}
    s_movk_i32 s86, 1280
    s_movk_i32 s87, 13108
    s_cmp_lt_u32 s83, 270
    s_cselect_b64 s[{sR}:{sR+1}], s[{sW2}:{sW2+1}], s[{sWO}:{sWO+1}]
    s_cselect_b32 s{sR+2}, s{sW2+2}, s{sWO+2}
    s_cselect_b32 s84, 0, 270
    s_cselect_b32 s85, s85, {WOF_OFF}
    s_cmp_lt_u32 s83, 370
    s_cselect_b64 s[{sR}:{sR+1}], s[{sR}:{sR+1}], s[{sW1}:{sW1+1}]
    s_cselect_b32 s{sR+2}, s{sR+2}, {640*3456}
    s_cselect_b32 s84, s84, 370
    s_cselect_b32 s85, s85, {W1F_OFF}
    s_cselect_b32 s86, s86, 3456
    s_cselect_b32 s87, s87, 4682
    s_cselect_b32 s89, 5, 14
    s_mov_b32 s{sR+3}, 0x20000
    s_sub_u32 s84, s83, s84
    s_lshl_b32 s90, s84, 13
    s_add_u32 s85, s85, s90
    s_mul_i32 s87, s87, s84
    s_lshr_b32 s87, s87, 16
    s_mul_i32 s89, s89, s87
    s_sub_u32 s84, s84, s89
    s_mul_i32 s87, s87, s86
    s_lshl_b32 s87, s87, 5
    s_lshl_b32 s84, s84, 8
    s_add_u32 s87, s87, s84
    s_cmp_ge_u32 s83, 650
    s_cselect_b32 s{sR+2}, 0, s{sR+2}
    s_cselect_b32 s100, 0x7f000000, s85
    s_cselect_b32 s101, 0x7f000000, s88
    s_lshl_b32 s89, s86, 2
    s_sub_u32 s89, s89, 1024
    s_lshl_b32 s83, s{sWAVE}, 13
    s_add_u32 s83, s83, 131072
    v_lshrrev_b32 v2, 4, v1
    v_mul_u32_u24 v3, s86, v2
    v_and_b32 v4, 15, v1
    v_lshlrev_b32 v5, 1, v2
    v_xor_b32 v4, v4, v5
    v_lshlrev_b32 v4, 4, v4
    v_add_u32 v56, v3, v4
    v_xor_b32 v4, 128, v4
    v_add_u32 v57, v3, v4
    v_bfe_u32 v3, v1, 2, 2
    v_lshl_add_u32 v4, v2, 3, v3
    v_lshlrev_b32 v4, 8, v4
    v_bfe_u32 v5, v1, 2, 3
    v_lshl_add_u32 v4, v5, 5, v4
    v_and_b32 v5, 3, v1
    v_lshl_add_u32 v4, v5, 3, v4
    v_add_u32 v58, s83, v4
    """)
    last = [None]
    def dma(i):
        if i % 4 == 0:
            a.I(f"s_add_u32 m0, s83, {1024*i}")
        if i == 4: a.I("s_add_u32 s87, s87, 4096")
        if i > 0: a.I("s_add_u32 s87, s87, s89")
        last[0] = a.I(f"buffer_load_dwordx4 v{56+((i>>1)&1)}, {srd(sR)}, s87 offen offset:{1024*(i%4)} lds")
    RP = 208
    def rd(t):
        a.I(f"v_xor_b32 v60, {32*t}, v58")
        for r in range(2):
            a.I(f"ds_read_b64_tr_b16 {vr(RP+4*t+2*r,2)}, v60 offset:{1024*r}")
    def st(t):
        if t == 4: a.I("s_add_u32 s100, s100, 4096")
        a.I(f"buffer_store_dwordx4 {vr(RP+4*t,4)}, v16, {srd(sWS)}, s100 offen offset:{1024*(t%4)} sc1")
    return ([lambda i=i: dma(i) for i in range(8)], lambda: a.wait_vm(last[0]),
            [lambda t=t: rd(t) for t in range(8)], [lambda t=t: st(t) for t in range(8)])

def w1f_dma(g, sub, vlin):
    a = g.a
    def p(k):
        a.I(f"s_add_u32 m0, s7, {sub*4*7168 + 4096*k}")
        a.I(f"s_add_u32 s{sT1}, s{sW1S}, {sub*4*112*1024 + 4096*k}")
    def f(i):
        return a.I(f"buffer_load_dwordx4 v{vlin}, {srd(sWS)}, s{sT1} offen offset:{1024*(i%4)} sc1 lds")
    return [(lambda: p(0), lambda: (f(0), f(1))), (None, lambda: (f(2), f(3))), (lambda: p(1), lambda: (f(4), f(5))), (None, lambda: f(6))]

def wb_l2(g):
    a = g.a
    sk = g.lab("wb")
    a.I(f"s_or_b32 s66, s{sJ}, s{sWAVE}")
    a.I(f"s_cbranch_scc1 {sk}")
    a.raw("    buffer_wbl2 sc1")
    a.label(sk)

def run(items):
    for pre, fn in items:
        if pre: pre()
        fn()

def tr_addr(g, vd, stride):
    a = g.a
    a.M(f"""
    v_bfe_u32 v2, v1, 2, 3
    v_lshrrev_b32 v3, 5, v1
    v_lshl_add_u32 v2, v3, 4, v2
    v_mul_u32_u24 v2, {stride}, v2
    v_and_b32 v3, 3, v1
    v_lshl_add_u32 v{vd}, v3, 3, v2
    """)

def w1_addrs(g, vbase, scb):
    a = g.a
    a.I(f"s_mul_i32 s66, s{scb}, 224")
    for i in range(7):
        a.M(f"""
        v_add_u32 v2, {64*i}, v1
        v_mul_u32_u24 v3, 4682, v2
        v_lshrrev_b32 v3, 16, v3
        v_mul_u32_u24 v4, 14, v3
        v_sub_u32 v4, v2, v4
        v_and_b32 v5, 0x13, v3
        v_bfe_u32 v6, v3, 2, 1
        v_lshl_add_u32 v5, v6, 3, v5
        v_bfe_u32 v6, v3, 3, 1
        v_lshl_add_u32 v5, v6, 2, v5
        v_mul_u32_u24 v5, 3456, v5
        v_lshl_add_u32 v5, v4, 4, v5
        v_add_u32 v{vbase+i}, s66, v5
        """)
        if i % 4:
            a.I(f"v_subrev_u32 v{vbase+i}, {1024*(i%4)}, v{vbase+i}")

def w1_dma(g, vbase, sub):
    a = g.a
    a.M(f"""
    s_add_u32 s66, s{sWAVE}, {4*sub}
    s_mul_i32 s67, s66, {32*3456}
    s_mul_i32 s66, s66, 7168
    s_mov_b32 m0, s66
    """)
    last = None
    for i in range(7):
        if i == 4:
            a.I("s_add_u32 m0, s66, 4096")
        last = a.I(f"buffer_load_dwordx4 v{vbase+i}, {srd(sW1)}, s67 offen offset:{1024*(i%4)} lds")
    return last

def colsum_w1_issue(g):
    a = g.a
    a.M(f"""
    s_sub_u32 s43, s{sJ}, 30
    s_lshl_b32 s43, s43, 3
    s_add_u32 s43, s43, s{sXCD}
    """)
    w1_addrs(g, 200, 43)

def colsum_w1(g):
    a = g.a
    a.I("s_mov_b32 s45, s43")
    tr_addr(g, 24, 224)
    a.M(f"""
    s_mul_i32 s66, s{sWAVE}, 7168
    v_add_u32 v24, s66, v24
    v_add_u32 v25, {2*28672}, v24
    v_add_u32 v26, {4*28672}, v24
    v_mov_b32 v28, 0x3f803f80
    v_mov_b32 v29, 0x3f803f80
    v_mov_b32 v30, 0x3f803f80
    v_mov_b32 v31, 0x3f803f80
    """)
    for sub in range(5):
        a.wait_vm(g.cs_ids[sub])
        for f in range(7):
            for rd in range(2):
                a.I(f"ds_read_b64_tr_b16 {vr(64+4*f+2*rd,2)}, v{24+sub//2} offset:{(sub%2)*28672+rd*1792+f*32}")
        for f in range(7):
            cc = "0" if sub == 0 else vr(32+4*f, 4)
            a.I(f"v_mfma_f32_16x16x32_bf16 {vr(32+4*f,4)}, {vr(64+4*f,4)}, v[28:31], {cc}")
    a.M(f"""
    s_barrier
    s_mul_i32 s66, s{sWAVE}, 7168
    v_lshl_add_u32 v24, v1, 4, s66
    v_lshlrev_b32 v25, 4, v1
    """)
    for f in range(7):
        a.I(f"ds_write_b128 v24, {vr(32+4*f,4)} offset:{1024*f}")
    a.I("s_waitcnt lgkmcnt(0)")
    a.I("s_barrier")
    for w in range(4):
        for f in range(7):
            a.I(f"ds_read_b128 {vr(64+28*w+4*f,4)}, v25 offset:{7168*w+1024*f}")
    for r in range(28):
        a.I(f"v_add_f32 v{64+r}, v{64+r}, v{92+r}")
        a.I(f"v_add_f32 v{120+r}, v{120+r}, v{148+r}")
        a.I(f"v_add_f32 v{64+r}, v{64+r}, v{120+r}")
    a.M(f"""
    v_lshrrev_b32 v24, 4, v1
    v_lshlrev_b32 v24, 4, v24
    s_lshl_b32 s66, s45, 9
    s_add_u32 s66, s66, {CS_OFF}
    s_mov_b32 exec_lo, 0x00010001
    s_mov_b32 exec_hi, 0x00010001
    """)
    for f in range(7):
        a.I(f"buffer_store_dwordx4 {vr(64+4*f,4)}, v24, {srd(sWS)}, s66 offen offset:{64*f} sc1")
    a.I("s_mov_b64 exec, -1")
    a.M(f"""
    s_lshl_b32 s4, s45, 7
    s_add_u32 s4, s4, {FC_OFF}
    """)

vKV, vK0, vK1, vV, vQ0 = 16, 24, 25, 26, 28
def phase2_setup(g):
    a = g.a
    a.M(f"""
    s_lshr_b32 s66, s{sJ}, 3
    s_lshl_b32 s{sRB64}, s{sXCD}, 2
    s_add_u32 s{sRB64}, s{sRB64}, s66
    s_mov_b32 s{sH}, s{sRB64}
    s_and_b32 s{sCB3}, s{sJ}, 7
    s_mov_b32 s{sQB}, s{sCB3}
    s_and_b32 s{sPAR}, s{sH}, 1
    s_lshr_b32 s66, s{sH}, 1
    s_mul_i32 s66, s66, 5
    s_lshl_b32 s67, s{sPAR}, 1
    s_add_u32 s{sB3}, s66, s67
    s_lshl_b32 s{sBLK}, s{sQB}, 2
    s_add_u32 s{sBLK}, s{sBLK}, s{sWAVE}
    s_lshr_b32 s61, s{sWAVE}, 1
    s_and_b32 s62, s{sWAVE}, 1
    """)
    a.M(f"""
    s_lshr_b32 s66, s{sB3}, 3
    s_add_u32 s67, s{sB3}, 2
    s_lshr_b32 s67, s67, 3
    s_sub_u32 s67, s67, s66
    v_bfe_u32 v2, v1, 4, 1
    v_mul_u32_u24 v2, s67, v2
    v_add_u32 v2, s66, v2
    s_mul_i32 s63, s61, 10
    s_add_u32 s63, s63, 10
    v_add_u32 v3, s63, v2
    v_and_b32 v4, 15, v1
    v_lshl_add_u32 v4, v4, 1, s62
    v_lshl_add_u32 v5, v3, 5, v4
    v_lshlrev_b32 v5, 7, v5
    v_add_u32 v19, {F1_OFF}, v5
    v_and_b32 v4, 3, v4
    s_lshl_b32 s63, s{sQB}, 2
    v_add_u32 v4, s63, v4
    v_lshl_add_u32 v3, v3, 5, v4
    v_lshl_add_u32 v2, v2, 5, s{sBLK}
    v_cmp_gt_u32 vcc, 32, v1
    v_cndmask_b32 v2, v2, v3, vcc
    v_lshlrev_b32 v2, 7, v2
    v_add_u32 v30, {F1_OFF}, v2
    """)
    a.M(f"""
    s_lshl_b32 s66, s61, 2
    v_lshlrev_b32 v{vKV}, 4, v1
    v_xor_b32 v2, s66, v1
    v_lshlrev_b32 v{vKV+1}, 4, v2
    s_lshl_b32 s66, s61, 3
    v_xor_b32 v2, s66, v1
    v_lshlrev_b32 v{vKV+2}, 4, v2
    s_mul_i32 s66, s61, 80
    s_add_u32 s66, s66, 80
    s_add_u32 s66, s66, s{sB3}
    s_lshl_b32 s67, s62, 8
    s_add_u32 s66, s66, s67
    s_lshl_b32 s67, s{sQB}, 10
    s_add_u32 s66, s66, s67
    s_lshl_b32 s{sKVS}, s66, 10
    s_mul_i32 s{sKVD}, s62, 7168
    s_mul_i32 s66, s61, 3072
    s_add_u32 s{sKVD}, s{sKVD}, s66
    s_add_u32 s{sKVD}, s{sKVD}, {RING}
    """)
    a.M(f"""
    v_and_b32 v2, 31, v1
    v_lshrrev_b32 v3, 5, v1
    v_lshlrev_b32 v2, 4, v2
    v_add_u32 v4, s{sPAR}, v3
    v_lshl_add_u32 v{vQ0}, v4, 10, v2
    v_add_u32 v{vK0}, {RING}, v{vQ0}
    s_cmp_eq_u32 s{sPAR}, 0
    s_cselect_b32 s63, 2048, 0
    v_add_u32 v31, s63, v2
    v_add_u32 v4, 6144, v2
    v_cndmask_b32 v{vK1}, v4, v31, vcc
    v_add_u32 v{vK1}, {RING}, v{vK1}
    """)
    a.M(f"""
    v_bfe_u32 v4, v1, 4, 1
    v_and_b32 v5, 3, v1
    v_lshl_add_u32 v4, v4, 2, v5
    v_lshrrev_b32 v5, 1, v4
    v_add_u32 v6, s{sPAR}, v5
    s_lshr_b32 s63, s63, 10
    v_mov_b32 v7, s63
    v_cmp_eq_u32 vcc, 2, v5
    v_cndmask_b32 v6, v6, v7, vcc
    v_and_b32 v8, 1, v4
    v_xor_b32 v9, s{sPAR}, v8
    v_cndmask_b32 v8, v8, v9, vcc
    v_cmp_eq_u32 vcc, 3, v5
    v_cndmask_b32 v6, v6, v5, vcc
    v_bfe_u32 v9, v1, 2, 2
    v_lshl_add_u32 v9, v3, 2, v9
    v_lshlrev_b32 v10, 2, v6
    v_xor_b32 v9, v9, v10
    v_lshlrev_b32 v9, 4, v9
    v_lshl_add_u32 v9, v6, 10, v9
    v_lshl_add_u32 v9, v8, 3, v9
    v_add_u32 v{vV}, {RING+3072}, v9
    v_xor_b32 v{vV+1}, 128, v{vV}
    """)
    a.M(f"""
    s_mul_i32 s66, s{sCB3}, 5
    s_mul_i32 s67, s{sWAVE}, {14*40}
    s_add_u32 s67, s67, s66
    s_lshl_b32 s67, s67, 10
    s_add_u32 s{sW2S}, s67, {W2F_OFF}
    s_mul_i32 s67, s{sWAVE}, {5*40}
    s_add_u32 s67, s67, s66
    s_lshl_b32 s67, s67, 10
    s_add_u32 s{sWOS}, s67, {WOF_OFF}
    s_and_b32 s5, s{sJ}, 15
    s_mul_i32 s63, s5, 7
    s_mul_i32 s67, s{sWAVE}, 112
    s_add_u32 s67, s67, s63
    s_lshl_b32 s67, s67, 10
    s_add_u32 s{sW1S}, s67, {W1F_OFF}
    s_mul_i32 s7, s{sWAVE}, 7168
    v_and_b32 v2, 1, v1
    v_lshrrev_b32 v3, 1, v1
    v_lshl_add_u32 v4, v2, 2, s66
    v_lshrrev_b32 v4, 3, v4
    v_mul_u32_u24 v5, 6, v2
    v_add_u32 v5, s63, v5
    v_lshrrev_b32 v5, 3, v5
    s_mul_i32 s67, s{sWAVE}, 14
    v_add_u32 v6, s67, v3
    v_min_u32 v6, 53, v6
    v_mad_u32_u24 v6, v6, 5, v4
    s_mul_i32 s67, s{sWAVE}, 5
    s_add_u32 s67, s67, {54-14}
    v_add_u32 v7, s67, v3
    v_mad_u32_u24 v7, v7, 5, v4
    v_cmp_le_u32 vcc, 14, v3
    v_cndmask_b32 v6, v6, v7, vcc
    v_subrev_u32 v7, 19, v3
    v_min_u32 v7, 4, v7
    v_lshl_add_u32 v7, v7, 2, s{sWAVE}
    v_mad_u32_u24 v7, v7, 14, v5
    v_add_u32 v7, 370, v7
    v_cmp_le_u32 vcc, 19, v3
    v_cndmask_b32 v6, v6, v7, vcc
    v_lshlrev_b32 v6, 7, v6
    v_add_u32 v29, {FR_OFF}, v6
    s_add_u32 s{sOWN}, s{sWAVE}, s{sCB3}
    s_and_b32 s{sOWN}, s{sOWN}, 3
    s_add_u32 s67, s{sOWN}, 1
    s_and_b32 s67, s67, 3
    s_lshl_b32 s66, s{sRB64}, 2
    s_add_u32 s66, s66, s67
    s_lshl_b32 s66, s66, 4
    v_and_b32 v2, 15, v1
    v_add_u32 v2, s66, v2
    v_mul_u32_u24 v2, 1280, v2
    v_lshrrev_b32 v3, 4, v1
    v_lshl_add_u32 v2, v3, 3, v2
    s_mul_i32 s66, s{sCB3}, 160
    v_add_u32 v14, s66, v2
    """)
    g.xg_addr(20)
    a.M(f"""
    s_mul_i32 s66, s{sJ}, 20
    v_add_u32 v11, s66, v1
    v_lshlrev_b32 v11, 7, v11
    v_min_u32 v11, CODE_BYTES-64, v11
    """)
    a.M(f"""
    s_lshl_b32 s66, s{sJ}, 2
    s_add_u32 s66, s66, s{sWAVE}
    s_lshl_b32 s67, s{sXCD}, 7
    s_add_u32 s66, s66, s67
    s_mul_i32 s67, s66, {54*128}
    s_add_u32 s67, s67, {H1_OFF}
    v_lshl_add_u32 v22, v1, 7, s67
    s_lshl_b32 s67, s66, 7
    s_add_u32 s67, s67, {ST_OFF}
    v_mov_b32 v2, s67
    v_cmp_le_u32 vcc, 54, v1
    v_cndmask_b32 v22, v22, v2, vcc
    s_mul_i32 s67, s66, {20*128}
    s_add_u32 s67, s67, {H_OFF}
    v_lshl_add_u32 v23, v1, 7, s67
    s_mul_i32 s67, s{sBLK}, 80
    s_add_u32 s67, s67, s{sB3}
    s_cmp_eq_u32 s{sPAR}, 0
    s_cselect_b32 s63, 2, 0
    s_add_u32 s67, s67, s63
    s_lshl_b32 s67, s67, 10
    s_add_u32 s67, s67, {O_OFF - 20*128}
    v_lshl_add_u32 v2, v1, 7, s67
    v_cmp_le_u32 vcc, 20, v1
    v_cndmask_b32 v23, v23, v2, vcc
    s_lshl_b32 s67, s66, 7
    s_add_u32 s67, s67, {F2_OFF - 28*131072}
    v_lshlrev_b32 v2, 17, v1
    v_add_u32 v2, s67, v2
    v_cmp_le_u32 vcc, 28, v1
    v_cndmask_b32 v23, v23, v2, vcc
    """)
    assert F3_OFF - F2_OFF == 131072 and F4_OFF - F3_OFF == 131072
    a.M(f"""
    s_lshl_b32 s66, s5, 7
    s_add_u32 s66, s66, {FC_OFF}
    v_mov_b32 v3, s66
    v_cmp_eq_u32 vcc, 63, v1
    v_cndmask_b32 v29, v29, v3, vcc
    s_lshl_b32 s66, s{sWAVE}, 8
    s_add_u32 s66, s66, {RING+6144}
    v_lshl_add_u32 v21, v1, 2, s66
    s_lshl_b32 s{sQS}, s{sBLK}, 8
    s_add_u32 s{sQS}, s{sQS}, s{sB3}
    s_lshl_b32 s{sQS}, s{sQS}, 10
    """)

def phase2(g):
    a = g.a
    Q, KB, VB, P, S, O = 32, 48, 64, 80, 96, 128
    a.M(f"""
    s_barrier
    v_mov_b32 v4, 0x3f803f80
    """)
    for k in range(2 * NSLOT):
        a.I(f"ds_write_b32 v21, v4 offset:{k*7168}")
    a.I("s_waitcnt vmcnt(0)")
    g.signal(98, 2)
    g.stamp()
    a.M(f"""
    s_mul_i32 s66, s{sBLK}, 80
    s_add_u32 s66, s66, s{sB3}
    s_lshl_b32 s66, s66, 10
    s_add_u32 s{sOS}, s66, {O_OFF}
    s_cmp_eq_u32 s{sPAR}, 0
    s_cselect_b32 s67, 2048, 8
    s_add_u32 s{sOS+1}, s67, s{sOS}
    s_lshl_b32 s4, s{sH}, 5
    s_add_u32 s4, s4, s{sBLK}
    s_lshl_b32 s4, s4, 7
    s_add_u32 s4, s4, {F2_OFF}
    s_mov_b32 s61, 0
    """)

    def wfrag(kind, st):
        base = sW2S if kind == "w2" else sWOS
        def p(k): a.I(f"s_add_u32 s{sT1}, s{base}, {st*40*1024 + 4096*k}")
        def f(i):
            fl, r = w2reg(st, i) if kind == "w2" else ("v", worege(st, i))
            a.I(f"buffer_load_dwordx4 {vr(r,4,fl)}, v{vKV}, {srd(sWS)}, s{sT1} offen offset:{1024*(i%4)} sc1")
        return [(lambda: p(0), lambda: (f(0), f(1))), (None, lambda: (f(2), f(3))), (lambda: p(1), lambda: f(4))]
    g.wfrag = wfrag
    wq = [wfrag("w2", st) for st in range(14)] + [wfrag("wo", st) for st in range(3)] + [w1f_dma(g, sub, vKV) for sub in range(3)]
    g.poll([30], 2)
    g.stamp()

    kv_last = {}
    def kv_dma(c):
        def p0():
            a.I(f"s_add_u32 m0, s{sKVD}, {(c % NSLOT) * SLOT}")
            a.I(f"s_xor_b32 s{sT0}, s{sKVS}, {c << 19}")
        def f(i):
            kv_last[c] = a.I(f"buffer_load_dwordx4 v{vKV+i}, {srd(sWS)}, s{sT0} offen offset:{1024*i} sc1 lds")
        return [(p0, lambda: (f(0), f(1))), (None, lambda: f(2))]
    run(kv_dma(0))
    for t in range(2):
        a.I(f"buffer_load_dwordx4 {vr(Q+8*t,4)}, v{vQ0}, {srd(sWS)}, s{sQS} offen offset:{512*t} sc1")
        a.I(f"buffer_load_dwordx4 {vr(Q+8*t+4,4)}, v31, {srd(sWS)}, s{sQS} offen offset:{512*t} sc1")
    run(kv_dma(1))
    a.M(f"""
    s_cmp_eq_u32 s{sPAR}, 0
    s_cselect_b32 s62, -1, 0
    s_cselect_b32 s64, 0, -1
    s_mov_b32 s63, 0
    s_mov_b32 s65, 0
    """)
    for t in range(2):
        for k in range(4):
            m = "s[62:63]" if k < 2 else "s[64:65]"
            a.I(f"v_cndmask_b32 v{Q+8*t+4+k}, 0, v{Q+8*t+4+k}, {m}")
    a.wait_vm(kv_last[0])
    a.I("s_waitcnt lgkmcnt(0)")
    a.I("s_barrier")

    def koff(i):
        c, t = divmod(i, 4)
        return (c % NSLOT) * SLOT + (t >> 1) * 7168 + (t & 1) * 512
    def kread(i):
        b = KB + 8 * (i & 1)
        return [lambda: a.I(f"ds_read_b128 {vr(b,4)}, v{vK0} offset:{koff(i)}"),
                lambda: a.I(f"ds_read_b128 {vr(b+4,4)}, v{vK1} offset:{koff(i)}")]
    def vread(i):
        b = VB + 8 * (i & 1)
        return [lambda j=j, rd=rd: a.I(f"ds_read_b64_tr_b16 {vr(b+4*j+2*rd,2)}, v{vV+rd} offset:{koff(i)+256*j}")
                for j in range(2) for rd in range(2)]
    def qk(t, i):
        b = KB + 8 * (i & 1); s = S + 16 * t; q = Q + 8 * t
        return [f"v_mfma_f32_32x32x16_bf16 {vr(s,16)}, {vr(b,4)}, {vr(q,4)}, 0",
                f"v_mfma_f32_32x32x16_bf16 {vr(s,16)}, {vr(b+4,4)}, {vr(q+4,4)}, {vr(s,16)}"]
    def pv(t, i):
        b = VB + 8 * (i & 1); o = O + 16 * t; p = P + 8 * t
        c0 = "0" if i == 0 else vr(o, 16)
        return [f"v_mfma_f32_32x32x16_bf16 {vr(o,16)}, {vr(b,4)}, {vr(p,4)}, {c0}",
                f"v_mfma_f32_32x32x16_bf16 {vr(o,16)}, {vr(b+4,4)}, {vr(p+4,4)}, {vr(o,16)}"]

    for it in kread(0) + kread(1) + vread(0): it()
    for t in range(2):
        for m in qk(t, 0): a.I(m)
    a.I("s_mov_b32 s62, 0")
    a.I("s_mov_b32 s63, -1")
    for t in range(2):
        s = S + 16 * t
        a.I(f"v_max3_f32 v{2+t}, v{s}, v{s+1}, v{s+2}")
        for k in range(3, 15, 2):
            a.I(f"v_max3_f32 v{2+t}, v{2+t}, v{s+k}, v{s+k+1}")
        a.I(f"v_max_f32 v{2+t}, v{2+t}, v{s+15}")
        a.I(f"v_mov_b32 v{4+t}, v{2+t}")
        a.I(f"v_permlane32_swap_b32 v{2+t}, v{4+t}")
        a.I(f"v_max_f32 v{2+t}, v{2+t}, v{4+t}")
        a.I(f"v_cvt_pk_bf16_f32 v{2+t}, -v{2+t}, 0")
        a.I(f"v_cndmask_b32 v{Q+8*t+4}, v{Q+8*t+4}, v{2+t}, s[62:63]")
        if t == 0:
            for m in qk(0, 0): a.I(m)

    lastfill = [None]
    extra = []
    def half(t, mf, fill):
        s = S + 16 * t; p = P + 8 * t
        mf = list(mf); fill = list(fill)
        for q in range(4):
            item = extra.pop(0) if extra else None
            if item and item[0]: item[0]()
            if mf:
                a.I(mf.pop(0))
            if item: item[1]()
            if fill: lastfill[0] = fill.pop(0)()
            for k in range(4):
                a.I(f"v_exp_f32 v{s+4*q+k}, v{s+4*q+k}")
            if q > 0:
                for k in range(2):
                    a.I(f"v_cvt_pk_bf16_f32 v{p+2*(q-1)+k}, v{s+4*(q-1)+2*k}, v{s+4*(q-1)+2*k+1}")
        assert not fill and not mf
        for k in range(2):
            a.I(f"v_cvt_pk_bf16_f32 v{p+6+k}, v{s+12+2*k}, v{s+12+2*k+1}")

    g.stamp()
    nop = (None, lambda: None)
    SP = g.opt.get("spread", 1)
    def spaced(items):
        out = []
        for it in items:
            if g.opt.get("single"):
                a.capture = []
                it[1]()
                cap, a.capture = a.capture, None
                if len(cap) == 2 and not any("lds" in x and "s56" in x for x in cap):
                    out += [(it[0], lambda x=cap[0]: a.I(x))] + [nop] * (SP // 2) + [(None, lambda x=cap[1]: a.I(x))] + [nop] * ((SP - 1) // 2)
                    continue
            out += [it] + [nop] * SP
        return out
    IL, IC = g.opt.get("il", 0), g.opt.get("ic", 2)
    def ld15(va): return [(None, lambda: a.I(f"buffer_load_dword v15, v{va}, {srd(sWS)}, 0 offen sc1"))]
    half(0, qk(1, 0), [])
    for i in range(64):
        if i == IL: extra += ld15(19)
        if i == 2 or ((i + 2) % 8 == 0 and i + 2 < 64):
            c = (i + 2) // 4
            while extra and extra[0] is nop: extra.pop(0)
            assert not extra, len(extra)
            a.wait_vm(kv_last[c if c == 1 else c + 1])
            a.I("s_barrier")
            if g.opt.get("att"): g.stamp()
            if c == 2:
                extra += spaced([(None, lambda k=k: (g.rp_store[k](), g.rp_store[k+1]())) for k in range(0, 8, 2)])
                extra += [(None, lambda: g.xg_publish(2))]
            if c > 1 and c + 2 < 16: extra += spaced(kv_dma(c + 2) + kv_dma(c + 3))
            if c == 2:
                extra += spaced([(None, lambda f=f: a.I(f"buffer_load_dwordx2 {vr(vXR+2*f,2)}, v14, {srd(sX)}, 0 offen offset:{32*f}")) for f in range(5)])
            if c == 4:
                g.signal(101, 2)
                extra += [nop] * 16 + ld15(29) + [nop] * 12 + [(lambda: g.check_flags(15, 29), lambda: None)]
                for _ in range(2): extra += spaced(wq.pop(0))
            if c > 4:
                rounds_left = 8 - c // 2
                n = len(wq) if rounds_left <= 1 else int(len(wq) / (rounds_left - 0.5) + 0.99)
                for _ in range(n): extra += spaced(wq.pop(0))
            if c >= 4 and g.opt.get("pt", 1):
                k = (c - 4) // 2
                def thin(k=k):
                    m = ((1 << 14) - 1) << (14 * k) if k < 4 else (1 << 31) - 1
                    a.I(f"s_mov_b32 exec_lo, {hex(m & 0xffffffff)}")
                    a.I(f"s_mov_b32 exec_hi, {hex(m >> 32)}")
                    a.I(f"buffer_load_dword v{6+k}, v{22 if k < 4 else 23}, {srd(sWS)}, 0 offen sc1")
                    a.I("s_mov_b64 exec, -1")
                if k < 5: extra += [(None, thin)]
            if c == 12: extra += ld15(20)
            if c == 14:
                g.xg_mode(15)
            if g.opt.get("ctouch", 1) and c in (1, 8):
                def ct():
                    sk = g.lab("ct")
                    a.I(f"s_cmp_lg_u32 s{sWAVE}, 0")
                    a.I(f"s_cbranch_scc1 {sk}")
                    a.I("s_mov_b64 exec, 0xfffff")
                    a.raw("    global_load_dword v12, v11, s[92:93]")
                    a.I("s_mov_b64 exec, -1")
                    a.label(sk)
                extra += [(None, ct)]
            if g.opt.get("even") and c > 4:
                items = [x for x in extra if x is not nop]
                slots = 60 if c < 14 else 48
                extra[:] = []
                for k, x in enumerate(items):
                    while len(extra) < k * slots // len(items): extra.append(nop)
                    extra.append(x)
        if i == IC:
            g.check_flags(15, 19)
            if g.opt.get("att"): g.stamp()
            extra += spaced(kv_dma(2) + kv_dma(3))
        kr = kread(i + 2) if i + 2 < 64 else []
        vrd = vread(i + 1) if i + 1 < 64 else []
        mfb = (qk(0, i + 1) if i + 1 < 64 else []) + pv(0, i)
        if lastfill[0] is not None: a.wait_lg(lastfill[0])
        fl = kr + vrd
        half(1, mfb, fl[:4])
        if i + 1 < 64:
            half(0, qk(1, i + 1) + pv(1, i), fl[4:])
    run(extra)
    g.stamp()
    for m in pv(1, 63): a.I(m)
    slow, back = "L_slow", "L_slow_back"
    a.label(back)
    for t in range(2):
        o = O + 16 * t; p = S + 8 * t
        a.I(f"v_rcp_f32 v{2+2*t}, v{o+12}")
        for k in range(0, 12, 2):
            a.I(f"v_pk_mul_f32 {vr(o+k,2)}, {vr(o+k,2)}, {vr(2+2*t,2)} op_sel:[0,0] op_sel_hi:[1,0]")
        for k in range(6):
            a.I(f"v_cvt_pk_bf16_f32 v{p+k}, v{o+2*k}, v{o+2*k+1}")
        a.I(f"v_permlane32_swap_b32 v{p}, v{p+2}")
        a.I(f"v_permlane32_swap_b32 v{p+1}, v{p+3}")
        a.I(f"buffer_store_dwordx4 {vr(p,4)}, v{vQ0}, {srd(sWS)}, s{sOS} offen offset:{512*t} sc1")
    a.I(f"v_permlane32_swap_b32 v{S+4}, v{S+12}")
    a.I(f"v_permlane32_swap_b32 v{S+5}, v{S+13}")
    a.I(f"buffer_store_dwordx2 {vr(S+4,2)}, v{vKV}, {srd(sWS)}, s{sOS+1} offen sc1")
    g.stamp()
    for k in range(0, 12, 2):
        a.I(f"v_pk_add_f32 {vr(O+k,2)}, {vr(O+k,2)}, {vr(O+16+k,2)}")
    a.M(f"""
    v_pk_add_f32 {vr(O,2)}, {vr(O,2)}, {vr(O+2,2)}
    v_pk_add_f32 {vr(O+4,2)}, {vr(O+4,2)}, {vr(O+6,2)}
    v_pk_add_f32 {vr(O+8,2)}, {vr(O+8,2)}, {vr(O+10,2)}
    v_pk_add_f32 {vr(O,2)}, {vr(O,2)}, {vr(O+4,2)}
    s_mov_b32 s62, -1
    s_mov_b32 s63, 0
    v_add_f32 v5, v{O+8}, v{O+9}
    v_add_f32 v4, v{O}, v{O+1}
    v_cndmask_b32 v5, 0, v5, s[62:63]
    v_add_f32 v4, v4, v5
    v_mul_f32 v4, 0, v4
    v_add_f32 v4, v4, v{O+12}
    s_mov_b32 s66, {hex(f2u(2.0**100))}
    s_mov_b32 s67, {hex(f2u(2.0**-30))}
    v_cmp_nle_f32 vcc, v4, s66
    v_cmp_nle_f32 s[62:63], v{O+28}, s66
    s_or_b64 vcc, vcc, s[62:63]
    v_cmp_nge_f32 s[62:63], v{O+12}, s67
    s_or_b64 vcc, vcc, s[62:63]
    v_cmp_nge_f32 s[62:63], v{O+28}, s67
    s_or_b64 vcc, vcc, s[62:63]
    s_cmp_lg_u32 s61, 0
    s_cselect_b64 vcc, 0, vcc
    s_cmp_lg_u64 vcc, 0
    s_cbranch_scc1 {slow}
    """)
    g.slow_args = dict(Q=Q, KB=KB, VB=VB, P=P, S=S, O=O, vK0=vQ0, vV=vV, vKV=vKV)

def slow_path(g):
    a = g.a
    A = g.slow_args
    Q, KB, VB, P, S, O, vK0, vV = A["Q"], A["KB"], A["VB"], A["P"], A["S"], A["O"], A["vK0"], A["vV"]
    a.vm = []; a.lg = []; a.hist = []
    a.label("L_slow")
    a.M(f"""
    s_waitcnt vmcnt(0) lgkmcnt(0)
    s_mov_b32 s61, 1
    s_mov_b32 s62, 0
    s_mov_b32 s63, -1
    s_add_u32 s64, s{sB3}, 80
    s_lshl_b32 s64, s64, 10
    v_mov_b32 v6, 0x3f803f80
    v_mov_b32 v2, 0xff800000
    v_mov_b32 v3, 0xff800000
    """)
    for t in range(2):
        for k in range(2):
            a.I(f"v_cndmask_b32 v{Q+8*t+4+k}, v{Q+8*t+4+k}, 0, s[62:63]")
    def load_k(off):
        a.I(f"buffer_load_dwordx4 {vr(KB,4)}, v{vK0}, {srd(sWS)}, s65 offen offset:{off} sc1")
        a.I(f"buffer_load_dwordx4 {vr(KB+4,4)}, v31, {srd(sWS)}, s65 offen offset:{off} sc1")
        for k in range(4):
            a.I(f"v_cndmask_b32 v{KB+4+k}, v{KB+4+k}, v6, s[62:63]")
        for t in range(2):
            s = S + 16 * t; q = Q + 8 * t
            a.I(f"v_mfma_f32_32x32x16_bf16 {vr(s,16)}, {vr(KB,4)}, {vr(q,4)}, 0")
            a.I(f"v_mfma_f32_32x32x16_bf16 {vr(s,16)}, {vr(KB+4,4)}, {vr(q+4,4)}, {vr(s,16)}")
    a.I("s_mov_b32 s66, 0")
    a.fence()
    a.label("L_slow1")
    a.I(f"s_mul_i32 s65, s66, {256*1024}")
    a.I("s_add_u32 s65, s65, s64")
    for tile in range(2):
        load_k(512 * tile)
        for t in range(2):
            s = S + 16 * t
            for k in range(0, 16, 2):
                a.I(f"v_max3_f32 v{2+t}, v{2+t}, v{s+k}, v{s+k+1}")
    a.M("""
    s_add_u32 s66, s66, 1
    s_cmp_lt_u32 s66, 32
    """)
    a.fence()
    a.I("s_cbranch_scc1 L_slow1")
    for t in range(2):
        a.M(f"""
        v_mov_b32 v4, v{2+t}
        v_permlane32_swap_b32 v{2+t}, v4
        v_max_f32 v{2+t}, v{2+t}, v4
        v_and_b32 v4, 0xffff0000, v{2+t}
        v_sub_f32 v5, v{2+t}, v4
        v_and_b32 v7, 0xffff0000, v5
        v_sub_f32 v5, v5, v7
        v_cvt_pk_bf16_f32 v4, -v4, -v7
        v_cvt_pk_bf16_f32 v5, -v5, 0
        v_cndmask_b32 v{Q+8*t+4}, v{Q+8*t+4}, v4, s[62:63]
        v_cndmask_b32 v{Q+8*t+5}, v{Q+8*t+5}, v5, s[62:63]
        """)
    a.M(f"""
    s_mov_b32 s67, s7
    v_lshl_add_u32 v8, v1, 4, s67
    v_mov_b32 v12, v6
    v_mov_b32 v13, v6
    v_mov_b32 v14, v6
    v_mov_b32 v15, v6
    ds_write_b128 v8, v[12:15] offset:3072
    v_lshlrev_b32 v9, 4, v1
    v_xor_b32 v10, 64, v9
    v_xor_b32 v11, 128, v9
    s_sub_u32 s66, s67, {RING+3072}
    v_add_u32 v12, s66, v{vV}
    v_add_u32 v13, s66, v{vV+1}
    s_mov_b32 m0, s67
    """)
    for r in range(32):
        a.I(f"v_mov_b32 v{O+r}, 0")
    a.I("s_mov_b32 s66, 0")
    a.drain(); a.fence()
    a.label("L_slow2")
    a.I(f"s_mul_i32 s65, s66, {256*1024}")
    a.I("s_add_u32 s65, s65, s64")
    a.I(f"s_add_u32 s67, s65, {80*1024}")
    for i in range(3):
        a.I(f"buffer_load_dwordx4 v{9+i}, {srd(sWS)}, s67 offen offset:{1024*i} sc1 lds")
    for tile in range(2):
        load_k(512 * tile)
        a.I("s_waitcnt vmcnt(0)")
        for j in range(2):
            for rd in range(2):
                a.I(f"ds_read_b64_tr_b16 {vr(VB+4*j+2*rd,2)}, v{12+rd} offset:{512*tile+256*j}")
        for t in range(2):
            s = S + 16 * t; p = P + 8 * t; o = O + 16 * t
            for k in range(16):
                a.I(f"v_exp_f32 v{s+k}, v{s+k}")
            for k in range(8):
                a.I(f"v_cvt_pk_bf16_f32 v{p+k}, v{s+2*k}, v{s+2*k+1}")
            a.I(f"v_mfma_f32_32x32x16_bf16 {vr(o,16)}, {vr(VB,4)}, {vr(p,4)}, {vr(o,16)}")
            a.I(f"v_mfma_f32_32x32x16_bf16 {vr(o,16)}, {vr(VB+4,4)}, {vr(p+4,4)}, {vr(o,16)}")
    a.M("""
    s_add_u32 s66, s66, 1
    s_cmp_lt_u32 s66, 32
    """)
    a.drain(); a.fence()
    a.I("s_cbranch_scc1 L_slow2")
    run(w1f_dma(g, 0, A["vKV"]))
    a.drain(); a.fence()
    a.I("s_branch L_slow_back")

def rg_ops(r, t):
    return [f"v_mov_b32 v{t}, v{r}", f"v_permlane16_swap_b32 v{r}, v{t}", f"v_add_f32 v{r}, v{r}, v{t}",
            f"v_mov_b32 v{t}, v{r}", f"v_permlane32_swap_b32 v{r}, v{t}", f"v_add_f32 v{r}, v{r}, v{t}"]

def rg_reduce(g, r, t):
    for x in rg_ops(r, t): g.a.I(x)

vCK, vFL, vFA = 2, 3, 30

def max_ops(regs):
    regs = list(regs)
    if len(regs) == 1: return [], regs[0]
    ops = []
    cur = regs.pop(0)
    while regs:
        if len(regs) >= 2:
            ops.append(f"v_max3_u32 v{vCK}, v{cur}, v{regs[0]}, v{regs[1]}"); regs = regs[2:]
        else:
            ops.append(f"v_max_u32 v{vCK}, v{cur}, v{regs[0]}"); regs = regs[1:]
        cur = vCK
    return ops, vCK

def check_data(g, regs, reload):
    a = g.a
    slow, back, lp = g.lab("ck"), g.lab("ckb"), g.lab("ckl")
    ops, r = max_ops(regs)
    for x in ops: a.I(x)
    a.I(f"v_cmp_eq_u32 vcc, -1, v{r}")
    a.I(f"s_cbranch_vccnz {slow}")
    a.label(back)
    def stub():
        a.vm = []; a.lg = []; a.hist = []
        a.label(slow)
        a.I("s_mov_b32 s44, 0")
        a.I("s_mov_b32 s46, 0")
        a.label(lp)
        a.I(f"buffer_load_dword v{vFL}, v{vFA}, {srd(sWS)}, 0 offen sc1")
        reload()
        a.I("s_waitcnt vmcnt(0)")
        for x in ops: a.I(x)
        a.M(f"""
        v_cmp_eq_u32 vcc, -1, v{r}
        s_cbranch_vccz {back}
        s_cmp_lg_u32 s46, 0
        s_cbranch_scc1 {back}
        v_cmp_ne_u32 vcc, s{sNONCE}, v{vFL}
        s_add_u32 s44, s44, 1
        s_cmp_eq_u64 vcc, 0
        s_cselect_b32 s46, 1, 0
        s_cmp_gt_u32 s44, {SPIN_MAX}
        s_cbranch_scc0 {lp}
        s_branch {back}
        """)
    g.stubs.append(stub)

def ksplit_gemm(g, nst, wreg, load, areg, chk, nup, accs, cinit0, vRW, vRR, T, fillers, first_batch, bar_st):
    a = g.a
    total = 4 * nst
    first_batch()
    pendw = []
    fillers = list(fillers)
    late = []
    for u in range(4):
        acc = accs[u]
        for st in range(nst):
            n = u * nst + st
            if g.opt.get("fine5") == nst and (n == 1 or (st == 0 and u > 0) or (u == 3 and st in (bar_st, bar_st + 1))): g.stamp()
            if u == 3 and st == bar_st:
                assert not pendw
                a.I("s_waitcnt lgkmcnt(0)")
                a.I("s_barrier")
                late = [f"ds_read_b128 {vr(T+20*k+4*f,4)}, v{vRR} offset:{5120*k+1024*f}" for k in range(3) for f in range(5)]
                late += [None] * 4
                late += [f"v_add_f32 v{T+r}, v{T+r}, v{T+20+r}" for r in range(20)]
                late += [f"v_add_f32 v{T+r}, v{T+r}, v{T+40+r}" for r in range(20)]
            for f in range(5):
                fl, r = wreg(st, f)
                cc = "0" if (st == 0 and not (u == 0 and cinit0)) else vr(acc + 4*f, 4)
                a.I(f"v_mfma_f32_16x16x32_bf16 {vr(acc+4*f,4)}, {vr(r,4,fl)}, {vr(areg(n),4)}, {cc}")
                last_loads = n + nup >= total
                if f == 0 and n + nup == total and nst == 14 and g.opt.get("wbl", 1): wb_l2(g)
                if f == 0 and not last_loads: load(n + nup, False)
                elif f == 4 and n + 1 < total and not late: pass
                elif pendw:
                    if (st >= 1 or nst <= 5 and f >= 3) and (f in (1, 3) or nst <= 5): pendw.pop(0)()
                elif late:
                    for _ in range(3 if nst - bar_st <= 4 else 2):
                        if late:
                            x = late.pop(0)
                            if x: a.I(x)
                elif fillers and n >= nup + 1:
                    a.I(fillers.pop(0))
        if u < 3:
            assert not pendw
            pendw = [lambda f=f, acc=acc, u=u: a.I(f"ds_write_b128 v{vRW+u}, {vr(acc+4*f,4)} offset:{1024*f}") for f in range(5)]
    for x in late + fillers:
        if x: a.I(x)

def red_addrs(g, vRW, vRR, vA):
    a = g.a
    a.M(f"""
    v_lshrrev_b32 v2, 4, v1
    v_and_b32 v3, 15, v1
    v_lshlrev_b32 v3, 4, v3
    v_lshl_add_u32 v3, v2, 10, v3
    """)
    for u in range(4):
        a.M(f"""
        s_add_u32 s66, s{sOWN}, {u+1}
        s_and_b32 s66, s66, 3
        s_lshl_b32 s67, s66, 8
        v_add_u32 v{vA+u}, s67, v3
        s_mul_i32 s66, s66, 15360
        s_add_u32 s66, s66, {RED + (5120*u if u < 3 else 0)}
        v_lshl_add_u32 v{vRW+u if u < 3 else vRR}, v1, 4, s66
        """)

def phase3(g):
    a = g.a
    AF = 92
    vRW, vRR, vA, vL = 8, 11, 12, 16
    accs = [32, AF, AF + 20, 32]
    ostore = a.vm[-1][0]
    run(g.wfrag("wo", 3) + g.wfrag("wo", 4))
    for r in range(10):
        a.I(f"v_lshlrev_b32 v{accs[0]+2*r}, 16, v{vXR+r}")
        a.I(f"v_and_b32 v{accs[0]+2*r+1}, 0xffff0000, v{vXR+r}")
    red_addrs(g, vRW, vRR, vA)
    a.M(f"""
    v_and_b32 v2, 7, v1
    s_lshl_b32 s66, s{sWAVE}, 3
    v_add_u32 v2, s66, v2
    v_lshl_add_u32 v2, v2, 5, s{sRB64}
    v_lshlrev_b32 v2, 7, v2
    v_add_u32 v{vFA}, {F2_OFF}, v2
    s_mul_i32 s62, s{sRB64}, 80
    s_mul_i32 s66, s{sWAVE}, 20
    s_add_u32 s62, s62, s66
    s_lshl_b32 s62, s62, 10
    s_add_u32 s62, s62, {O_OFF}
    s_add_u32 s63, s62, 4096
    s_add_u32 s64, s62, 8192
    s_add_u32 s65, s62, 12288
    s_add_u32 s58, s62, 16384
    """)
    so = [62, 63, 64, 65, 58]
    def load(n, retry):
        u, st = divmod(n, 5)
        a.I(f"buffer_load_dwordx4 {vr(AF+4*n,4)}, v{vA+u}, {srd(sWS)}, s{so[st]} offen sc1")
    NUP = g.opt.get("nb3", 8)
    chk = lambda n: [AF + 4*n, AF + 4*n + 2]
    def first():
        a.wait_vm(ostore)
        g.signal(4, 4)
        g.stamp()
        if g.opt.get("rt1", 0):
            a.M(f"""
            s_mov_b32 exec_hi, 0
            buffer_load_dword v6, v23, {srd(sWS)}, 0 offen sc1
            s_mov_b32 exec_hi, -1
            buffer_load_dword v7, v22, {srd(sWS)}, 0 offen sc1
            v_min_u32 v17, 55, v1
            v_lshlrev_b32 v17, 7, v17
            s_add_u32 s66, s{sW1S}, {3*4*112*1024}
            s_add_u32 s67, s{sW1S}, {4*4*112*1024}
            buffer_load_dword v18, v17, {srd(sWS)}, s66 offen sc1
            buffer_load_dword v19, v17, {srd(sWS)}, s67 offen sc1
            """)
        g.poll([vFA], 2)
        g.stamp()
        for n in range(NUP): load(n, False)
        a.M(f"""
        s_lshl_b32 s66, s{sRB64}, 2
        s_add_u32 s66, s66, s{sOWN}
        s_lshl_b32 s66, s66, 4
        v_and_b32 v5, 15, v1
        v_add_u32 v24, s66, v5
        v_lshlrev_b32 v24, 6, v24
        v_bfe_u32 v2, v1, 4, 1
        v_lshrrev_b32 v3, 5, v1
        v_lshl_add_u32 v4, v2, 1, v3
        v_lshlrev_b32 v5, 4, v5
        v_lshl_add_u32 v25, v4, 10, v5
        v_lshl_add_u32 v5, v3, 10, v5
        v_lshl_add_u32 v26, v2, 3, v5
        s_mul_i32 s66, s{sRB64}, 80
        s_mul_i32 s67, s{sCB3}, 10
        s_add_u32 s66, s66, s67
        s_lshl_b32 s66, s66, 10
        s_lshl_b32 s67, s{sOWN}, 8
        s_add_u32 s66, s66, s67
        s_add_u32 s54, s66, {H_OFF}
        s_add_u32 s55, s54, 4096
        s_add_u32 s56, s54, 8192
        s_lshl_b32 s59, s{sCB3}, 3
        s_add_u32 s59, s59, {ST_OFF}
        v_mov_b32 v23, 0x3f803f80
        s_barrier
        s_lshl_b32 s4, s{sRB64}, 3
        s_add_u32 s4, s4, s{sCB3}
        s_lshl_b32 s4, s4, 2
        s_add_u32 s4, s4, s{sOWN}
        s_lshl_b32 s4, s4, 7
        s_add_u32 s4, s4, {F3_OFF}
        """)
    T = AF
    ksplit_gemm(g, 5, lambda st, f: ("v", worege(st, f)), load, lambda n: AF + 4*n, chk, NUP, accs, True,
                vRW, vRR, T, [], first, 2)
    R = accs[3]
    for r in range(0, 20, 2): a.I(f"v_pk_add_f32 {vr(R+r,2)}, {vr(R+r,2)}, {vr(T+r,2)}")
    for r in range(8): a.I(f"v_cvt_pk_bf16_f32 v{T+r}, v{R+2*r}, v{R+2*r+1}")
    for r in range(8, 10): a.I(f"v_cvt_pk_bf16_f32 v{vH+r}, v{R+2*r}, v{R+2*r+1}")
    for pr in range(2):
        a.I(f"v_permlane16_swap_b32 v{T+4*pr}, v{T+4*pr+2}")
        a.I(f"v_permlane16_swap_b32 v{T+4*pr+1}, v{T+4*pr+3}")
    def tail():
        a.M(f"""
        buffer_store_dwordx4 {vr(T,4)}, v25, {srd(sWS)}, s54 offen SCX
        buffer_store_dwordx4 {vr(T+4,4)}, v25, {srd(sWS)}, s55 offen SCX
        buffer_store_dwordx2 {vr(vH+8,2)}, v26, {srd(sWS)}, s56 offen SCX
        """)
        src = [T + r for r in range(8)] + [vH + 8, vH + 9]
        for i, r in enumerate(src):
            a.I(f"v_dot2_f32_bf16 v6, v{r}, v23, {'0' if i == 0 else 'v6'}")
            a.I(f"v_dot2_f32_bf16 v7, v{r}, v{r}, {'0' if i == 0 else 'v7'}")
        for x, y in zip(rg_ops(6, 2), rg_ops(7, 3)):
            a.I(x); a.I(y)
        a.M(f"""
        s_mov_b64 exec, 0xffff
        buffer_store_dwordx2 v[6:7], v24, {srd(sWS)}, s59 offen SCX
        s_mov_b64 exec, -1
        """)
    g.dual(tail)
    g.stamp()
    for r in range(8): a.I(f"v_cvt_pk_bf16_f32 v{vH+r}, v{R+2*r}, v{R+2*r+1}")
    if g.stop == 3:
        a.I("s_waitcnt vmcnt(0)")

def phase4(g):
    a = g.a
    sCB4 = 5
    ACC = 32
    WB = [88, 116]
    AF = 144
    NB = 9
    vTR, vA, vCSA = 24, 27, 28
    a.M(f"""
    s_lshr_b32 s66, s{sJ}, 4
    s_lshl_b32 s62, s{sXCD}, 1
    s_add_u32 s62, s62, s66
    s_lshl_b32 s63, s62, 1
    s_lshr_b32 s66, s{sWAVE}, 1
    s_add_u32 s63, s63, s66
    s_and_b32 s64, s{sWAVE}, 1
    v_lshrrev_b32 v2, 4, v1
    v_and_b32 v3, 15, v1
    v_lshlrev_b32 v4, 4, v3
    v_lshl_add_u32 v{vA}, v2, 10, v4
    v_lshlrev_b32 v{vCSA}, 4, v2
    v_lshl_add_u32 v29, v3, 6, v{vCSA}
    s_mul_i32 s65, s63, 80
    s_lshl_b32 s65, s65, 10
    s_lshl_b32 s66, s64, 9
    s_add_u32 s65, s65, s66
    s_add_u32 s65, s65, {H_OFF}
    s_lshl_b32 s58, s63, 6
    s_lshl_b32 s67, s64, 5
    s_add_u32 s58, s58, s67
    s_lshl_b32 s58, s58, 6
    s_add_u32 s58, s58, {ST_OFF}
    """)
    for st in range(20): a.I(f"s_add_u32 s{70+st}, s65, {4096*st}")
    def load(st, tus=(0, 1)):
        r = AF + 8 * (st % NB)
        for tu in tus:
            a.I(f"buffer_load_dwordx4 {vr(r+4*tu,4)}, v{vA}, {srd(sWS)}, s{70+st} offen offset:{256*tu} sc1")
    def chk(st):
        r = AF + 8 * (st % NB)
        return [r, r + 2, r + 4, r + 6]
    NU4 = g.opt.get("nb4", 4)
    def batch():
        for st in range(NU4): load(st)
        for tu in range(2):
            a.I(f"buffer_load_dwordx4 {vr(8+4*tu,4)}, v29, {srd(sWS)}, s58 offen offset:{1024*tu} sc1")
    a.M(f"""
    v_and_b32 v2, 7, v1
    s_lshl_b32 s66, s63, 3
    v_add_u32 v2, s66, v2
    v_bfe_u32 v3, v1, 3, 1
    v_lshl_add_u32 v2, v2, 2, v3
    s_lshl_b32 s66, s64, 1
    v_add_u32 v2, s66, v2
    v_lshlrev_b32 v2, 7, v2
    v_add_u32 v{vFA}, {F3_OFF}, v2
    s_waitcnt vmcnt(0)
    """)
    g.dual(lambda: g.signal(4, 4, "SCX"))
    g.stamp()
    a.I("s_barrier")
    W1PRE = g.opt.get("w1pre", 0)
    if W1PRE >= 1: run(w1f_dma(g, 3, 16))
    if W1PRE >= 2: run(w1f_dma(g, 4, 16))
    g.poll([vFA], 2)
    g.stamp()
    batch()
    a.M(f"""
    v_lshlrev_b32 v{vTR}, 4, v1
    v_add_u32 v{vTR+1}, {8*7168}, v{vTR}
    v_add_u32 v{vTR+2}, {16*7168}, v{vTR}
    v_and_b32 v31, 31, v1
    v_lshlrev_b32 v31, 4, v31
    v_lshrrev_b32 v3, 5, v1
    v_lshl_add_u32 v31, v3, 10, v31
    s_mul_i32 s54, s63, 216
    s_mul_i32 s66, s{sCB4}, 14
    s_add_u32 s54, s54, s66
    s_lshl_b32 s54, s54, 10
    s_lshl_b32 s66, s64, 9
    s_add_u32 s54, s54, s66
    s_add_u32 s54, s54, {H1_OFF}
    s_lshl_b32 s55, s{sCB4}, 9
    s_add_u32 s55, s55, {CS_OFF}
    """)
    def wreads(st):
        b = WB[st & 1]
        return [lambda f=f: a.I(f"ds_read_b128 {vr(b+4*f,4)}, v{vTR+st//8} offset:{(st%8)*7168+f*1024}") for f in range(7)]
    ids = [it() for it in wreads(0)]
    if g.opt.get("wb", 0): wb_l2(g)
    w1q = (w1f_dma(g, 3, 16) if W1PRE < 1 else []) + (w1f_dma(g, 4, 16) if W1PRE < 2 else [])
    a.M(f"""
    s_lshl_b32 s4, s62, 4
    s_add_u32 s4, s4, s{sCB4}
    s_lshl_b32 s4, s4, 2
    s_add_u32 s4, s4, s{sWAVE}
    s_lshl_b32 s4, s4, 7
    s_add_u32 s4, s4, {F4_OFF}
    """)
    fill = []
    for tu in range(2):
        m = 8 + 4*tu
        fill += [f"v_add_f32 v{m}, v{m}, v{m+2}"] + rg_ops(m, m + 1) + [f"v_mul_f32 v{m}, {hex(f2u(-1.0/640))}, v{m}",
                 f"v_cvt_pk_bf16_f32 v{m}, v{m}, v{m}", f"v_and_b32 v{m}, 0xffff0000, v{m}"]
    CS = AF + 8 * (20 % NB)
    assert NU4 == 4
    csq = [f"buffer_load_dwordx4 {vr(CS+4*f,4)}, v{vCSA}, {srd(sWS)}, s55 offen offset:{64*f} sc1" for f in range(7)]
    a.capture = []
    run(w1q)
    cap, a.capture = a.capture, None
    w1q = []
    pre = []
    for x in cap:
        if x.startswith("s_"): pre.append(x)
        else:
            if pre: w1q.append(lambda pre=pre: [a.I(y) for y in pre])
            pre = []
            w1q.append(lambda x=x: a.I(x))
    for st in range(20):
        if g.opt.get("fine4") and st in (1, 5, 10, 11, 12, 16): g.stamp()
        if st == 11:
            assert not w1q
            if W1PRE < 2: a.wait_vm(w1id)
            a.I("s_barrier")
        rd = wreads(st + 1) if st + 1 < 20 else []
        b = WB[st & 1]; r = AF + 8 * (st % NB)
        prev, ids = ids, []
        for f in range(7):
            if f == 0: a.wait_lg(prev[6])
            for tu in range(2):
                d = ACC + 8 * f + 4 * tu
                cc = "0" if st == 0 else vr(d, 4)
                a.I(f"v_mfma_f32_16x16x32_bf16 {vr(d,4)}, {vr(b+4*f,4)}, {vr(r+4*tu,4)}, {cc}")
                k = 2 * f + tu
                if k in (1, 8):
                    if st + NU4 < 20: load(st + NU4, (k // 8,))
                    elif csq: a.I(csq.pop(0))
                elif rd and k >= 2: ids.append(rd.pop(0)())
                elif k in (10, 12) and w1q:
                    w1q.pop(0)()
                    w1id = a.vm[-1][0]
                elif fill and 10 <= k < 13: a.I(fill.pop(0))
    assert not fill and not csq
    g.stamp()
    P = WB[0]
    def epi():
        skip = g.lab("h1")
        for f in range(7):
            if f == 3:
                a.I(f"s_cmp_eq_u32 s{sCB4}, 15")
                a.I(f"s_cbranch_scc1 {skip}")
            for tu in range(2):
                d = ACC + 8 * f + 4 * tu
                for e in range(0, 4, 2):
                    a.I(f"v_pk_fma_f32 {vr(d+e,2)}, {vr(CS+4*f+e,2)}, {vr(8+4*tu,2)}, {vr(d+e,2)} op_sel:[0,0,0] op_sel_hi:[1,0,1]")
            for tu in range(2):
                d = ACC + 8 * f + 4 * tu
                for k in range(2):
                    a.I(f"v_cvt_pk_bf16_f32 v{P+4*f+2*tu+k}, v{d+2*k}, v{d+2*k+1}")
            for k in (0, 2, 1, 3):
                a.I(f"v_pk_max_i16 v{P+4*f+k}, v{P+4*f+k}, 0")
            if f % 2 == 0 and f > 0: a.I("s_add_u32 s54, s54, 4096")
            a.I(f"v_permlane16_swap_b32 v{P+4*f}, v{P+4*f+2}")
            a.I(f"v_permlane16_swap_b32 v{P+4*f+1}, v{P+4*f+3}")
            a.I(f"buffer_store_dwordx4 {vr(P+4*f,4)}, v31, {srd(sWS)}, s54 offen offset:{2048*(f%2)} SCX")
        a.fence()
        a.label(skip)
    g.dual(epi)
    a.vm = [(-20 - i, set(("v", r) for r in range(CS, CS + 28)), None) for i in range(1)] + a.vm
    g.stamp()
    if g.stop == 4:
        a.I("s_waitcnt vmcnt(0)")

def phase5(g):
    a = g.a
    vRW, vRR, vA = 8, 11, 12
    NUP = g.opt.get('nb5', 8)
    AF, NB, T, HU = 32, NUP + 1, 96, 156
    accs = [176, 196, 176, 196]
    assert AF + 4 * NB <= T
    red_addrs(g, vRW, vRR, vA)
    a.M(f"""
    s_mul_i32 s62, s{sRB64}, 216
    s_mul_i32 s66, s{sWAVE}, 56
    s_add_u32 s63, s62, 212
    s_lshl_b32 s65, s62, 10
    s_add_u32 s65, s65, {H1_OFF}
    s_add_u32 s62, s62, s66
    s_lshl_b32 s62, s62, 10
    s_add_u32 s62, s62, {H1_OFF}
    s_lshl_b32 s63, s63, 10
    s_add_u32 s63, s63, {H1_OFF}
    s_lshl_b32 s66, s{sRB64}, 2
    s_add_u32 s66, s66, s{sOWN}
    s_lshl_b32 s66, s66, 4
    v_and_b32 v2, 15, v1
    v_add_u32 v24, s66, v2
    v_lshrrev_b32 v3, 4, v1
    v_lshlrev_b32 v4, 6, v24
    v_lshl_add_u32 v25, v3, 4, v4
    s_mov_b32 s58, {ST_OFF}
    """)
    def areg(n): return AF + 4 * (n % NB)
    def load(n, retry):
        u, st = divmod(n, 14)
        a.I(f"buffer_load_dwordx4 {vr(areg(n),4)}, v{vA+u}, {srd(sWS)}, s{70+st} offen sc1")
    for st in range(14):
        a.I(f"s_add_u32 s{70+st}, s62, {4096*st}")
        if st >= 12: a.I(f"s_min_u32 s{70+st}, s{70+st}, s63")
    def first():
        a.M(f"""
        v_and_b32 v2, 3, v1
        s_lshl_b32 s67, s{sWAVE}, 2
        s_lshr_b32 s66, s{sRB64}, 1
        s_lshl_b32 s66, s66, 4
        s_add_u32 s66, s66, s67
        v_add_u32 v2, s66, v2
        v_bfe_u32 v3, v1, 2, 1
        v_lshl_add_u32 v2, v2, 2, v3
        s_and_b32 s66, s{sRB64}, 1
        s_lshl_b32 s66, s66, 1
        v_add_u32 v2, s66, v2
        v_lshlrev_b32 v2, 7, v2
        v_add_u32 v{vFA}, {F4_OFF}, v2
        s_waitcnt vmcnt(0)
        """)
        g.dual(lambda: g.signal(4, 4, "SCX"))
        g.stamp()
        a.I("s_barrier")
        g.poll([vFA], 2)
        g.stamp()
        for n in range(NUP): load(n, False)
        a.I(f"buffer_load_dwordx4 v[16:19], v25, {srd(sWS)}, s58 offen sc1")
        if g.opt.get("wb", 0): wb_l2(g)
        a.M(f"""
        v_mul_u32_u24 v4, 1280, v24
        v_bfe_u32 v2, v1, 4, 1
        v_lshrrev_b32 v3, 5, v1
        v_lshl_add_u32 v5, v2, 1, v3
        v_lshl_add_u32 v27, v5, 4, v4
        v_lshrrev_b32 v6, 4, v1
        v_lshl_add_u32 v28, v6, 3, v4
        s_mul_i32 s59, s{sCB3}, 160
        """)
        for r in range(10):
            a.I(f"v_lshlrev_b32 v{HU+2*r}, 16, v{vH+r}")
            a.I(f"v_and_b32 v{HU+2*r+1}, 0xffff0000, v{vH+r}")
    k = hex(f2u(1.0/640))
    fill = ["v_add_f32 v16, v16, v18", "v_add_f32 v17, v17, v19"]
    for x, y in zip(rg_ops(16, 21), rg_ops(17, 22)): fill += [x, y]
    rnd = lambda r: [f"v_cvt_pk_bf16_f32 v{r}, v{r}, v{r}", f"v_and_b32 v{r}, 0xffff0000, v{r}"]
    fill += [f"v_mul_f32 v16, {k}, v16", f"v_mul_f32 v17, {k}, v17", "v_fma_f32 v17, -v16, v16, v17", "v_max_f32 v17, 0, v17"]
    fill += rnd(17) + [f"v_add_f32 v17, {hex(f2u(1e-5))}, v17"] + rnd(17) + ["v_sqrt_f32 v17, v17"] + rnd(17) + ["v_rcp_f32 v18, v17"]
    ksplit_gemm(g, 14, w2reg, load, areg, lambda n: [areg(n)], NUP, accs, False, vRW, vRR, T, fill, first, 5)
    g.stamp()
    R = accs[3]
    for r in range(0, 20, 2): a.I(f"v_pk_add_f32 {vr(R+r,2)}, {vr(R+r,2)}, {vr(T+r,2)}")
    for r in range(0, 20, 2):
        a.I(f"v_pk_fma_f32 {vr(HU+r,2)}, {vr(R+r,2)}, v[18:19], {vr(HU+r,2)} op_sel:[0,0,0] op_sel_hi:[1,0,1]")
    P = T + 20
    osc = ['', 'sc1', 'nt'][g.opt.get('osc', 0)]
    for r in range(10): a.I(f"v_cvt_pk_bf16_f32 v{P+r}, v{HU+2*r}, v{HU+2*r+1}")
    for pr in range(2):
        a.I(f"v_permlane16_swap_b32 v{P+4*pr}, v{P+4*pr+2}")
        a.I(f"v_permlane16_swap_b32 v{P+4*pr+1}, v{P+4*pr+3}")
    a.M(f"""
    buffer_store_dwordx4 {vr(P,4)}, v27, {srd(sOUT)}, s59 offen {osc}
    buffer_store_dwordx4 {vr(P+4,4)}, v27, {srd(sOUT)}, s59 offen offset:64 {osc}
    buffer_store_dwordx2 {vr(P+8,2)}, v28, {srd(sOUT)}, s59 offen offset:128 {osc}
    """)
    g.stamp()
```

```python
import sys, math, struct, re
from asmlib import Asm, vr

NAME = "sequential_preLN__mha_block__dense_activation_relu__prompt"
KNAME = NAME + "_kernel"

QKV_OFF = 0
O_OFF = 32 * 256 * 1024
H_OFF = O_OFF + 32 * 80 * 1024
H1_OFF = H_OFF + 32 * 80 * 1024
ST_OFF = H1_OFF + 32 * 216 * 1024
F1_OFF = ST_OFF + 2048 * 64
F2_OFF = F1_OFF + 1024 * 128
F3_OFF = F2_OFF + 1024 * 128
F4_OFF = F3_OFF + 1024 * 128
FR_OFF = F4_OFF + 1024 * 128
F0_OFF = FR_OFF + 1024 * 128
XG_OFF = F0_OFF + 1024 * 128
TS_OFF = XG_OFF + 256 * 128
CS_OFF = TS_OFF + 1024 * 128
S1_OFF = CS_OFF + 8192
WOF_OFF = S1_OFF + 2048 * 16
W1F_OFF = WOF_OFF + 20 * 40 * 1024
W2F_OFF = W1F_OFF + 20 * 112 * 1024
WS_USED = W2F_OFF + 54 * 40 * 1024
QOCT = 256

def f2u(x):
    return struct.unpack("<I", struct.pack("<f", x))[0]

QSCALE = math.log2(math.e) / math.sqrt(20.0)
SPIN_MAX = 200000

sX, sWQKV, sWO, sW1, sW2, sOUT, sWS, sDBG = 8, 12, 16, 20, 24, 28, 32, 36
sWAVE, sXCD, sJ, sNONCE = 3, 40, 41, 42
sMODE, sXCC = 94, 95
OOB = '0x7f000000'
def srd(b): return f"s[{b}:{b+3}]"

class Gen:
    def __init__(self, stop=99, stamps=False, p1_ahead=2, probe=None, **kw):
        self.a = Asm()
        self.stop = stop
        self.stamps = stamps
        self.p1_ahead = p1_ahead
        self.nstamp = 0
        self.fine = (stop == 1) or bool(kw.get("fine1"))
        self.nlab = 0
        self.probe = probe
        self.stubs = []
        self.opt = kw
        self.clk = 's_memrealtime' if kw.get('rt', 1) else 's_memtime'

    def lab(self, base):
        self.nlab += 1
        return f"L_{base}_{self.nlab}"

    def stamp(self):
        if not self.stamps: return
        k = self.nstamp
        self.nstamp += 1
        assert k < 32
        a = self.a
        a.I("s_waitcnt lgkmcnt(0)")
        a.I(f"{self.clk} s[68:69]")
        a.I("s_waitcnt lgkmcnt(0)")
        a.I(f"v_writelane_b32 v0, s68, {k}")

    def dump_stamps(self):
        if not self.stamps: return
        a = self.a
        a.drain()
        a.fence()
        if self.probe is not None:
            i, j = self.probe
            if j < 0: j += self.nstamp
            a.M(f'''
            v_readlane_b32 s44, v0, {j}
            v_readlane_b32 s45, v0, {i}
            s_nop 4
            s_sub_u32 s44, s44, s45
            ''')
            if "late" in self.opt:
                a.I(f"s_sub_u32 s44, s45, s{sNONCE}")
                if self.opt["late"] < 0: a.I(f"s_sub_u32 s44, s{sNONCE}, s45")
                a.I("s_max_i32 s44, s44, 0")
            if "fix" in self.opt: a.I(f"s_mov_b32 s44, {self.opt['fix']}")
            if "jlo" in self.opt:
                a.I(f"s_cmp_lt_u32 s{sJ}, {self.opt['jlo']}")
                a.I("s_cselect_b32 s44, 0, s44")
                a.I(f"s_cmp_ge_u32 s{sJ}, {self.opt['jhi']}")
                a.I("s_cselect_b32 s44, 0, s44")
            if "xsel" in self.opt:
                a.I(f"s_cmp_lg_u32 s{sXCD}, {self.opt['xsel']}")
                a.I("s_cselect_b32 s44, 0, s44")
            a.M(f'''
            {self.clk} s[68:69]
            s_waitcnt lgkmcnt(0)
            s_mov_b32 s45, s68
            L_probe:
            {self.clk} s[68:69]
            s_waitcnt lgkmcnt(0)
            s_sub_u32 s46, s68, s45
            s_cmp_lt_u32 s46, s44
            s_cbranch_scc1 L_probe
            ''')
            return
        a.M(f"""
        s_lshl_b32 s44, s2, 2
        s_add_u32 s44, s44, s{sWAVE}
        s_lshl_b32 s44, s44, 7
        s_add_u32 s44, s44, {TS_OFF}
        v_lshlrev_b32 v2, 2, v1
        s_mov_b64 exec, {hex((1 << self.nstamp) - 1)}
        buffer_store_dword v0, v2, {srd(sWS)}, s44 offen
        s_mov_b64 exec, -1
        """)
        a.drain()

    def prologue(self):
        a = self.a
        a.M(f"""
        s_cmp_ge_u32 s2, 256
        s_cbranch_scc1 L_end
        s_load_dwordx16 s[48:63], s[0:1], 0
        s_load_dwordx2 s[64:65], s[0:1], 64
        """)
        if self.stamps:
            a.I(f"{self.clk} s[92:93]"); self.nstamp = 1
        if self.opt.get("cpf", 1):
            a.M(f"""
            s_getpc_b64 s[4:5]
            s_lshr_b32 s{sJ}, s2, 3
            s_mul_i32 s6, s{sJ}, 20
            v_add_u32 v2, s6, v0
            v_lshlrev_b32 v2, 7, v2
            v_min_u32 v2, CODE_BYTES-64, v2
            v_cmp_gt_u32 vcc, 20, v0
            s_and_saveexec_b64 s[6:7], vcc
            s_cbranch_execz L_cpf
            """)
            a.raw("    global_load_dword v255, v2, s[4:5]")
            a.label("L_cpf")
            a.I("s_mov_b64 exec, -1")
            a.vm = [(-1, set(), None)]
        a.M(f"""
        v_lshrrev_b32 v2, 6, v0
        v_and_b32 v1, 63, v0
        v_readfirstlane_b32 s{sWAVE}, v2
        s_and_b32 s{sXCD}, s2, 7
        s_lshr_b32 s{sJ}, s2, 3
        s_getreg_b32 s{sXCC}, hwreg(HW_REG_XCC_ID)
        s_and_b32 s{sXCC}, s{sXCC}, 15
        s_lshl_b32 s{sXCC}, s{sXCC}, 1
        s_mov_b32 s{sX+2}, {2048*1280}
        s_mov_b32 s{sX+3}, 0x20000
        s_mov_b32 s{sWQKV+2}, {640*3840}
        s_mov_b32 s{sWQKV+3}, 0x20000
        s_mov_b32 s{sWO+2}, {640*1280}
        s_mov_b32 s{sWO+3}, 0x20000
        s_mov_b32 s{sW1+2}, {640*3456}
        s_mov_b32 s{sW1+3}, 0x20000
        s_mov_b32 s{sW2+2}, {1728*1280}
        s_mov_b32 s{sW2+3}, 0x20000
        s_mov_b32 s{sOUT+2}, {2048*1280}
        s_mov_b32 s{sOUT+3}, 0x20000
        s_mov_b32 s{sWS+2}, {WS_USED}
        s_mov_b32 s{sWS+3}, 0x20000
        s_mov_b32 s{sDBG+2}, 256
        s_mov_b32 s{sDBG+3}, 0x20000
        """)

    def prologue_finish(self):
        a = self.a
        a.M(f"""
        s_waitcnt lgkmcnt(0)
        s_mov_b64 s[{sX}:{sX+1}], s[48:49]
        s_mov_b64 s[{sWQKV}:{sWQKV+1}], s[50:51]
        s_mov_b64 s[{sWO}:{sWO+1}], s[52:53]
        s_mov_b64 s[{sW1}:{sW1+1}], s[56:57]
        s_mov_b64 s[{sW2}:{sW2+1}], s[58:59]
        s_mov_b64 s[{sOUT}:{sOUT+1}], s[60:61]
        s_mov_b64 s[{sDBG}:{sDBG+1}], s[62:63]
        s_mov_b64 s[{sWS}:{sWS+1}], s[64:65]
        """)
        if self.stamps: a.I("v_mov_b32 v0, s92")
        a.I("s_mov_b64 s[92:93], s[4:5]")

    def publish_nonce(self):
        a = self.a
        skip = self.lab("nn")
        a.M(f"""
        s_or_b32 s44, s2, s{sWAVE}
        s_cmp_lg_u32 s44, 0
        s_cbranch_scc1 {skip}
        s_memrealtime s[68:69]
        s_waitcnt lgkmcnt(0)
        s_or_b32 s44, s68, 1
        v_mov_b32 v2, s44
        v_mov_b32 v3, 0
        s_mov_b64 exec, 1
        """)
        a.raw(f"    buffer_store_dword v2, v3, {srd(sDBG)}, 0 offen sc1")
        a.I("s_mov_b64 exec, -1")
        a.label(skip)

    def get_nonce(self, vt):
        a = self.a
        lp, done = self.lab("gn"), self.lab("gnd")
        a.I(f"v_mov_b32 v{vt+1}, 0")
        a.I(f"s_mov_b32 s44, 0")
        a.drain(); a.fence()
        a.label(lp)
        a.M(f"""
        buffer_load_dword v{vt}, v{vt+1}, {srd(sDBG)}, 0 offen sc1
        s_waitcnt vmcnt(0)
        v_readfirstlane_b32 s{sNONCE}, v{vt}
        s_add_u32 s44, s44, 1
        s_cmp_gt_u32 s44, {SPIN_MAX}
        s_cbranch_scc1 {done}
        s_cmp_eq_u32 s{sNONCE}, 0
        s_cbranch_scc1 {lp}
        """)
        a.label(done)
        a.fence(False)

    def signal(self, soff, vt, sc='sc1'):
        a = self.a
        a.M(f"""
        v_mov_b32 v{vt}, s{sNONCE}
        v_lshlrev_b32 v{vt+1}, 2, v1
        s_mov_b32 exec_hi, 0
        buffer_store_dword v{vt}, v{vt+1}, {srd(sWS)}, s{soff} offen {sc}
        s_mov_b32 exec_hi, -1
        """)

    def poll(self, vaddrs, vt, pipe=True):
        a = self.a
        lp, done = self.lab("pl"), self.lab("pld")
        a.I("s_mov_b32 s44, 0")
        a.fence()
        assert len(vaddrs) == 1
        va = vaddrs[0]
        if not self.opt.get("pp", 1) or not pipe:
            a.label(lp)
            a.M(f"""
            buffer_load_dword v{vt}, v{va}, {srd(sWS)}, 0 offen sc1
            s_waitcnt vmcnt(0)
            v_cmp_ne_u32 vcc, s{sNONCE}, v{vt}
            s_add_u32 s44, s44, 1
            s_cmp_gt_u32 s44, {SPIN_MAX}
            s_cbranch_scc1 {done}
            """)
            if self.opt.get("psl"):
                a.I(f"s_cbranch_vccz {done}")
                a.I(f"s_sleep {self.opt['psl']}")
                a.I(f"s_branch {lp}")
            else:
                a.I(f"s_cbranch_vccnz {lp}")
            a.label(done)
            a.fence(False)
            return
        ld = lambda r: f"    buffer_load_dword v{r}, v{va}, {srd(sWS)}, 0 offen sc1"
        a.raw(ld(vt))
        a.raw(f"    s_nop {self.opt.get('ppd', 15)}")
        a.label(lp)
        for r, o in ((vt, vt + 1), (vt + 1, vt)):
            a.raw(ld(o))
            a.raw("    s_waitcnt vmcnt(1)")
            a.raw(f"    v_cmp_ne_u32 vcc, s{sNONCE}, v{r}")
            a.raw(f"    s_cbranch_vccz {done}")
        a.raw("    s_add_u32 s44, s44, 1")
        a.raw(f"    s_cmp_gt_u32 s44, {SPIN_MAX}")
        a.raw(f"    s_cbranch_scc0 {lp}")
        a.label(done)
        a.fence(False)
        a.nid += 1
        a.vm = [(a.nid, {("v", vt), ("v", vt + 1)}, None)]

    def dual(self, fn):
        a = self.a
        slow, back = self.lab("gm"), self.lab("gmb")
        a.I(f"s_cmp_lg_u32 s{sMODE}, 0")
        a.I(f"s_cbranch_scc1 {slow}")
        n0 = len(a.lines)
        fn()
        blk = a.lines[n0:]
        a.lines[n0:] = [l.replace(" SCX", "") for l in blk]
        a.label(back)
        labs = [l[:-1] for l in blk if l.endswith(":") and not l.startswith(" ")]
        def stub():
            a.label(slow)
            for l in blk:
                l = l.replace(" SCX", " sc1")
                for lb in labs: l = re.sub(r"\b" + lb + r"\b", lb + "_g", l)
                a.raw(l)
            a.raw(f"    s_branch {back}")
        self.stubs.append(stub)

    def xg_addr(self, vd):
        self.a.M(f"""
        v_and_b32 v{vd}, 31, v1
        v_lshl_add_u32 v{vd}, v{vd}, 3, s{sXCD}
        v_lshlrev_b32 v{vd}, 7, v{vd}
        v_add_u32 v{vd}, {XG_OFF}, v{vd}
        """)

    def xg_publish(self, vt):
        self.a.M(f"""
        s_lshl_b32 s66, s2, 7
        s_add_u32 s66, s66, {XG_OFF}
        s_cmp_eq_u32 s{sNONCE}, 0
        s_cselect_b32 s66, {OOB}, s66
        s_cmp_lg_u32 s{sWAVE}, 0
        s_cselect_b32 s66, {OOB}, s66
        s_xor_b32 s67, s{sNONCE}, s{sXCC}
        v_mov_b32 v{vt}, s67
        v_mov_b32 v{vt+1}, 0
        s_mov_b64 exec, 1
        buffer_store_dword v{vt}, v{vt+1}, {srd(sWS)}, s66 offen sc1
        s_mov_b64 exec, -1
        """)

    def xg_mode(self, vval):
        self.a.M(f"""
        s_xor_b32 s67, s{sNONCE}, s{sXCC}
        v_cmp_ne_u32 vcc, s67, v{vval}
        s_cmp_lg_u64 vcc, 0
        s_cselect_b32 s{sMODE}, 1, {self.opt.get('force_global', 0)}
        """)

    def check_flags(self, vval, vaddr):
        a = self.a
        slow, back = self.lab("cf"), self.lab("cfb")
        a.I(f"v_cmp_ne_u32 vcc, s{sNONCE}, v{vval}")
        a.I(f"s_cbranch_vccnz {slow}")
        a.label(back)
        def stub():
            a.vm = []; a.lg = []; a.hist = []
            a.label(slow)
            self.poll([vaddr], vval, False)
            a.I(f"s_branch {back}")
        self.stubs.append(stub)

    def bf16r(self, d, s):
        a = self.a
        a.I(f"v_cvt_pk_bf16_f32 v{d}, v{s}, v{s}")
        a.I(f"v_and_b32 v{d}, 0xffff0000, v{d}")

    def ln_stats(self, vsum, vsq, vr_, vm_, t):
        a = self.a
        a.I(f"v_mul_f32 v{vm_}, {hex(f2u(1.0/640))}, v{vsum}")
        a.I(f"v_mul_f32 v{t}, {hex(f2u(1.0/640))}, v{vsq}")
        a.I(f"v_fma_f32 v{t}, -v{vm_}, v{vm_}, v{t}")
        a.I(f"v_max_f32 v{t}, 0, v{t}")
        self.bf16r(t, t)
        a.I(f"v_add_f32 v{t}, {hex(f2u(1e-5))}, v{t}")
        self.bf16r(t, t)
        a.I(f"v_sqrt_f32 v{t}, v{t}")
        self.bf16r(t, t)
        a.I(f"v_rcp_f32 v{vr_}, v{t}")
        self.bf16r(vm_, vm_)

    def phase1(self):
        a = self.a
        AH = self.p1_ahead
        sRB, sCB, sKC, sT0, sT1 = 70, 71, 72, 73, 74
        sWT, sWF = 75, 76
        vDX, vDW, vRX, vRW = 160, 164, 168, 172
        vCS, vSEL = 36, 44
        ACC, XF, WF = 64, 128, 144
        skip = "L_p1_skip"
        a.M(f"""
        s_and_b32 s66, s{sXCD}, 1
        s_mul_i32 s66, s66, 30
        s_add_u32 s66, s66, s{sJ}
        s_lshr_b32 s{sCB}, s66, 2
        s_and_b32 s67, s66, 3
        s_lshr_b32 s{sRB}, s{sXCD}, 1
        s_lshl_b32 s{sRB}, s{sRB}, 2
        s_add_u32 s{sRB}, s{sRB}, s67
        """)
        rot = self.opt.get("rot", 1)
        if rot == 10:
            a.M(f"""
            s_mul_i32 s67, s67, 3
            s_add_u32 s{sKC}, s{sCB}, s67
            s_cmp_ge_u32 s{sKC}, 20
            s_cselect_b32 s67, 20, 0
            s_sub_u32 s{sKC}, s{sKC}, s67
            s_cmp_ge_u32 s{sKC}, 10
            s_cselect_b32 s67, 10, 0
            s_sub_u32 s{sKC}, s{sKC}, s67
            """)
        elif rot == 1:
            a.I(f"s_mov_b32 s{sKC}, 0")
        else:
            a.M(f"""
            s_add_u32 s{sKC}, s{sCB}, s67
            s_and_b32 s{sKC}, s{sKC}, {rot-1}
            s_mul_i32 s{sKC}, s{sKC}, 10
            s_lshr_b32 s{sKC}, s{sKC}, {rot.bit_length()-1}
            """)
        a.M(f"""
        s_lshl_b32 s66, s{sRB}, 7
        s_lshl_b32 s67, s{sWAVE}, 5
        s_add_u32 s66, s66, s67
        v_lshrrev_b32 v2, 3, v1
        v_add_u32 v2, s66, v2
        v_mul_u32_u24 v2, 1280, v2
        v_and_b32 v3, 7, v1
        v_lshrrev_b32 v4, 4, v1
        v_xor_b32 v3, v3, v4
        v_lshlrev_b32 v3, 4, v3
        v_xor_b32 v5, 64, v3
        v_add_u32 v{vDX}, v2, v3
        v_add_u32 v{vDX+1}, v2, v5
        v_add_u32 v{vDX+1}, {10240-1024}, v{vDX+1}
        v_add_u32 v{vDX+2}, {2*(10240-1024)}, v{vDX}
        v_add_u32 v{vDX+3}, {2*(10240-1024)}, v{vDX+1}
        """)
        a.M(f"""
        s_lshl_b32 s67, s{sWAVE}, 4
        v_add_u32 v2, s67, v4
        v_mul_u32_u24 v2, 3840, v2
        v_and_b32 v3, 15, v1
        v_lshlrev_b32 v5, 2, v4
        v_xor_b32 v3, v3, v5
        v_lshlrev_b32 v3, 4, v3
        s_lshl_b32 s67, s{sCB}, 8
        v_add3_u32 v{vDW}, v2, v3, s67
        v_add_u32 v{vDW+1}, {4*3840-1024}, v{vDW}
        v_add_u32 v{vDW+2}, {2*(4*3840-1024)}, v{vDW}
        v_add_u32 v{vDW+3}, {3*(4*3840-1024)}, v{vDW}
        """)
        a.M(f"""
        s_lshl_b32 s66, s{sXCD}, 5
        s_add_u32 s66, s66, s{sJ}
        s_lshl_b32 s66, s66, 2
        s_add_u32 s66, s66, s{sWAVE}
        s_lshl_b32 s66, s66, 1
        v_lshrrev_b32 v2, 5, v1
        v_add_u32 v182, s66, v2
        v_mul_u32_u24 v180, 1280, v182
        v_and_b32 v2, 31, v1
        v_lshl_add_u32 v180, v2, 4, v180
        v_bfe_u32 v2, v1, 4, 1
        v_lshl_add_u32 v181, v2, 30, v180
        v_lshlrev_b32 v182, 4, v182
        v_mov_b32 v34, 0
        """)
        self.prologue_finish()
        self.stamp()
        self.publish_nonce()
        def row_loads():
            for c in range(3):
                a.I(f"buffer_load_dwordx4 {vr(240+4*c,4)}, v{180 + (c == 2)}, {srd(sX)}, 0 offen offset:{512*c}")
        vm0 = list(a.vm)
        def stat_calc():
            a.I("v_mov_b32 v185, 0x3f803f80")
            for k in range(12):
                a.I(f"v_dot2_f32_bf16 v183, v{240+k}, v185, {'0' if k == 0 else 'v183'}")
                a.I(f"v_dot2_f32_bf16 v184, v{240+k}, v{240+k}, {'0' if k == 0 else 'v184'}")
            for sh in (8, 4, 2, 1):
                for r in (183, 184):
                    a.I(f"v_add_f32_dpp v{r}, v{r}, v{r} row_ror:{sh} row_mask:0xf bank_mask:0xf")
            a.M("""
            v_mov_b32 v185, v183
            v_mov_b32 v186, v184
            v_permlane16_swap_b32 v183, v185
            v_permlane16_swap_b32 v184, v186
            v_add_f32 v183, v183, v185
            v_add_f32 v184, v184, v186
            """)
            self.ln_stats(183, 184, 176, 177, 185)
        def nonce_load(): a.I(f"buffer_load_dword v35, v34, {srd(sDBG)}, 0 offen sc1")
        def stat_publish():
            slow, back = self.lab("nz"), self.lab("nzb")
            a.I(f"v_readfirstlane_b32 s{sNONCE}, v35")
            a.I(f"s_mov_b32 s46, {S1_OFF}")
            a.I(f"s_cmp_eq_u32 s{sNONCE}, 0")
            a.I(f"s_cbranch_scc1 {slow}")
            a.label(back)
            a.M(f"""
            v_mov_b32 v178, s{sNONCE}
            v_mov_b32 v179, s{sNONCE}
            s_mov_b32 exec_lo, 1
            s_mov_b32 exec_hi, 1
            buffer_store_dwordx4 v[176:179], v182, {srd(sWS)}, s46 offen sc1
            s_mov_b64 exec, -1
            """)
            def stub():
                a.vm = []; a.lg = []; a.hist = []
                lp = self.lab("nzl")
                a.label(slow)
                a.I("s_mov_b32 s44, 0")
                a.label(lp)
                a.M(f"""
                buffer_load_dword v35, v34, {srd(sDBG)}, 0 offen sc1
                s_waitcnt vmcnt(0)
                v_readfirstlane_b32 s{sNONCE}, v35
                s_add_u32 s44, s44, 1
                s_cmp_gt_u32 s44, {SPIN_MAX}
                s_cbranch_scc1 {back}
                s_cmp_eq_u32 s{sNONCE}, 0
                s_cbranch_scc1 {lp}
                s_branch {back}
                """)
            self.stubs.append(stub)
        a.M(f"""
        s_cmp_ge_u32 s{sJ}, 30
        s_cbranch_scc1 {skip}
        """)
        dma_last = {}
        def dma_setup_x(c):
            a.I(f"s_lshl_b32 s{sT0}, s{sKC}, 7")
            a.I(f"s_add_u32 m0, s77, {(c % 4) * 16384}")
        def dma_x(c, i):
            dma_last[c] = a.I(f"buffer_load_dwordx4 v{vDX+i}, {srd(sX)}, s{sT0} offen offset:{1024*i} lds")
        def dma_setup_w(c):
            a.I(f"s_mul_i32 s{sT1}, s{sKC}, {64*3840}")
            a.I(f"s_add_u32 m0, s77, {65536 + (c % 4) * 16384}")
        def dma_w(c, i):
            dma_last[c] = a.I(f"buffer_load_dwordx4 v{vDW+i}, {srd(sWQKV)}, s{sT1} offen offset:{1024*i} lds")
        def kc_next():
            a.I(f"s_add_u32 s{sKC}, s{sKC}, 1")
            a.I(f"s_cmp_eq_u32 s{sKC}, 10")
            a.I(f"s_cselect_b32 s{sKC}, 0, s{sKC}")
        def dma_items(c):
            it = [lambda: (dma_setup_x(c), dma_x(c, 0))] + [lambda i=i: dma_x(c, i) for i in (1, 2, 3)]
            it += [lambda: (dma_setup_w(c), dma_w(c, 0))] + [lambda i=i: dma_w(c, i) for i in (1, 2)]
            it += [lambda: (dma_w(c, 3), kc_next())]
            return it
        a.I(f"s_lshl_b32 s77, s{sWAVE}, 12")
        NPRE = self.opt.get('npre', 2)
        for c in range(NPRE):
            for it in dma_items(c): it()
            if c == 0:
                a.M(f"""
                s_lshr_b32 s{sWT}, s{sWAVE}, 1
                s_and_b32 s{sWF}, s{sWAVE}, 1
                v_and_b32 v2, 31, v1
                v_lshrrev_b32 v3, 5, v1
                v_bfe_u32 v4, v1, 1, 3
                v_xor_b32 v4, v4, v3
                v_lshlrev_b32 v4, 4, v4
                v_lshl_add_u32 v4, v2, 7, v4
                s_lshl_b32 s66, s{sWT}, 13
                v_add_u32 v{vRX}, s66, v4
                v_xor_b32 v{vRX+1}, 32, v{vRX}
                v_xor_b32 v{vRX+2}, 64, v{vRX}
                v_xor_b32 v{vRX+3}, 96, v{vRX}
                """)
                a.M(f"""
                v_bfe_u32 v4, v1, 2, 2
                v_lshl_add_u32 v5, v3, 3, v4
                v_lshlrev_b32 v5, 8, v5
                s_lshl_b32 s66, s{sWF}, 1
                v_xor_b32 v4, s66, v4
                v_lshl_add_u32 v5, v4, 6, v5
                v_bfe_u32 v4, v1, 4, 1
                v_lshl_add_u32 v5, v4, 5, v5
                v_and_b32 v6, 3, v1
                v_lshl_add_u32 v5, v6, 3, v5
                v_add_u32 v{vRW}, 65536, v5
                v_xor_b32 v{vRW+1}, 64, v{vRW}
                """)
                a.M(f"""
                v_and_b32 v6, 15, v1
                v_lshlrev_b32 v4, 2, v4
                v_cmp_eq_u32 vcc, v6, v4
                v_mov_b32 v6, 0x3f803f80
                v_cndmask_b32 v{vSEL}, 0, v6, vcc
                v_cndmask_b32 v{vSEL+1}, 0, v6, vcc
                v_cndmask_b32 v{vSEL+2}, 0, v6, vcc
                v_cndmask_b32 v{vSEL+3}, 0, v6, vcc
                """)
                a.M(f"""
                v_lshlrev_b32 v33, 4, v2
                v_lshl_add_u32 v13, v3, 10, v33
                s_lshl_b32 s79, s{sRB}, 1
                s_add_u32 s79, s79, s{sWT}
                s_lshl_b32 s66, s79, 8
                s_lshl_b32 s67, s{sCB}, 4
                s_add_u32 s66, s66, s67
                s_lshl_b32 s67, s{sWF}, 3
                s_add_u32 s66, s66, s67
                s_lshl_b32 s78, s66, 10
                s_lshl_b32 s80, s79, 10
                s_add_u32 s80, s80, {S1_OFF}
                s_lshl_b32 s66, s{sCB}, 1
                s_add_u32 s66, s66, s{sWF}
                s_lshl_b32 s66, s66, 5
                s_add_u32 s66, s66, s79
                s_lshl_b32 s66, s66, 7
                s_add_u32 s81, s66, {F1_OFF}
                s_add_u32 s79, s78, 4096
                s_cmp_lt_u32 s{sCB}, 5
                s_cselect_b32 s82, {hex(f2u(QSCALE))}, 1.0
                """)
            if self.fine: self.stamp()

        def reads(g):
            c, ks = divmod(g, 4)
            b = g & 1
            so = (c % 4) * 16384
            it = []
            for u in range(2):
                it.append(lambda u=u: a.I(f"ds_read_b128 {vr(XF+8*b+4*u,4)}, v{vRX+ks} offset:{so+4096*u}"))
            for u in range(2):
                for rd in range(2):
                    it.append(lambda u=u, rd=rd: a.I(f"ds_read_b64_tr_b16 {vr(WF+8*b+4*u+2*rd,2)}, v{vRW+u} offset:{so+ks*4096+rd*1024}"))
            return [it[0], it[2], it[3], it[1], it[4], it[5]]

        from gen2 import repack_setup
        from gen2 import phase2_setup
        a.capture = []
        rp_dma, rp_wait, rp_read, rp_store = repack_setup(self)
        phase2_setup(self)
        setup, a.capture = a.capture, None
        groups = []
        for x in setup:
            if groups and x.split()[0] in ("s_cselect_b32", "s_cselect_b64", "s_addc_u32"): groups[-1].append(x)
            elif groups and groups[-1][0].startswith("s_cmp") and x.split()[0] in ("s_mov_b32", "s_movk_i32"): groups[-1].append(x)
            else: groups.append([x])
        a.wait_vm(dma_last[0])
        a.I("s_barrier")
        self.stamp()
        for it in reads(0): it()
        pend = []
        for c in range(NPRE, AH + 1): pend += dma_items(c)
        ST = 48
        def stat_loads():
            for tu in range(2):
                r = a.I(f"buffer_load_dwordx4 {vr(ST+4*tu,4)}, v33, {srd(sWS)}, s80 offen offset:{512*tu} sc1")
            return r
        for g in range(40):
            c, ks = divmod(g, 4)
            b = g & 1
            X = [XF + 8*b, XF + 8*b + 4]
            W = [WF + 8*b, WF + 8*b + 4]
            rd = reads(g + 1) if g + 1 < 40 else []
            boundary = (ks == 3 and g + 1 < 40)
            a.I("s_waitcnt lgkmcnt(0)")
            order = [(0, 0), (0, 1), (1, 0), (1, 1)]
            for n, (fu, tu) in enumerate(order):
                d = ACC + 16 * (2*fu + tu)
                cc = "0" if g == 0 else vr(d, 16)
                a.I(f"v_mfma_f32_32x32x16_bf16 {vr(d,16)}, {vr(W[fu],4)}, {vr(X[tu],4)}, {cc}")
                if n == 0 and g == self.opt.get("scg", 7): stat_calc()
                if n == 0 and boundary:
                    a.wait_vm(dma_last[c + 1])
                    a.I("s_barrier")
                    if self.fine: self.stamp()
                    if c + 1 + AH < 10:
                        pend += dma_items(c + 1 + AH)
                    if c == 8:
                        for gr in groups:
                            for x in gr: a.I(x)
                        print("setup left at c=8:", sum(map(len, groups)))
                        groups = []
                        pend += rp_dma
                take = {0: 3, 1: 3, 2: 0, 3: 0}[n]
                for it in rd[:take]: it()
                rd = rd[take:]
                if n == 2:
                    for _ in range(3 if g < 3 else 2):
                        if pend: pend.pop(0)()
                    if g == self.opt.get("gs", 34): stat_id = stat_loads()
                    if g == 2:
                        row_loads()
                        nonce_load()
                    if g == 12: stat_publish()
                if n == 3 or (n == 2 and not pend):
                    k = 0
                    while groups and k < 5:
                        for x in groups.pop(0): a.I(x); k += 1
                if n >= 2:
                    u = n - 2
                    cc = "0" if g == 0 else vr(vCS + 4*u, 4)
                    a.I(f"v_mfma_f32_16x16x32_bf16 {vr(vCS+4*u,4)}, {vr(vSEL,4)}, {vr(W[u],4)}, {cc}")
        assert not pend
        self.stamp()
        retry, ok = self.lab("st"), self.lab("sto")
        a.I("s_mov_b32 s44, 0")
        a.wait_vm(stat_id)
        a.fence()
        keep = list(a.vm)
        a.label(retry)
        a.M(f"""
        v_cmp_ne_u32 vcc, s{sNONCE}, v{ST+2}
        v_cmp_ne_u32 s[46:47], s{sNONCE}, v{ST+6}
        s_or_b64 vcc, vcc, s[46:47]
        s_cbranch_scc0 {ok}
        s_add_u32 s44, s44, 1
        s_cmp_gt_u32 s44, {SPIN_MAX}
        s_cbranch_scc1 {ok}
        """)
        stat_loads()
        a.I("s_waitcnt vmcnt(0)")
        a.I(f"s_branch {retry}")
        a.label(ok)
        a.fence(False)
        a.vm = keep
        if self.opt.get("f1"): self.stamp()
        EA, EB = XF, XF + 8
        for u in range(2):
            c0 = vCS + 4*u
            a.M(f"""
            v_and_b32 v2, 0xffff0000, v{c0}
            v_sub_f32 v3, v{c0}, v2
            v_and_b32 v4, 0xffff0000, v3
            v_sub_f32 v3, v3, v4
            v_cvt_pk_bf16_f32 v{EA+4*u}, v2, v4
            v_cvt_pk_bf16_f32 v{EA+4*u+1}, v3, 0
            v_mov_b32 v{EA+4*u+2}, 0
            v_mov_b32 v{EA+4*u+3}, 0
            v_cvt_pk_bf16_f32 v{EB+4*u}, -v{ST+4*u+1}, -v{ST+4*u+1}
            v_mov_b32 v{EB+4*u+1}, v{EB+4*u}
            v_mov_b32 v{EB+4*u+2}, 0
            v_mov_b32 v{EB+4*u+3}, 0
            v_mul_f32 v{ST+4*u}, s82, v{ST+4*u}
            """)
        tiles = [(0, 0), (0, 1), (1, 0), (1, 1)]
        for fu, tu in tiles:
            d = ACC + 16 * (2*fu + tu)
            a.I(f"v_mfma_f32_32x32x16_bf16 {vr(d,16)}, {vr(EA+4*fu,4)}, {vr(EB+4*tu,4)}, {vr(d,16)}")
        P = 176
        for n, (fu, tu) in enumerate(tiles):
            d = ACC + 16 * (2*fu + tu)
            st = ST + 4*tu
            p = P + 8 * n
            for k in range(8):
                a.I(f"v_pk_mul_f32 {vr(d+2*k,2)}, {vr(d+2*k,2)}, {vr(st,2)} op_sel:[0,0] op_sel_hi:[1,0]")
            for k in range(8):
                a.I(f"v_cvt_pk_bf16_f32 v{p+k}, v{d+2*k}, v{d+2*k+1}")
            for pr in range(2):
                a.I(f"v_permlane32_swap_b32 v{p+4*pr}, v{p+4*pr+2}")
                a.I(f"v_permlane32_swap_b32 v{p+4*pr+1}, v{p+4*pr+3}")
            for pr in range(2):
                a.I(f"buffer_store_dwordx4 {vr(p+4*pr,4)}, v13, {srd(sWS)}, s{78+fu} offen offset:{2048*pr+512*tu} sc1")
        self.stamp()
        rp_wait()
        for it in rp_read: it()
        self.rp_store = rp_store
        a.M(f"""
        s_mov_b32 s98, s81
        s_waitcnt lgkmcnt(0)
        s_branch L_p1_done
        """)
        vm_keep = list(a.vm)
        a.vm = vm0
        a.label(skip)
        a.fence(False)
        from gen2 import colsum_w1, colsum_w1_issue, w1_dma
        a.I("s_mov_b32 s100, 0x7f000000")
        a.I("s_mov_b32 s101, 0x7f000000")
        row_loads()
        colsum_w1_issue(self)
        self.cs_ids = [w1_dma(self, 200, 0)]
        stat_calc()
        self.cs_ids.append(w1_dma(self, 200, 1))
        nonce_load()
        stat_publish()
        for sub in range(2, 5): self.cs_ids.append(w1_dma(self, 200, sub))
        colsum_w1(self)
        a.M(f"""
        s_mov_b32 s98, s4
        """)
        phase2_setup(self)
        a.fence()
        a.label("L_p1_done")
        a.fence(False)
        a.vm = [(-1 - i, set(), None) for i in range(8)]
        a.lg = []

    def build(self):
        a = self.a
        self.prologue()
        self.phase1()
        if self.stop == 1:
            a.I("s_waitcnt vmcnt(0)")
        if self.stop >= 2:
            from gen2 import phase2, phase3, phase4, phase5
            phase2(self)
            if self.stop >= 3: phase3(self)
            if self.stop >= 4: phase4(self)
            if self.stop >= 5: phase5(self)
        self.dump_stamps()
        a.drain()
        a.label("L_end")
        a.I("s_endpgm")
        if self.stop >= 2:
            from gen2 import slow_path
            slow_path(self)
        for st in self.stubs: st()
        head = open(f"cdna_kernels/{NAME}.s.ref").read().split("; Override launch")[0]
        out = head + f"""; @launch grid=(256,1,1) block=(256,1,1) lds=163840
.amdgcn_target "amdgcn-amd-amdhsa--gfx950"
.text
.globl {KNAME}
.p2align 8
.type {KNAME},@function
{KNAME}:
""" + a.text() + f"""L_code_end:
.set CODE_BYTES, L_code_end-{KNAME}
.section .rodata,"a"
.p2align 6
.amdhsa_kernel {KNAME}
  .amdhsa_next_free_vgpr 512
  .amdhsa_next_free_sgpr 102
  .amdhsa_accum_offset 256
  .amdhsa_group_segment_fixed_size 0
  .amdhsa_kernarg_size 72
  .amdhsa_user_sgpr_count 2
  .amdhsa_user_sgpr_kernarg_segment_ptr 1
  .amdhsa_system_sgpr_workgroup_id_x 1
.end_amdhsa_kernel
"""
        return out

if __name__ == "__main__":
    import argparse
    ap = argparse.ArgumentParser()
    ap.add_argument("-o", default="out.s")
    ap.add_argument("--stop", type=int, default=99)
    ap.add_argument("--stamps", action="store_true")
    ap.add_argument("--ahead", type=int, default=2)
    ap.add_argument("--probe", default=None)
    ap.add_argument("--opt", default="")
    args = ap.parse_args()
    kw = {k: int(v) for k, v in (x.split('=') for x in args.opt.split(',') if x)}
    g = Gen(stop=args.stop, stamps=args.stamps or args.probe is not None, p1_ahead=args.ahead, probe=tuple(map(int, args.probe.split(':'))) if args.probe else None, **kw)
    s = g.build()
    open(args.o, "w").write(s)
    print(f"stamps {g.nstamp} instrs {g.a.nins} nops {g.a.nnop} autowaits {g.a.nwait} bytes {len(s)}")
```

```python
from asmlib import vr
from gen import *

SLOT = 14336
NSLOT = 5
RING = 163840 - NSLOT * SLOT
RED = 163840 - 61440

sH, sQB, sPAR, sB3, sBLK = 43, 45, 48, 49, 50
sCB3, sRB64 = 51, 52
sW1S = 53
sKVS = 54
sQS = 55
sT0, sT1 = 56, 57
sKVD = 58
sW2S, sWOS = 59, 60
vXR = 160
sOS = 78
sOWN = 6
vH = 222

def w2reg(step, f):
    q = (step * 5 + f) * 4
    return ("a", q) if q < 256 else ("v", 232 + q - 256)

def worege(st, f):
    return 172 + 20*st + 4*f if st < 3 else 52 + 20*(st-3) + 4*f

def repack_setup(g):
    a = g.a
    sR = 96
    a.M(f"""
    s_mul_i32 s83, s2, 3
    s_add_u32 s83, s83, s{sWAVE}
    s_cmp_eq_u32 s{sWAVE}, 3
    s_cselect_b32 s83, 1023, s83
    s_lshl_b32 s88, s83, 7
    s_add_u32 s88, s88, {FR_OFF}
    s_mov_b32 s85, {W2F_OFF}
    s_movk_i32 s86, 1280
    s_movk_i32 s87, 13108
    s_cmp_lt_u32 s83, 270
    s_cselect_b64 s[{sR}:{sR+1}], s[{sW2}:{sW2+1}], s[{sWO}:{sWO+1}]
    s_cselect_b32 s{sR+2}, s{sW2+2}, s{sWO+2}
    s_cselect_b32 s84, 0, 270
    s_cselect_b32 s85, s85, {WOF_OFF}
    s_cmp_lt_u32 s83, 370
    s_cselect_b64 s[{sR}:{sR+1}], s[{sR}:{sR+1}], s[{sW1}:{sW1+1}]
    s_cselect_b32 s{sR+2}, s{sR+2}, {640*3456}
    s_cselect_b32 s84, s84, 370
    s_cselect_b32 s85, s85, {W1F_OFF}
    s_cselect_b32 s86, s86, 3456
    s_cselect_b32 s87, s87, 4682
    s_cselect_b32 s89, 5, 14
    s_mov_b32 s{sR+3}, 0x20000
    s_sub_u32 s84, s83, s84
    s_lshl_b32 s90, s84, 13
    s_add_u32 s85, s85, s90
    s_lshl_b32 s90, s84, 9
    s_add_u32 s90, s90, {CS_OFF}
    s_cmp_lt_u32 s83, 370
    s_cselect_b32 s90, 0x7f000000, s90
    s_mul_i32 s87, s87, s84
    s_lshr_b32 s87, s87, 16
    s_mul_i32 s89, s89, s87
    s_sub_u32 s84, s84, s89
    s_mul_i32 s87, s87, s86
    s_lshl_b32 s87, s87, 5
    s_lshl_b32 s84, s84, 8
    s_add_u32 s87, s87, s84
    s_cmp_ge_u32 s83, 650
    s_cselect_b32 s{sR+2}, 0, s{sR+2}
    s_cselect_b32 s100, 0x7f000000, s85
    s_cselect_b32 s101, 0x7f000000, s88
    s_cselect_b32 s90, 0x7f000000, s90
    s_lshl_b32 s89, s86, 2
    s_sub_u32 s89, s89, 1024
    s_lshl_b32 s83, s{sWAVE}, 13
    v_lshrrev_b32 v2, 4, v1
    v_mul_u32_u24 v3, s86, v2
    v_and_b32 v4, 15, v1
    v_lshlrev_b32 v5, 1, v2
    v_xor_b32 v4, v4, v5
    v_lshlrev_b32 v4, 4, v4
    v_add_u32 v252, v3, v4
    v_xor_b32 v4, 128, v4
    v_add_u32 v253, v3, v4
    v_bfe_u32 v3, v1, 2, 2
    v_lshl_add_u32 v4, v2, 3, v3
    v_lshlrev_b32 v4, 8, v4
    v_bfe_u32 v5, v1, 2, 3
    v_lshl_add_u32 v4, v5, 5, v4
    v_and_b32 v5, 3, v1
    v_lshl_add_u32 v4, v5, 3, v4
    v_add_u32 v254, s83, v4
    """)
    last = [None]
    def dma(i):
        if i % 4 == 0:
            a.I(f"s_add_u32 m0, s83, {1024*i}")
        if i == 4: a.I("s_add_u32 s87, s87, 4096")
        if i > 0: a.I("s_add_u32 s87, s87, s89")
        last[0] = a.I(f"buffer_load_dwordx4 v{252+((i>>1)&1)}, {srd(sR)}, s87 offen offset:{1024*(i%4)} lds")
    RP = 208
    def rd(t):
        for r in range(2):
            a.I(f"ds_read_b64_tr_b16 {vr(RP+4*t+2*r,2)}, v2 offset:{1024*r}")
    def st(t):
        if t == 4: a.I("s_add_u32 s100, s100, 4096")
        a.I(f"buffer_store_dwordx4 {vr(RP+4*t,4)}, v16, {srd(sWS)}, s100 offen offset:{1024*(t%4)} sc1")
    return ([lambda i=i: dma(i) for i in range(8)], lambda: a.wait_vm(last[0]),
            [lambda t=t: rd(t) for t in range(8)], [lambda t=t: st(t) for t in range(8)])

def w1f_dma(g, sub, vlin):
    a = g.a
    def p(k):
        a.I(f"s_add_u32 m0, s7, {sub*4*7168 + 4096*k}")
        a.I(f"s_add_u32 s{sT1}, s{sW1S}, {sub*4*112*1024 + 4096*k}")
    def f(i):
        return a.I(f"buffer_load_dwordx4 v{vlin}, {srd(sWS)}, s{sT1} offen offset:{1024*(i%4)} sc1 lds")
    return [(lambda: p(0), lambda: (f(0), f(1))), (None, lambda: (f(2), f(3))), (lambda: p(1), lambda: (f(4), f(5))), (None, lambda: f(6))]

def wb_l2(g):
    a = g.a
    sk = g.lab("wb")
    a.I(f"s_or_b32 s66, s{sJ}, s{sWAVE}")
    a.I(f"s_cbranch_scc1 {sk}")
    a.raw("    buffer_wbl2 sc1")
    a.label(sk)

def run(items):
    for pre, fn in items:
        if pre: pre()
        fn()

vKV, vK0, vK1, vV, vQ0 = 16, 24, 25, 26, 28
def phase2_setup(g):
    a = g.a
    a.M(f"""
    s_lshr_b32 s66, s{sJ}, 3
    s_lshl_b32 s{sRB64}, s{sXCD}, 2
    s_add_u32 s{sRB64}, s{sRB64}, s66
    s_mov_b32 s{sH}, s{sRB64}
    s_and_b32 s{sCB3}, s{sJ}, 7
    s_mov_b32 s{sQB}, s{sCB3}
    s_and_b32 s{sPAR}, s{sH}, 1
    s_lshr_b32 s66, s{sH}, 1
    s_mul_i32 s66, s66, 5
    s_lshl_b32 s67, s{sPAR}, 1
    s_add_u32 s{sB3}, s66, s67
    s_lshl_b32 s{sBLK}, s{sQB}, 2
    s_add_u32 s{sBLK}, s{sBLK}, s{sWAVE}
    s_lshr_b32 s61, s{sWAVE}, 1
    s_and_b32 s62, s{sWAVE}, 1
    """)
    a.M(f"""
    s_lshr_b32 s66, s{sB3}, 3
    s_add_u32 s67, s{sB3}, 2
    s_lshr_b32 s67, s67, 3
    s_sub_u32 s67, s67, s66
    v_bfe_u32 v2, v1, 4, 1
    v_mul_u32_u24 v2, s67, v2
    v_add_u32 v2, s66, v2
    s_mul_i32 s63, s61, 10
    s_add_u32 s63, s63, 10
    v_add_u32 v3, s63, v2
    v_and_b32 v4, 15, v1
    v_lshl_add_u32 v4, v4, 1, s62
    v_lshl_add_u32 v5, v3, 5, v4
    v_lshlrev_b32 v5, 7, v5
    v_add_u32 v19, {F1_OFF}, v5
    v_and_b32 v4, 3, v4
    s_lshl_b32 s63, s{sQB}, 2
    v_add_u32 v4, s63, v4
    v_lshl_add_u32 v3, v3, 5, v4
    v_lshl_add_u32 v2, v2, 5, s{sBLK}
    v_cmp_gt_u32 vcc, 32, v1
    v_cndmask_b32 v2, v2, v3, vcc
    v_lshlrev_b32 v2, 7, v2
    v_add_u32 v30, {F1_OFF}, v2
    """)
    a.M(f"""
    s_lshl_b32 s66, s61, 2
    v_lshlrev_b32 v{vKV}, 4, v1
    v_xor_b32 v2, s66, v1
    v_lshlrev_b32 v{vKV+1}, 4, v2
    s_lshl_b32 s66, s61, 3
    v_xor_b32 v2, s66, v1
    v_lshlrev_b32 v{vKV+2}, 4, v2
    s_mul_i32 s66, s61, 80
    s_add_u32 s66, s66, 80
    s_add_u32 s66, s66, s{sB3}
    s_lshl_b32 s67, s62, 8
    s_add_u32 s66, s66, s67
    s_lshl_b32 s67, s{sQB}, 10
    s_add_u32 s66, s66, s67
    s_lshl_b32 s{sKVS}, s66, 10
    s_mul_i32 s{sKVD}, s62, 7168
    s_mul_i32 s66, s61, 3072
    s_add_u32 s{sKVD}, s{sKVD}, s66
    s_add_u32 s{sKVD}, s{sKVD}, {RING}
    """)
    a.M(f"""
    v_and_b32 v2, 31, v1
    v_lshrrev_b32 v3, 5, v1
    v_lshlrev_b32 v2, 4, v2
    v_add_u32 v4, s{sPAR}, v3
    v_lshl_add_u32 v{vQ0}, v4, 10, v2
    v_add_u32 v{vK0}, {RING}, v{vQ0}
    s_cmp_eq_u32 s{sPAR}, 0
    s_cselect_b32 s63, 2048, 0
    v_add_u32 v31, s63, v2
    v_add_u32 v4, 6144, v2
    v_cndmask_b32 v{vK1}, v4, v31, vcc
    v_add_u32 v{vK1}, {RING}, v{vK1}
    """)
    a.M(f"""
    v_bfe_u32 v4, v1, 4, 1
    v_and_b32 v5, 3, v1
    v_lshl_add_u32 v4, v4, 2, v5
    v_lshrrev_b32 v5, 1, v4
    v_add_u32 v6, s{sPAR}, v5
    s_lshr_b32 s63, s63, 10
    v_mov_b32 v7, s63
    v_cmp_eq_u32 vcc, 2, v5
    v_cndmask_b32 v6, v6, v7, vcc
    v_and_b32 v8, 1, v4
    v_xor_b32 v9, s{sPAR}, v8
    v_cndmask_b32 v8, v8, v9, vcc
    v_cmp_le_u32 vcc, 5, v4
    v_cndmask_b32 v6, v6, 3, vcc
    v_cndmask_b32 v8, v8, 0, vcc
    v_cmp_eq_u32 vcc, 5, v4
    v_cndmask_b32 v8, v8, 1, vcc
    v_bfe_u32 v9, v1, 2, 2
    v_lshl_add_u32 v9, v3, 2, v9
    v_lshlrev_b32 v10, 2, v6
    v_xor_b32 v9, v9, v10
    v_lshlrev_b32 v9, 4, v9
    v_lshl_add_u32 v9, v6, 10, v9
    v_lshl_add_u32 v9, v8, 3, v9
    v_add_u32 v{vV}, {RING+3072}, v9
    v_xor_b32 v{vV+1}, 128, v{vV}
    """)
    a.M(f"""
    s_mul_i32 s66, s{sCB3}, 5
    s_mul_i32 s67, s{sWAVE}, {14*40}
    s_add_u32 s67, s67, s66
    s_lshl_b32 s67, s67, 10
    s_add_u32 s{sW2S}, s67, {W2F_OFF}
    s_mul_i32 s67, s{sWAVE}, {5*40}
    s_add_u32 s67, s67, s66
    s_lshl_b32 s67, s67, 10
    s_add_u32 s{sWOS}, s67, {WOF_OFF}
    s_and_b32 s5, s{sJ}, 15
    s_mul_i32 s63, s5, 7
    s_mul_i32 s67, s{sWAVE}, 112
    s_add_u32 s67, s67, s63
    s_lshl_b32 s67, s67, 10
    s_add_u32 s{sW1S}, s67, {W1F_OFF}
    s_mul_i32 s7, s{sWAVE}, 7168
    v_and_b32 v2, 1, v1
    v_lshrrev_b32 v3, 1, v1
    v_lshl_add_u32 v4, v2, 2, s66
    v_lshrrev_b32 v4, 3, v4
    v_mul_u32_u24 v5, 6, v2
    v_add_u32 v5, s63, v5
    v_lshrrev_b32 v5, 3, v5
    s_mul_i32 s67, s{sWAVE}, 14
    v_add_u32 v6, s67, v3
    v_min_u32 v6, 53, v6
    v_mad_u32_u24 v6, v6, 5, v4
    s_mul_i32 s67, s{sWAVE}, 5
    s_add_u32 s67, s67, {54-14}
    v_add_u32 v7, s67, v3
    v_mad_u32_u24 v7, v7, 5, v4
    v_cmp_le_u32 vcc, 14, v3
    v_cndmask_b32 v6, v6, v7, vcc
    v_subrev_u32 v7, 19, v3
    v_min_u32 v7, 4, v7
    v_lshl_add_u32 v7, v7, 2, s{sWAVE}
    v_mad_u32_u24 v7, v7, 14, v5
    v_add_u32 v7, 370, v7
    v_cmp_le_u32 vcc, 19, v3
    v_cndmask_b32 v6, v6, v7, vcc
    v_lshlrev_b32 v6, 7, v6
    v_add_u32 v29, {FR_OFF}, v6
    s_add_u32 s{sOWN}, s{sWAVE}, s{sCB3}
    s_and_b32 s{sOWN}, s{sOWN}, 3
    s_add_u32 s67, s{sOWN}, 1
    s_and_b32 s67, s67, 3
    s_lshl_b32 s66, s{sRB64}, 2
    s_add_u32 s66, s66, s67
    s_lshl_b32 s66, s66, 4
    v_and_b32 v2, 15, v1
    v_add_u32 v2, s66, v2
    v_mul_u32_u24 v2, 1280, v2
    v_lshrrev_b32 v3, 4, v1
    v_lshl_add_u32 v2, v3, 3, v2
    s_mul_i32 s66, s{sCB3}, 160
    v_add_u32 v14, s66, v2
    """)
    g.xg_addr(20)
    a.M(f"""
    s_mul_i32 s66, s{sJ}, 20
    v_add_u32 v11, s66, v1
    v_lshlrev_b32 v11, 7, v11
    v_min_u32 v11, CODE_BYTES-64, v11
    """)
    a.M(f"""
    s_lshl_b32 s66, s{sJ}, 2
    s_add_u32 s66, s66, s{sWAVE}
    s_lshl_b32 s67, s{sXCD}, 7
    s_add_u32 s66, s66, s67
    s_mul_i32 s67, s66, {54*128}
    s_add_u32 s67, s67, {H1_OFF}
    v_lshl_add_u32 v22, v1, 7, s67
    s_lshl_b32 s67, s66, 7
    s_add_u32 s67, s67, {ST_OFF}
    v_mov_b32 v2, s67
    v_cmp_le_u32 vcc, 54, v1
    v_cndmask_b32 v22, v22, v2, vcc
    s_mul_i32 s67, s66, {20*128}
    s_add_u32 s67, s67, {H_OFF}
    v_lshl_add_u32 v23, v1, 7, s67
    s_mul_i32 s67, s{sBLK}, 80
    s_add_u32 s67, s67, s{sB3}
    s_cmp_eq_u32 s{sPAR}, 0
    s_cselect_b32 s63, 2, 0
    s_add_u32 s67, s67, s63
    s_lshl_b32 s67, s67, 10
    s_add_u32 s67, s67, {O_OFF - 20*128}
    v_lshl_add_u32 v2, v1, 7, s67
    v_cmp_le_u32 vcc, 20, v1
    v_cndmask_b32 v23, v23, v2, vcc
    s_lshl_b32 s67, s66, 7
    s_add_u32 s67, s67, {F2_OFF - 28*131072}
    v_lshlrev_b32 v2, 17, v1
    v_add_u32 v2, s67, v2
    v_cmp_le_u32 vcc, 28, v1
    v_cndmask_b32 v23, v23, v2, vcc
    """)
    assert F3_OFF - F2_OFF == 131072 and F4_OFF - F3_OFF == 131072
    a.M(f"""
    v_and_b32 v2, 7, v1
    s_lshl_b32 s66, s{sWAVE}, 3
    v_add_u32 v2, s66, v2
    v_lshl_add_u32 v2, v2, 5, s{sRB64}
    v_lshlrev_b32 v2, 7, v2
    v_add_u32 v2, {F0_OFF}, v2
    v_lshrrev_b32 v3, 3, v1
    v_cmp_eq_u32 vcc, {6 if g.opt.get("so3", 1) else 60}, v3
    v_cndmask_b32 v29, v29, v2, vcc
    s_lshl_b32 s66, s{sWAVE}, 8
    s_add_u32 s66, s66, {RING+6144}
    v_lshl_add_u32 v21, v1, 2, s66
    s_lshl_b32 s{sQS}, s{sBLK}, 8
    s_add_u32 s{sQS}, s{sQS}, s{sB3}
    s_lshl_b32 s{sQS}, s{sQS}, 10
    """)

def phase2(g):
    a = g.a
    Q, KB, VB, P, S, O = 32, 48, 64, 80, 96, 128
    a.M(f"""
    s_barrier
    v_and_b32 v5, 3, v1
    v_mov_b32 v4, 0x3f80
    v_cmp_eq_u32 vcc, 0, v5
    v_cndmask_b32 v4, 0, v4, vcc
    """)
    for k in range(2 * NSLOT):
        a.I(f"ds_write_b32 v21, v4 offset:{k*7168}")
    a.I("s_waitcnt vmcnt(0)")
    g.signal(75, 2)
    g.stamp()
    a.M(f"""
    s_mul_i32 s66, s{sBLK}, 80
    s_add_u32 s66, s66, s{sB3}
    s_lshl_b32 s66, s66, 10
    s_add_u32 s{sOS}, s66, {O_OFF}
    s_cmp_eq_u32 s{sPAR}, 0
    s_cselect_b32 s67, 2048, 8
    s_add_u32 s{sOS+1}, s67, s{sOS}
    s_lshl_b32 s4, s{sH}, 5
    s_add_u32 s4, s4, s{sBLK}
    s_lshl_b32 s4, s4, 7
    s_add_u32 s4, s4, {F2_OFF}
    s_mov_b32 s61, 0
    v_add_u32 v170, 4096, v{vKV}
    v_lshrrev_b32 v171, 4, v1
    v_mov_b32 v172, -1
    v_mov_b32 v173, -1
    v_mov_b32 v174, -1
    v_mov_b32 v175, -1
    s_add_u32 s76, s4, {F0_OFF - F2_OFF}
    """)

    def wfrag(kind, st):
        base = sW2S if kind == "w2" else sWOS
        def p(k): a.I(f"s_add_u32 s{sT1}, s{base}, {st*40*1024 + 4096*k}")
        def f(i):
            fl, r = w2reg(st, i) if kind == "w2" else ("v", worege(st, i))
            a.I(f"buffer_load_dwordx4 {vr(r,4,fl)}, v{vKV if i < 4 else 170}, {srd(sWS)}, s{sT1} offen offset:{1024*(i%4)} sc1")
        return [(lambda: p(0), lambda: (f(0), f(1))), (None, lambda: (f(2), f(3))), (None, lambda: f(4))]
    g.wfrag = wfrag
    wq = [wfrag("w2", st) for st in range(14)] + [wfrag("wo", st) for st in range(3)] + [w1f_dma(g, sub, vKV) for sub in range(3)]
    g.poll([30], 2)
    g.stamp()

    kv_last = {}
    def kv_dma(c):
        def p0():
            a.I(f"s_add_u32 m0, s{sKVD}, {(c % NSLOT) * SLOT}")
            a.I(f"s_xor_b32 s{sT0}, s{sKVS}, {c << 19}")
        def f(i):
            kv_last[c] = a.I(f"buffer_load_dwordx4 v{vKV+i}, {srd(sWS)}, s{sT0} offen offset:{1024*i} sc1 lds")
        return [(p0, lambda: (f(0), f(1))), (None, lambda: f(2))]
    run(kv_dma(0))
    for t in range(2):
        a.I(f"buffer_load_dwordx4 {vr(Q+8*t,4)}, v{vQ0}, {srd(sWS)}, s{sQS} offen offset:{512*t} sc1")
        a.I(f"buffer_load_dwordx4 {vr(Q+8*t+4,4)}, v31, {srd(sWS)}, s{sQS} offen offset:{512*t} sc1")
    run(kv_dma(1))
    a.M(f"""
    s_cmp_eq_u32 s{sPAR}, 0
    s_cselect_b32 s62, -1, 0
    s_cselect_b32 s64, 0, -1
    s_mov_b32 s63, 0
    s_mov_b32 s65, 0
    """)
    for t in range(2):
        for k in range(4):
            m = "s[62:63]" if k < 2 else "s[64:65]"
            a.I(f"v_cndmask_b32 v{Q+8*t+4+k}, 0, v{Q+8*t+4+k}, {m}")
    a.wait_vm(kv_last[0])
    a.I("s_waitcnt lgkmcnt(0)")
    a.I("s_barrier")

    def koff(i):
        c, t = divmod(i, 4)
        return (c % NSLOT) * SLOT + (t >> 1) * 7168 + (t & 1) * 512
    def kread(i):
        b = KB + 8 * (i & 1)
        return [lambda: a.I(f"ds_read_b128 {vr(b,4)}, v{vK0} offset:{koff(i)}"),
                lambda: a.I(f"ds_read_b128 {vr(b+4,4)}, v{vK1} offset:{koff(i)}")]
    def vread(i):
        b = VB + 8 * (i & 1)
        return [lambda j=j, rd=rd: a.I(f"ds_read_b64_tr_b16 {vr(b+4*j+2*rd,2)}, v{vV+rd} offset:{koff(i)+256*j}")
                for j in range(2) for rd in range(2)]
    def qk(t, i):
        b = KB + 8 * (i & 1); s = S + 16 * t; q = Q + 8 * t
        return [f"v_mfma_f32_32x32x16_bf16 {vr(s,16)}, {vr(b,4)}, {vr(q,4)}, 0",
                f"v_mfma_f32_32x32x16_bf16 {vr(s,16)}, {vr(b+4,4)}, {vr(q+4,4)}, {vr(s,16)}"]
    def pv(t, i):
        b = VB + 8 * (i & 1); o = O + 16 * t; p = P + 8 * t
        c0 = "0" if i == 0 else vr(o, 16)
        return [f"v_mfma_f32_32x32x16_bf16 {vr(o,16)}, {vr(b,4)}, {vr(p,4)}, {c0}",
                f"v_mfma_f32_32x32x16_bf16 {vr(o,16)}, {vr(b+4,4)}, {vr(p+4,4)}, {vr(o,16)}"]

    for it in kread(0) + kread(1) + vread(0): it()
    for t in range(2):
        for m in qk(t, 0): a.I(m)
    a.I("s_mov_b32 s62, 0")
    a.I("s_mov_b32 s63, -1")
    for t in range(2):
        s = S + 16 * t
        a.I(f"v_max3_f32 v{2+t}, v{s}, v{s+1}, v{s+2}")
        for k in range(3, 15, 2):
            a.I(f"v_max3_f32 v{2+t}, v{2+t}, v{s+k}, v{s+k+1}")
        a.I(f"v_max_f32 v{2+t}, v{2+t}, v{s+15}")
        a.I(f"v_mov_b32 v{4+t}, v{2+t}")
        a.I(f"v_permlane32_swap_b32 v{2+t}, v{4+t}")
        a.I(f"v_max_f32 v{2+t}, v{2+t}, v{4+t}")
        a.I(f"v_cvt_pk_bf16_f32 v{2+t}, -v{2+t}, 0")
        a.I(f"v_cndmask_b32 v{Q+8*t+4}, v{Q+8*t+4}, v{2+t}, s[62:63]")
        if t == 0:
            for m in qk(0, 0): a.I(m)

    lastfill = [None]
    extra = []
    def half(t, mf, fill):
        s = S + 16 * t; p = P + 8 * t
        mf = list(mf); fill = list(fill)
        for q in range(4):
            item = extra.pop(0) if extra else None
            if item and item[0]: item[0]()
            if mf:
                a.I(mf.pop(0))
            if item: item[1]()
            if fill: lastfill[0] = fill.pop(0)()
            for k in range(4):
                a.I(f"v_exp_f32 v{s+4*q+k}, v{s+4*q+k}")
            if q > 0:
                for k in range(2):
                    a.I(f"v_cvt_pk_bf16_f32 v{p+2*(q-1)+k}, v{s+4*(q-1)+2*k}, v{s+4*(q-1)+2*k+1}")
        assert not fill and not mf
        for k in range(2):
            a.I(f"v_cvt_pk_bf16_f32 v{p+6+k}, v{s+12+2*k}, v{s+12+2*k+1}")

    g.stamp()
    nop = (None, lambda: None)
    SP = g.opt.get("spread", 1)
    def spaced(items):
        GR = g.opt.get("grp", 0)
        if GR:
            return [(items[0][0], lambda: run([(None, items[0][1])] + items[1:]))] + [nop] * GR
        out = []
        for it in items:
            if g.opt.get("single"):
                a.capture = []
                it[1]()
                cap, a.capture = a.capture, None
                if len(cap) == 2 and not any("lds" in x and "s56" in x for x in cap):
                    out += [(it[0], lambda x=cap[0]: a.I(x))] + [nop] * (SP // 2) + [(None, lambda x=cap[1]: a.I(x))] + [nop] * ((SP - 1) // 2)
                    continue
            out += [it] + [nop] * SP
        return out
    IL, IC = g.opt.get("il", 0), g.opt.get("ic", 2)
    def ld15(va): return [(None, lambda: a.I(f"buffer_load_dword v15, v{va}, {srd(sWS)}, 0 offen sc1"))]
    extra += ld15(19)
    for k in range(0, 8, 2): extra += [(None, lambda k=k: (g.rp[0][k](), g.rp[0][k+1]())), nop]
    extra += [(None, lambda: g.xg_publish(2))]
    SO3 = g.opt.get("so3", 1)
    def fill_o():
        a.I(f"buffer_store_dwordx4 v[172:175], v{vQ0}, {srd(sWS)}, s{sOS} offen sc1")
        a.I(f"buffer_store_dwordx4 v[172:175], v{vQ0}, {srd(sWS)}, s{sOS} offen offset:512 sc1")
        a.I(f"buffer_store_dwordx2 v[172:173], v{vKV}, {srd(sWS)}, s{sOS+1} offen sc1")
    if SO3: extra += [(None, fill_o)]
    def thin(k):
        m = ((1 << 14) - 1) << (14 * k) if k < 4 else (1 << 31) - 1
        a.I(f"s_mov_b32 exec_lo, {hex(m & 0xffffffff)}")
        a.I(f"s_mov_b32 exec_hi, {hex(m >> 32)}")
        a.I(f"buffer_load_dword v{6+k}, v{22 if k < 4 else 23}, {srd(sWS)}, 0 offen sc1")
        a.I("s_mov_b64 exec, -1")
    WN = {6: 5, 8: 4, 10: 4, 12: 4, 14: 3}
    half(0, qk(1, 0), [])
    for i in range(64):
        if i == 2 or ((i + 2) % 8 == 0 and i + 2 < 64):
            c = (i + 2) // 4
            while extra and extra[0] is nop: extra.pop(0)
            assert not extra, len(extra)
            a.wait_vm(kv_last[c if c == 1 else c + 1])
            a.I("s_barrier")
            if g.opt.get("att"): g.stamp()
            if c == 2:
                for k in range(8): extra += [(lambda k=k: a.I(f"v_xor_b32 v2, {32*k}, v254"), g.rp[2][k])]
                extra += [nop, nop]
                for k in range(0, 8, 2): extra += [(None, lambda k=k: (g.rp[3][k](), g.rp[3][k+1]())), nop, nop]
                extra += [(lambda: [a.I(f"v_mov_b32 v{172+k}, 0x3f803f80") for k in range(4)], lambda: None)]
                for k in range(8):
                    extra += [(lambda k=k: a.I(f"v_mfma_f32_16x16x32_bf16 {vr(176+4*k,4)}, v[172:175], {vr(208+4*k,4)}, 0"), lambda: None)]
                def pick():
                    for q in range(1, 4):
                        a.I(f"v_cmp_eq_u32 vcc, {q}, v171")
                        a.I(f"v_lshlrev_b32 v2, 2, v1" if q == 1 else "s_nop 0")
                        for hh in range(2):
                            a.I(f"v_cndmask_b32 v{176+16*hh}, v{176+16*hh}, v{176+16*hh+4*q}, vcc")
                extra += [nop, (pick, lambda: [a.I(f"buffer_store_dword v{176+16*hh}, v2, {srd(sWS)}, s90 offen offset:{256*hh} sc1") for hh in range(2)])]
            if c == 4:
                g.signal(101, 2)
                if SO3: g.signal(76, 2)
            if c == 6: g.check_flags(15, 29)
            if c == 10: extra += ld15(20)
            if c == 12: g.xg_mode(15)
            if c > 1 and c + 2 < 16: extra += spaced(kv_dma(c + 2) + kv_dma(c + 3)) if g.opt.get('kvg', 1) else spaced(kv_dma(c + 2)) + spaced(kv_dma(c + 3))
            if c == 4:
                extra += spaced([(None, lambda f=f: a.I(f"buffer_load_dwordx2 {vr(vXR+2*f,2)}, v14, {srd(sX)}, 0 offen offset:{32*f}")) for f in range(5)])
                extra += [nop] * (48 - len(extra)) + ld15(29)
            for _ in range(WN.get(c, 0)): extra += spaced(wq.pop(0))
            if 4 <= c <= 12 and g.opt.get("pt", 1): extra += [(None, lambda k=(c - 4) // 2: thin(k))]
            if g.opt.get("ctouch", 1) and c in (1, 8):
                def ct():
                    sk = g.lab("ct")
                    a.I(f"s_cmp_lg_u32 s{sWAVE}, 0")
                    a.I(f"s_cbranch_scc1 {sk}")
                    a.I("s_mov_b64 exec, 0xfffff")
                    a.raw("    global_load_dword v12, v11, s[92:93]")
                    a.I("s_mov_b64 exec, -1")
                    a.label(sk)
                extra += [(None, ct)]
            if g.opt.get("even") and c > 4:
                items = [x for x in extra if x is not nop]
                slots = 60 if c < 14 else 48
                extra[:] = []
                for k, x in enumerate(items):
                    while len(extra) < k * slots // len(items): extra.append(nop)
                    extra.append(x)
        if i == IC:
            g.check_flags(15, 19)
            if g.opt.get("att"): g.stamp()
            extra += spaced(kv_dma(2) + kv_dma(3))
        kr = kread(i + 2) if i + 2 < 64 else []
        vrd = vread(i + 1) if i + 1 < 64 else []
        mfb = (qk(0, i + 1) if i + 1 < 64 else []) + pv(0, i)
        if lastfill[0] is not None: a.wait_lg(lastfill[0])
        fl = kr + vrd
        half(1, mfb, fl[:4])
        if i + 1 < 64:
            half(0, qk(1, i + 1) + pv(1, i), fl[4:])
    assert not wq
    run(extra)
    g.stamp()
    for m in pv(1, 63): a.I(m)
    slow, back = "L_slow", "L_slow_back"
    a.label(back)
    a.I(f"s_mov_b32 s66, {hex(f2u(2.0**100))}")
    a.I(f"s_mov_b32 s67, {hex(f2u(2.0**-30))}")
    X = S + 16
    for t in range(2):
        o = O + 16 * t; p = S + 8 * t
        a.I(f"v_rcp_f32 v{2+2*t}, v{o+12}")
        a.I(f"v_cmp_nge_f32 s[{62+2*t}:{63+2*t}], v{o+12}, s67")
        for k in range(0, 12, 2):
            a.I(f"v_pk_mul_f32 {vr(o+k,2)}, {vr(o+k,2)}, {vr(2+2*t,2)} op_sel:[0,0] op_sel_hi:[1,0]")
        for k in range(6):
            a.I(f"v_cvt_pk_bf16_f32 v{p+k}, v{o+2*k}, v{o+2*k+1}")
        for k in range(3):
            a.I(f"v_pk_add_f32 {vr(o+4*k,2)}, {vr(o+4*k,2)}, {vr(o+4*k+2,2)}")
        a.I(f"v_permlane32_swap_b32 v{p}, v{p+2}")
        a.I(f"v_permlane32_swap_b32 v{p+1}, v{p+3}")
        a.I(f"v_pk_add_f32 {vr(o,2)}, {vr(o,2)}, {vr(o+4,2)}")
        a.I(f"v_pk_add_f32 {vr(o,2)}, {vr(o,2)}, {vr(o+8,2)}")
        a.I(f"v_add_f32 v{o}, v{o}, v{o+1}")
        a.I(f"v_fma_f32 v{o}, v{o}, 0, v{o+12}")
        if t == 0:
            a.I(f"v_cmp_nle_f32 vcc, v{o}, s66")
            a.I("s_or_b64 s[62:63], s[62:63], vcc")
    a.M(f"""
    v_cmp_nle_f32 vcc, v{O+16}, s66
    s_or_b64 s[62:63], s[62:63], s[64:65]
    v_permlane32_swap_b32 v{S+4}, v{S+12}
    v_permlane32_swap_b32 v{S+5}, v{S+13}
    s_or_b64 vcc, vcc, s[62:63]
    s_cbranch_scc1 {slow}
    """)
    a.label("L_slow_done")
    a.M(f"""
    buffer_store_dwordx4 {vr(S,4)}, v{vQ0}, {srd(sWS)}, s{sOS} offen sc1
    buffer_store_dwordx4 {vr(S+8,4)}, v{vQ0}, {srd(sWS)}, s{sOS} offen offset:512 sc1
    buffer_store_dwordx2 {vr(S+4,2)}, v{vKV}, {srd(sWS)}, s{sOS+1} offen sc1
    """)
    g.stamp()
    g.slow_args = dict(Q=Q, KB=KB, VB=VB, P=P, S=S, O=O, vK0=vQ0, vV=vV, vKV=vKV)

def slow_path(g):
    a = g.a
    A = g.slow_args
    Q, KB, VB, P, S, O, vK0, vV = A["Q"], A["KB"], A["VB"], A["P"], A["S"], A["O"], A["vK0"], A["vV"]
    a.vm = []; a.lg = []; a.hist = []
    a.label("L_slow")
    a.M(f"""
    s_cmp_lg_u32 s61, 0
    s_cbranch_scc1 L_slow_done
    s_waitcnt vmcnt(0) lgkmcnt(0)
    s_mov_b32 s61, 1
    s_mov_b32 s62, 0
    s_mov_b32 s63, -1
    s_add_u32 s64, s{sB3}, 80
    s_lshl_b32 s64, s64, 10
    v_mov_b32 v6, 0x3f803f80
    v_mov_b32 v2, 0xff800000
    v_mov_b32 v3, 0xff800000
    """)
    for t in range(2):
        for k in range(2):
            a.I(f"v_cndmask_b32 v{Q+8*t+4+k}, v{Q+8*t+4+k}, 0, s[62:63]")
    def load_k(off):
        a.I(f"buffer_load_dwordx4 {vr(KB,4)}, v{vK0}, {srd(sWS)}, s65 offen offset:{off} sc1")
        a.I(f"buffer_load_dwordx4 {vr(KB+4,4)}, v31, {srd(sWS)}, s65 offen offset:{off} sc1")
        for k in range(4):
            a.I(f"v_cndmask_b32 v{KB+4+k}, v{KB+4+k}, v6, s[62:63]")
        for t in range(2):
            s = S + 16 * t; q = Q + 8 * t
            a.I(f"v_mfma_f32_32x32x16_bf16 {vr(s,16)}, {vr(KB,4)}, {vr(q,4)}, 0")
            a.I(f"v_mfma_f32_32x32x16_bf16 {vr(s,16)}, {vr(KB+4,4)}, {vr(q+4,4)}, {vr(s,16)}")
    a.I("s_mov_b32 s66, 0")
    a.fence()
    a.label("L_slow1")
    a.I(f"s_mul_i32 s65, s66, {256*1024}")
    a.I("s_add_u32 s65, s65, s64")
    for tile in range(2):
        load_k(512 * tile)
        for t in range(2):
            s = S + 16 * t
            for k in range(0, 16, 2):
                a.I(f"v_max3_f32 v{2+t}, v{2+t}, v{s+k}, v{s+k+1}")
    a.M("""
    s_add_u32 s66, s66, 1
    s_cmp_lt_u32 s66, 32
    """)
    a.fence()
    a.I("s_cbranch_scc1 L_slow1")
    for t in range(2):
        a.M(f"""
        v_mov_b32 v4, v{2+t}
        v_permlane32_swap_b32 v{2+t}, v4
        v_max_f32 v{2+t}, v{2+t}, v4
        v_and_b32 v4, 0xffff0000, v{2+t}
        v_sub_f32 v5, v{2+t}, v4
        v_and_b32 v7, 0xffff0000, v5
        v_sub_f32 v5, v5, v7
        v_cvt_pk_bf16_f32 v4, -v4, -v7
        v_cvt_pk_bf16_f32 v5, -v5, 0
        v_cndmask_b32 v{Q+8*t+4}, v{Q+8*t+4}, v4, s[62:63]
        v_cndmask_b32 v{Q+8*t+5}, v{Q+8*t+5}, v5, s[62:63]
        """)
    a.M(f"""
    s_mov_b32 s67, s7
    v_lshl_add_u32 v8, v1, 4, s67
    v_mov_b32 v12, 0x3f80
    v_mov_b32 v13, 0
    v_mov_b32 v14, 0
    v_mov_b32 v15, 0
    ds_write_b128 v8, v[12:15] offset:3072
    v_lshlrev_b32 v9, 4, v1
    v_xor_b32 v10, 64, v9
    v_xor_b32 v11, 128, v9
    s_sub_u32 s66, s67, {RING+3072}
    v_add_u32 v12, s66, v{vV}
    v_add_u32 v13, s66, v{vV+1}
    s_mov_b32 m0, s67
    """)
    for r in range(32):
        a.I(f"v_mov_b32 v{O+r}, 0")
    a.I("s_mov_b32 s66, 0")
    a.drain(); a.fence()
    a.label("L_slow2")
    a.I(f"s_mul_i32 s65, s66, {256*1024}")
    a.I("s_add_u32 s65, s65, s64")
    a.I(f"s_add_u32 s67, s65, {80*1024}")
    for i in range(3):
        a.I(f"buffer_load_dwordx4 v{9+i}, {srd(sWS)}, s67 offen offset:{1024*i} sc1 lds")
    for tile in range(2):
        load_k(512 * tile)
        a.I("s_waitcnt vmcnt(0)")
        for j in range(2):
            for rd in range(2):
                a.I(f"ds_read_b64_tr_b16 {vr(VB+4*j+2*rd,2)}, v{12+rd} offset:{512*tile+256*j}")
        for t in range(2):
            s = S + 16 * t; p = P + 8 * t; o = O + 16 * t
            for k in range(16):
                a.I(f"v_exp_f32 v{s+k}, v{s+k}")
            for k in range(8):
                a.I(f"v_cvt_pk_bf16_f32 v{p+k}, v{s+2*k}, v{s+2*k+1}")
            a.I(f"v_mfma_f32_32x32x16_bf16 {vr(o,16)}, {vr(VB,4)}, {vr(p,4)}, {vr(o,16)}")
            a.I(f"v_mfma_f32_32x32x16_bf16 {vr(o,16)}, {vr(VB+4,4)}, {vr(p+4,4)}, {vr(o,16)}")
    a.M("""
    s_add_u32 s66, s66, 1
    s_cmp_lt_u32 s66, 32
    """)
    a.drain(); a.fence()
    a.I("s_cbranch_scc1 L_slow2")
    run(w1f_dma(g, 0, A["vKV"]))
    a.drain(); a.fence()
    a.I("s_branch L_slow_back")

def rg_ops(r, t):
    return [f"v_mov_b32 v{t}, v{r}", f"v_permlane16_swap_b32 v{r}, v{t}", f"v_add_f32 v{r}, v{r}, v{t}",
            f"v_mov_b32 v{t}, v{r}", f"v_permlane32_swap_b32 v{r}, v{t}", f"v_add_f32 v{r}, v{r}, v{t}"]

def rg_reduce(g, r, t):
    for x in rg_ops(r, t): g.a.I(x)

vCK, vFL, vFA = 2, 3, 30

def max_ops(regs):
    regs = list(regs)
    if len(regs) == 1: return [], regs[0]
    ops = []
    cur = regs.pop(0)
    while regs:
        if len(regs) >= 2:
            ops.append(f"v_max3_u32 v{vCK}, v{cur}, v{regs[0]}, v{regs[1]}"); regs = regs[2:]
        else:
            ops.append(f"v_max_u32 v{vCK}, v{cur}, v{regs[0]}"); regs = regs[1:]
        cur = vCK
    return ops, vCK

def check_data(g, regs, reload):
    a = g.a
    slow, back, lp = g.lab("ck"), g.lab("ckb"), g.lab("ckl")
    ops, r = max_ops(regs)
    for x in ops: a.I(x)
    a.I(f"v_cmp_eq_u32 vcc, -1, v{r}")
    a.I(f"s_cbranch_vccnz {slow}")
    a.label(back)
    def stub():
        a.vm = []; a.lg = []; a.hist = []
        a.label(slow)
        a.I("s_mov_b32 s44, 0")
        a.I("s_mov_b32 s46, 0")
        a.label(lp)
        a.I(f"buffer_load_dword v{vFL}, v{vFA}, {srd(sWS)}, 0 offen sc1")
        reload()
        a.I("s_waitcnt vmcnt(0)")
        for x in ops: a.I(x)
        a.M(f"""
        v_cmp_eq_u32 vcc, -1, v{r}
        s_cbranch_vccz {back}
        s_cmp_lg_u32 s46, 0
        s_cbranch_scc1 {back}
        v_cmp_ne_u32 vcc, s{sNONCE}, v{vFL}
        s_add_u32 s44, s44, 1
        s_cmp_eq_u64 vcc, 0
        s_cselect_b32 s46, 1, 0
        s_cmp_gt_u32 s44, {SPIN_MAX}
        s_cbranch_scc0 {lp}
        s_branch {back}
        """)
    g.stubs.append(stub)

def ksplit_gemm(g, nst, wreg, load, areg, chk, nup, accs, cinit0, vRW, vRR, T, fillers, first_batch, bar_st):
    a = g.a
    total = 4 * nst
    first_batch()
    pendw = []
    fillers = list(fillers)
    late = []
    for u in range(4):
        acc = accs[u]
        for st in range(nst):
            n = u * nst + st
            if g.opt.get("fine5") == nst and (n == 1 or (st == 0 and u > 0) or (u == 3 and st in (bar_st, bar_st + 1))): g.stamp()
            if u == 3 and st == bar_st:
                assert not pendw
                a.I("s_waitcnt lgkmcnt(0)")
                a.I("s_barrier")
                late = [f"ds_read_b128 {vr(T+20*k+4*f,4)}, v{vRR} offset:{5120*k+1024*f}" for k in range(3) for f in range(5)]
                late += [None] * 4
                late += [f"v_add_f32 v{T+r}, v{T+r}, v{T+20+r}" for r in range(20)]
                late += [f"v_add_f32 v{T+r}, v{T+r}, v{T+40+r}" for r in range(20)]
            for f in range(5):
                fl, r = wreg(st, f)
                cc = "0" if (st == 0 and not (u == 0 and cinit0)) else vr(acc + 4*f, 4)
                a.I(f"v_mfma_f32_16x16x32_bf16 {vr(acc+4*f,4)}, {vr(r,4,fl)}, {vr(areg(n),4)}, {cc}")
                if chk and f == 3 and nup <= n + 1 < total:
                    check_data(g, chk(n + 1), lambda n=n: [load(k, True) for k in range(n + 1, min(n + 1 + nup, total))])
                last_loads = n + nup >= total
                if f == 0 and n + nup == total and nst == 14 and g.opt.get("wbl", 1): wb_l2(g)
                if f == 0 and not last_loads: load(n + nup, False)
                elif f == 4 and n + 1 < total and not late: pass
                elif pendw:
                    if (st >= 1 or nst <= 5 and f >= 3) and (f in (1, 3) or nst <= 5): pendw.pop(0)()
                elif late:
                    for _ in range(3 if nst - bar_st <= 4 else 2):
                        if late:
                            x = late.pop(0)
                            if x: a.I(x)
                elif fillers and n >= nup + 1:
                    a.I(fillers.pop(0))
        if u < 3:
            assert not pendw
            pendw = [lambda f=f, acc=acc, u=u: a.I(f"ds_write_b128 v{vRW+u}, {vr(acc+4*f,4)} offset:{1024*f}") for f in range(5)]
    for x in late + fillers:
        if x: a.I(x)

def red_addrs(g, vRW, vRR, vA):
    a = g.a
    a.M(f"""
    v_lshrrev_b32 v2, 4, v1
    v_and_b32 v3, 15, v1
    v_lshlrev_b32 v3, 4, v3
    v_lshl_add_u32 v3, v2, 10, v3
    """)
    for u in range(4):
        a.M(f"""
        s_add_u32 s66, s{sOWN}, {u+1}
        s_and_b32 s66, s66, 3
        s_lshl_b32 s67, s66, 8
        v_add_u32 v{vA+u}, s67, v3
        s_mul_i32 s66, s66, 15360
        s_add_u32 s66, s66, {RED + (5120*u if u < 3 else 0)}
        v_lshl_add_u32 v{vRW+u if u < 3 else vRR}, v1, 4, s66
        """)

def phase3(g):
    a = g.a
    AF = 92
    vRW, vRR, vA, vL = 8, 11, 12, 16
    accs = [32, AF, AF + 20, 32]
    SO3 = g.opt.get("so3", 1)
    ostore = a.vm[-1][0]
    WOL = g.opt.get("wol", 0) and SO3
    CP = 140
    a.M(f"""
    v_lshrrev_b32 v2, 3, v1
    v_mul_u32_u24 v3, 7168, v2
    v_and_b32 v4, 7, v1
    v_lshl_add_u32 v3, v4, 4, v3
    v_lshrrev_b32 v2, 5, v1
    v_lshl_add_u32 v4, v2, 30, v3
    s_mul_i32 s66, s5, 448
    s_mul_i32 s67, s{sWAVE}, 112
    s_add_u32 s66, s66, s67
    s_add_u32 s66, s66, {CS_OFF}
    s_add_u32 s67, s66, {8*7168}
    s_add_u32 s62, s66, {16*7168}
    buffer_load_dwordx4 {vr(CP,4)}, v3, {srd(sWS)}, s66 offen sc1
    buffer_load_dwordx4 {vr(CP+4,4)}, v3, {srd(sWS)}, s67 offen sc1
    buffer_load_dwordx4 {vr(CP+8,4)}, v4, {srd(sWS)}, s62 offen sc1
    """)
    if not WOL: run(g.wfrag("wo", 3) + g.wfrag("wo", 4))
    for r in range(10):
        a.I(f"v_lshlrev_b32 v{accs[0]+2*r}, 16, v{vXR+r}")
        a.I(f"v_and_b32 v{accs[0]+2*r+1}, 0xffff0000, v{vXR+r}")
    red_addrs(g, vRW, vRR, vA)
    a.M(f"""
    v_and_b32 v2, 7, v1
    s_lshl_b32 s66, s{sWAVE}, 3
    v_add_u32 v2, s66, v2
    v_lshl_add_u32 v2, v2, 5, s{sRB64}
    v_lshlrev_b32 v2, 7, v2
    v_add_u32 v{vFA}, {F2_OFF}, v2
    s_mul_i32 s62, s{sRB64}, 80
    s_mul_i32 s66, s{sWAVE}, 20
    s_add_u32 s62, s62, s66
    s_lshl_b32 s62, s62, 10
    s_add_u32 s62, s62, {O_OFF}
    s_add_u32 s63, s62, 4096
    s_add_u32 s64, s62, 8192
    s_add_u32 s65, s62, 12288
    s_add_u32 s58, s62, 16384
    """)
    so = [62, 63, 64, 65, 58]
    def load(n, retry):
        u, st = divmod(n, 5)
        a.I(f"buffer_load_dwordx4 {vr(AF+4*n,4)}, v{vA+u}, {srd(sWS)}, s{so[st]} offen sc1")
    NUP = g.opt.get("nb3", 8)
    chk = lambda n: [AF + 4*n, AF + 4*n + 2]
    def first():
        if not SO3:
            a.wait_vm(ostore)
            g.signal(4, 4)
            g.stamp()
            g.poll([vFA], 2)
            g.stamp()
        for n in range(NUP): load(n, False)
        bid = a.vm[-1][0]
        if WOL: run(g.wfrag("wo", 3) + g.wfrag("wo", 4))
        a.M(f"""
        s_lshl_b32 s66, s{sRB64}, 2
        s_add_u32 s66, s66, s{sOWN}
        s_lshl_b32 s66, s66, 4
        v_and_b32 v5, 15, v1
        v_add_u32 v24, s66, v5
        v_lshlrev_b32 v24, 6, v24
        v_bfe_u32 v2, v1, 4, 1
        v_lshrrev_b32 v3, 5, v1
        v_lshl_add_u32 v4, v2, 1, v3
        v_lshlrev_b32 v5, 4, v5
        v_lshl_add_u32 v25, v4, 10, v5
        v_lshl_add_u32 v5, v3, 10, v5
        v_lshl_add_u32 v26, v2, 3, v5
        s_mul_i32 s66, s{sRB64}, 80
        s_mul_i32 s67, s{sCB3}, 10
        s_add_u32 s66, s66, s67
        s_lshl_b32 s66, s66, 10
        s_lshl_b32 s67, s{sOWN}, 8
        s_add_u32 s66, s66, s67
        s_add_u32 s54, s66, {H_OFF}
        s_add_u32 s55, s54, 4096
        s_add_u32 s56, s54, 8192
        s_lshl_b32 s59, s{sCB3}, 3
        s_add_u32 s59, s59, {ST_OFF}
        v_mov_b32 v19, 0x3f803f80
        """)
        for e in range(4): a.I(f"v_add_f32 v{20+e}, v{CP+e}, v{CP+4+e}")
        for e in range(4): a.I(f"v_add_f32 v{20+e}, v{20+e}, v{CP+8+e}")
        for e in range(4): a.I(f"v_add_f32_dpp v{20+e}, v{20+e}, v{20+e} row_ror:8 row_mask:0xf bank_mask:0xf")
        for ops in zip(*[rg_ops(20+e, CP+e) for e in range(4)]):
            for x in ops: a.I(x)
        a.I("s_barrier")
        if SO3:
            a.wait_vm(bid)
            g.signal(4, 4)
            g.stamp()
            check_data(g, sum([chk(n) for n in range(NUP)], []), lambda: [load(n, True) for n in range(NUP)])
            g.stamp()
        a.M(f"""
        s_lshl_b32 s4, s{sRB64}, 3
        s_add_u32 s4, s4, s{sCB3}
        s_lshl_b32 s4, s4, 2
        s_add_u32 s4, s4, s{sOWN}
        s_lshl_b32 s4, s4, 7
        s_add_u32 s4, s4, {F3_OFF}
        """)
    T = AF
    ksplit_gemm(g, 5, lambda st, f: ("v", worege(st, f)), load, lambda n: AF + 4*n, chk if SO3 else None, NUP, accs, True,
                vRW, vRR, T, [], first, 2)
    R = accs[3]
    for r in range(0, 20, 2): a.I(f"v_pk_add_f32 {vr(R+r,2)}, {vr(R+r,2)}, {vr(T+r,2)}")
    for r in range(8): a.I(f"v_cvt_pk_bf16_f32 v{T+r}, v{R+2*r}, v{R+2*r+1}")
    for r in range(8, 10): a.I(f"v_cvt_pk_bf16_f32 v{vH+r}, v{R+2*r}, v{R+2*r+1}")
    for pr in range(2):
        a.I(f"v_permlane16_swap_b32 v{T+4*pr}, v{T+4*pr+2}")
        a.I(f"v_permlane16_swap_b32 v{T+4*pr+1}, v{T+4*pr+3}")
    def tail():
        a.M(f"""
        buffer_store_dwordx4 {vr(T,4)}, v25, {srd(sWS)}, s54 offen SCX
        buffer_store_dwordx4 {vr(T+4,4)}, v25, {srd(sWS)}, s55 offen SCX
        buffer_store_dwordx2 {vr(vH+8,2)}, v26, {srd(sWS)}, s56 offen SCX
        """)
        src = [T + r for r in range(8)] + [vH + 8, vH + 9]
        for i, r in enumerate(src):
            a.I(f"v_dot2_f32_bf16 v6, v{r}, v19, {'0' if i == 0 else 'v6'}")
            a.I(f"v_dot2_f32_bf16 v7, v{r}, v{r}, {'0' if i == 0 else 'v7'}")
        for x, y in zip(rg_ops(6, 2), rg_ops(7, 3)):
            a.I(x); a.I(y)
        a.M(f"""
        s_mov_b64 exec, 0xffff
        buffer_store_dwordx2 v[6:7], v24, {srd(sWS)}, s59 offen SCX
        s_mov_b64 exec, -1
        """)
    g.dual(tail)
    g.stamp()
    for r in range(8): a.I(f"v_cvt_pk_bf16_f32 v{vH+r}, v{R+2*r}, v{R+2*r+1}")
    if g.stop == 3:
        a.I("s_waitcnt vmcnt(0)")

def phase4(g):
    a = g.a
    sCB4 = 5
    ACC = 32
    WB = [88, 116]
    AF = 144
    NB = 9
    vTR, vA, vCSA = 24, 27, 28
    a.M(f"""
    s_lshr_b32 s66, s{sJ}, 4
    s_lshl_b32 s62, s{sXCD}, 1
    s_add_u32 s62, s62, s66
    s_lshl_b32 s63, s62, 1
    s_lshr_b32 s66, s{sWAVE}, 1
    s_add_u32 s63, s63, s66
    s_and_b32 s64, s{sWAVE}, 1
    v_lshrrev_b32 v2, 4, v1
    v_and_b32 v3, 15, v1
    v_lshlrev_b32 v4, 4, v3
    v_lshl_add_u32 v{vA}, v2, 10, v4
    v_lshlrev_b32 v{vCSA}, 4, v2
    v_lshl_add_u32 v29, v3, 6, v{vCSA}
    s_mul_i32 s65, s63, 80
    s_lshl_b32 s65, s65, 10
    s_lshl_b32 s66, s64, 9
    s_add_u32 s65, s65, s66
    s_add_u32 s65, s65, {H_OFF}
    s_lshl_b32 s58, s63, 6
    s_lshl_b32 s67, s64, 5
    s_add_u32 s58, s58, s67
    s_lshl_b32 s58, s58, 6
    s_add_u32 s58, s58, {ST_OFF}
    """)
    for st in range(20): a.I(f"s_add_u32 s{70+st}, s65, {4096*st}")
    def load(st, tus=(0, 1)):
        r = AF + 8 * (st % NB)
        for tu in tus:
            a.I(f"buffer_load_dwordx4 {vr(r+4*tu,4)}, v{vA}, {srd(sWS)}, s{70+st} offen offset:{256*tu} sc1")
    def chk(st):
        r = AF + 8 * (st % NB)
        return [r, r + 2, r + 4, r + 6]
    NU4 = g.opt.get("nb4", 4)
    def batch():
        for st in range(NU4): load(st)
        for tu in range(2):
            a.I(f"buffer_load_dwordx4 {vr(8+4*tu,4)}, v29, {srd(sWS)}, s58 offen offset:{1024*tu} sc1")
    a.M(f"""
    v_and_b32 v2, 7, v1
    s_lshl_b32 s66, s63, 3
    v_add_u32 v2, s66, v2
    v_bfe_u32 v3, v1, 3, 1
    v_lshl_add_u32 v2, v2, 2, v3
    s_lshl_b32 s66, s64, 1
    v_add_u32 v2, s66, v2
    v_lshlrev_b32 v2, 7, v2
    v_add_u32 v{vFA}, {F3_OFF}, v2
    s_waitcnt vmcnt(0)
    """)
    g.dual(lambda: g.signal(4, 4, "SCX"))
    g.stamp()
    a.I("s_barrier")
    a.M(f"""
    s_mul_i32 s66, s{sWAVE}, 112
    s_add_u32 s66, s66, 143360
    v_lshl_add_u32 v6, v1, 4, s66
    v_add_u32 v{vCSA}, 143360, v{vCSA}
    s_mov_b64 exec, 0x7f
    ds_write_b128 v6, v[20:23]
    s_mov_b64 exec, -1
    """)
    W1PRE = g.opt.get("w1pre", 0)
    if W1PRE >= 1: run(w1f_dma(g, 3, 16))
    if W1PRE >= 2: run(w1f_dma(g, 4, 16))
    g.poll([vFA], 2)
    g.stamp()
    batch()
    a.M(f"""
    v_lshlrev_b32 v{vTR}, 4, v1
    v_add_u32 v{vTR+1}, {8*7168}, v{vTR}
    v_add_u32 v{vTR+2}, {16*7168}, v{vTR}
    v_and_b32 v31, 31, v1
    v_lshlrev_b32 v31, 4, v31
    v_lshrrev_b32 v3, 5, v1
    v_lshl_add_u32 v31, v3, 10, v31
    s_mul_i32 s54, s63, 216
    s_mul_i32 s66, s{sCB4}, 14
    s_add_u32 s54, s54, s66
    s_lshl_b32 s54, s54, 10
    s_lshl_b32 s66, s64, 9
    s_add_u32 s54, s54, s66
    s_add_u32 s54, s54, {H1_OFF}
    """)
    def wreads(st):
        b = WB[st & 1]
        return [lambda f=f: a.I(f"ds_read_b128 {vr(b+4*f,4)}, v{vTR+st//8} offset:{(st%8)*7168+f*1024}") for f in range(7)]
    ids = [it() for it in wreads(0)]
    if g.opt.get("wb", 0): wb_l2(g)
    w1q = (w1f_dma(g, 3, 16) if W1PRE < 1 else []) + (w1f_dma(g, 4, 16) if W1PRE < 2 else [])
    a.M(f"""
    s_lshl_b32 s4, s62, 4
    s_add_u32 s4, s4, s{sCB4}
    s_lshl_b32 s4, s4, 2
    s_add_u32 s4, s4, s{sWAVE}
    s_lshl_b32 s4, s4, 7
    s_add_u32 s4, s4, {F4_OFF}
    """)
    fill = []
    for tu in range(2):
        m = 8 + 4*tu
        fill += [f"v_add_f32 v{m}, v{m}, v{m+2}"] + rg_ops(m, m + 1) + [f"v_mul_f32 v{m}, {hex(f2u(-1.0/640))}, v{m}",
                 f"v_cvt_pk_bf16_f32 v{m}, v{m}, v{m}", f"v_and_b32 v{m}, 0xffff0000, v{m}"]
    CS = AF + 8 * (20 % NB)
    assert NU4 == 4
    csq = [f"ds_read_b128 {vr(CS+4*f,4)}, v{vCSA} offset:{64*f}" for f in range(7)]
    a.capture = []
    run(w1q)
    cap, a.capture = a.capture, None
    w1q = []
    pre = []
    for x in cap:
        if x.startswith("s_"): pre.append(x)
        else:
            if pre: w1q.append(lambda pre=pre: [a.I(y) for y in pre])
            pre = []
            w1q.append(lambda x=x: a.I(x))
    for st in range(20):
        if g.opt.get("fine4") and st in (1, 5, 10, 11, 12, 16): g.stamp()
        if st == 11:
            assert not w1q
            if W1PRE < 2: a.wait_vm(w1id)
            a.I("s_barrier")
        rd = wreads(st + 1) if st + 1 < 20 else []
        b = WB[st & 1]; r = AF + 8 * (st % NB)
        prev, ids = ids, []
        for f in range(7):
            if f == 0: a.wait_lg(prev[6])
            for tu in range(2):
                d = ACC + 8 * f + 4 * tu
                cc = "0" if st == 0 else vr(d, 4)
                a.I(f"v_mfma_f32_16x16x32_bf16 {vr(d,4)}, {vr(b+4*f,4)}, {vr(r+4*tu,4)}, {cc}")
                k = 2 * f + tu
                if k in (1, 8):
                    if st + NU4 < 20: load(st + NU4, (k // 8,))
                    elif csq: a.I(csq.pop(0))
                elif rd and k >= 2: ids.append(rd.pop(0)())
                elif k in (10, 12) and w1q:
                    w1q.pop(0)()
                    w1id = a.vm[-1][0]
                elif fill and 10 <= k < 13: a.I(fill.pop(0))
    assert not fill and not csq
    g.stamp()
    a.I("s_waitcnt lgkmcnt(0)")
    P = WB[0]
    def epi():
        skip = g.lab("h1")
        for f in range(7):
            if f == 3:
                a.I(f"s_cmp_eq_u32 s{sCB4}, 15")
                a.I(f"s_cbranch_scc1 {skip}")
            for tu in range(2):
                d = ACC + 8 * f + 4 * tu
                for e in range(0, 4, 2):
                    a.I(f"v_pk_fma_f32 {vr(d+e,2)}, {vr(CS+4*f+e,2)}, {vr(8+4*tu,2)}, {vr(d+e,2)} op_sel:[0,0,0] op_sel_hi:[1,0,1]")
            for tu in range(2):
                d = ACC + 8 * f + 4 * tu
                for k in range(2):
                    a.I(f"v_cvt_pk_bf16_f32 v{P+4*f+2*tu+k}, v{d+2*k}, v{d+2*k+1}")
            for k in (0, 2, 1, 3):
                a.I(f"v_pk_max_i16 v{P+4*f+k}, v{P+4*f+k}, 0")
            if f % 2 == 0 and f > 0: a.I("s_add_u32 s54, s54, 4096")
            a.I(f"v_permlane16_swap_b32 v{P+4*f}, v{P+4*f+2}")
            a.I(f"v_permlane16_swap_b32 v{P+4*f+1}, v{P+4*f+3}")
            a.I(f"buffer_store_dwordx4 {vr(P+4*f,4)}, v31, {srd(sWS)}, s54 offen offset:{2048*(f%2)} SCX")
        a.fence()
        a.label(skip)
    g.dual(epi)
    g.stamp()
    if g.stop == 4:
        a.I("s_waitcnt vmcnt(0)")

def phase5(g):
    a = g.a
    vRW, vRR, vA = 8, 11, 12
    NUP = g.opt.get('nb5', 8)
    AF, NB, T, HU = 32, NUP + 1, 96, 156
    accs = [176, 196, 176, 196]
    assert AF + 4 * NB <= T
    red_addrs(g, vRW, vRR, vA)
    a.M(f"""
    s_mul_i32 s62, s{sRB64}, 216
    s_mul_i32 s66, s{sWAVE}, 56
    s_add_u32 s63, s62, 212
    s_lshl_b32 s65, s62, 10
    s_add_u32 s65, s65, {H1_OFF}
    s_add_u32 s62, s62, s66
    s_lshl_b32 s62, s62, 10
    s_add_u32 s62, s62, {H1_OFF}
    s_lshl_b32 s63, s63, 10
    s_add_u32 s63, s63, {H1_OFF}
    s_lshl_b32 s66, s{sRB64}, 2
    s_add_u32 s66, s66, s{sOWN}
    s_lshl_b32 s66, s66, 4
    v_and_b32 v2, 15, v1
    v_add_u32 v24, s66, v2
    v_lshrrev_b32 v3, 4, v1
    v_lshlrev_b32 v4, 6, v24
    v_lshl_add_u32 v25, v3, 4, v4
    s_mov_b32 s58, {ST_OFF}
    """)
    def areg(n): return AF + 4 * (n % NB)
    def load(n, retry):
        u, st = divmod(n, 14)
        a.I(f"buffer_load_dwordx4 {vr(areg(n),4)}, v{vA+u}, {srd(sWS)}, s{70+st} offen sc1")
    for st in range(14):
        a.I(f"s_add_u32 s{70+st}, s62, {4096*st}")
        if st >= 12: a.I(f"s_min_u32 s{70+st}, s{70+st}, s63")
    def first():
        a.M(f"""
        v_and_b32 v2, 3, v1
        s_lshl_b32 s67, s{sWAVE}, 2
        s_lshr_b32 s66, s{sRB64}, 1
        s_lshl_b32 s66, s66, 4
        s_add_u32 s66, s66, s67
        v_add_u32 v2, s66, v2
        v_bfe_u32 v3, v1, 2, 1
        v_lshl_add_u32 v2, v2, 2, v3
        s_and_b32 s66, s{sRB64}, 1
        s_lshl_b32 s66, s66, 1
        v_add_u32 v2, s66, v2
        v_lshlrev_b32 v2, 7, v2
        v_add_u32 v{vFA}, {F4_OFF}, v2
        s_waitcnt vmcnt(0)
        """)
        g.dual(lambda: g.signal(4, 4, "SCX"))
        g.stamp()
        a.I("s_barrier")
        g.poll([vFA], 2)
        g.stamp()
        for n in range(NUP): load(n, False)
        a.I(f"buffer_load_dwordx4 v[16:19], v25, {srd(sWS)}, s58 offen sc1")
        if g.opt.get("wb", 0): wb_l2(g)
        a.M(f"""
        v_mul_u32_u24 v4, 1280, v24
        v_bfe_u32 v2, v1, 4, 1
        v_lshrrev_b32 v3, 5, v1
        v_lshl_add_u32 v5, v2, 1, v3
        v_lshl_add_u32 v27, v5, 4, v4
        v_lshrrev_b32 v6, 4, v1
        v_lshl_add_u32 v28, v6, 3, v4
        s_mul_i32 s59, s{sCB3}, 160
        """)
        for r in range(10):
            a.I(f"v_lshlrev_b32 v{HU+2*r}, 16, v{vH+r}")
            a.I(f"v_and_b32 v{HU+2*r+1}, 0xffff0000, v{vH+r}")
    k = hex(f2u(1.0/640))
    fill = ["v_add_f32 v16, v16, v18", "v_add_f32 v17, v17, v19"]
    for x, y in zip(rg_ops(16, 21), rg_ops(17, 22)): fill += [x, y]
    rnd = lambda r: [f"v_cvt_pk_bf16_f32 v{r}, v{r}, v{r}", f"v_and_b32 v{r}, 0xffff0000, v{r}"]
    fill += [f"v_mul_f32 v16, {k}, v16", f"v_mul_f32 v17, {k}, v17", "v_fma_f32 v17, -v16, v16, v17", "v_max_f32 v17, 0, v17"]
    fill += rnd(17) + [f"v_add_f32 v17, {hex(f2u(1e-5))}, v17"] + rnd(17) + ["v_sqrt_f32 v17, v17"] + rnd(17) + ["v_rcp_f32 v18, v17"]
    ksplit_gemm(g, 14, w2reg, load, areg, None, NUP, accs, False, vRW, vRR, T, fill, first, 5)
    g.stamp()
    R = accs[3]
    for r in range(0, 20, 2): a.I(f"v_pk_add_f32 {vr(R+r,2)}, {vr(R+r,2)}, {vr(T+r,2)}")
    for r in range(0, 20, 2):
        a.I(f"v_pk_fma_f32 {vr(HU+r,2)}, {vr(R+r,2)}, v[18:19], {vr(HU+r,2)} op_sel:[0,0,0] op_sel_hi:[1,0,1]")
    P = T + 20
    osc = ['', 'sc1', 'nt'][g.opt.get('osc', 0)]
    for r in range(10): a.I(f"v_cvt_pk_bf16_f32 v{P+r}, v{HU+2*r}, v{HU+2*r+1}")
    for pr in range(2):
        a.I(f"v_permlane16_swap_b32 v{P+4*pr}, v{P+4*pr+2}")
        a.I(f"v_permlane16_swap_b32 v{P+4*pr+1}, v{P+4*pr+3}")
    a.M(f"""
    buffer_store_dwordx4 {vr(P,4)}, v27, {srd(sOUT)}, s59 offen {osc}
    buffer_store_dwordx4 {vr(P+4,4)}, v27, {srd(sOUT)}, s59 offen offset:64 {osc}
    buffer_store_dwordx2 {vr(P+8,2)}, v28, {srd(sOUT)}, s59 offen offset:128 {osc}
    """)
    g.stamp()
```

```python
import sys, math, struct, re
from asmlib import Asm, vr

NAME = "sequential_preLN__mha_block__dense_activation_relu__prompt"
KNAME = NAME + "_kernel"

QKV_OFF = 0
O_OFF = 32 * 256 * 1024
H_OFF = O_OFF + 32 * 80 * 1024
H1_OFF = H_OFF + 32 * 80 * 1024
ST_OFF = H1_OFF + 32 * 216 * 1024
F1_OFF = ST_OFF + 2048 * 64
F2_OFF = F1_OFF + 4096 * 128
F3_OFF = F2_OFF + 1024 * 128
F4_OFF = F3_OFF + 1024 * 128
FR_OFF = F4_OFF + 1024 * 128
F0_OFF = FR_OFF + 1024 * 128
XG_OFF = F0_OFF + 1024 * 128
TS_OFF = XG_OFF + 256 * 128
CS_OFF = TS_OFF + 1024 * 128
S1_OFF = CS_OFF + 20 * 7168
CQ_OFF = S1_OFF + 2048 * 16
WOF_OFF = CQ_OFF + 2048 * 8
W1F_OFF = WOF_OFF + 20 * 40 * 1024
W2F_OFF = W1F_OFF + 20 * 112 * 1024
WS_USED = W2F_OFF + 54 * 40 * 1024
QOCT = 256

def f2u(x):
    return struct.unpack("<I", struct.pack("<f", x))[0]

QSCALE = math.log2(math.e) / math.sqrt(20.0)
SPIN_MAX = 200000

sX, sWQKV, sWO, sW1, sW2, sOUT, sWS, sDBG = 8, 12, 16, 20, 24, 28, 32, 36
sWAVE, sXCD, sJ, sNONCE = 3, 40, 41, 42
sMODE, sXCC = 94, 95
OOB = '0x7f000000'
def srd(b): return f"s[{b}:{b+3}]"

class Gen:
    def __init__(self, stop=99, stamps=False, p1_ahead=2, probe=None, **kw):
        self.a = Asm()
        self.stop = stop
        self.stamps = stamps
        self.p1_ahead = p1_ahead
        self.nstamp = 0
        self.fine = (stop == 1) or bool(kw.get("fine1"))
        self.nlab = 0
        self.probe = probe
        self.stubs = []
        self.opt = kw
        self.clk = 's_memrealtime' if kw.get('rt', 1) else 's_memtime'

    def lab(self, base):
        self.nlab += 1
        return f"L_{base}_{self.nlab}"

    def stamp(self):
        if not self.stamps: return
        k = self.nstamp
        self.nstamp += 1
        assert k < 32
        a = self.a
        a.I("s_waitcnt lgkmcnt(0)")
        a.I(f"{self.clk} s[68:69]")
        a.I("s_waitcnt lgkmcnt(0)")
        a.I(f"v_writelane_b32 v0, s68, {k}")

    def dump_stamps(self):
        if not self.stamps: return
        a = self.a
        a.drain()
        a.fence()
        if self.probe is not None:
            i, j = self.probe
            if j < 0: j += self.nstamp
            a.M(f'''
            v_readlane_b32 s44, v0, {j}
            v_readlane_b32 s45, v0, {i}
            s_nop 4
            s_sub_u32 s44, s44, s45
            ''')
            if "late" in self.opt:
                a.I(f"s_sub_u32 s44, s45, s{sNONCE}")
                if self.opt["late"] < 0: a.I(f"s_sub_u32 s44, s{sNONCE}, s45")
                a.I("s_max_i32 s44, s44, 0")
            if "fix" in self.opt: a.I(f"s_mov_b32 s44, {self.opt['fix']}")
            if "jlo" in self.opt:
                a.I(f"s_cmp_lt_u32 s{sJ}, {self.opt['jlo']}")
                a.I("s_cselect_b32 s44, 0, s44")
                a.I(f"s_cmp_ge_u32 s{sJ}, {self.opt['jhi']}")
                a.I("s_cselect_b32 s44, 0, s44")
            if "xsel" in self.opt:
                a.I(f"s_cmp_lg_u32 s{sXCD}, {self.opt['xsel']}")
                a.I("s_cselect_b32 s44, 0, s44")
            a.M(f'''
            {self.clk} s[68:69]
            s_waitcnt lgkmcnt(0)
            s_mov_b32 s45, s68
            L_probe:
            {self.clk} s[68:69]
            s_waitcnt lgkmcnt(0)
            s_sub_u32 s46, s68, s45
            s_cmp_lt_u32 s46, s44
            s_cbranch_scc1 L_probe
            ''')
            return
        a.M(f"""
        s_lshl_b32 s44, s2, 2
        s_add_u32 s44, s44, s{sWAVE}
        s_lshl_b32 s44, s44, 7
        s_add_u32 s44, s44, {TS_OFF}
        v_lshlrev_b32 v2, 2, v1
        s_mov_b64 exec, {hex((1 << self.nstamp) - 1)}
        buffer_store_dword v0, v2, {srd(sWS)}, s44 offen
        s_mov_b64 exec, -1
        """)
        a.drain()

    def prologue(self):
        a = self.a
        a.M(f"""
        s_cmp_ge_u32 s2, 256
        s_cbranch_scc1 L_end
        s_load_dwordx16 s[48:63], s[0:1], 0
        s_load_dwordx2 s[64:65], s[0:1], 64
        """)
        if self.stamps:
            a.I(f"{self.clk} s[92:93]"); self.nstamp = 1
        if self.opt.get("cpf", 1):
            a.M(f"""
            s_getpc_b64 s[4:5]
            s_lshr_b32 s{sJ}, s2, 3
            s_mul_i32 s6, s{sJ}, 20
            v_add_u32 v2, s6, v0
            v_lshlrev_b32 v2, 7, v2
            v_min_u32 v2, CODE_BYTES-64, v2
            v_cmp_gt_u32 vcc, 20, v0
            s_and_saveexec_b64 s[6:7], vcc
            s_cbranch_execz L_cpf
            """)
            a.raw("    global_load_dword v63, v2, s[4:5]")
            a.label("L_cpf")
            a.I("s_mov_b64 exec, -1")
            a.vm = [(-1, set(), None)]
        a.M(f"""
        v_lshrrev_b32 v2, 6, v0
        v_and_b32 v1, 63, v0
        v_readfirstlane_b32 s{sWAVE}, v2
        s_and_b32 s{sXCD}, s2, 7
        s_lshr_b32 s{sJ}, s2, 3
        s_getreg_b32 s{sXCC}, hwreg(HW_REG_XCC_ID)
        s_and_b32 s{sXCC}, s{sXCC}, 15
        s_lshl_b32 s{sXCC}, s{sXCC}, 1
        s_mov_b32 s{sX+2}, {2048*1280}
        s_mov_b32 s{sX+3}, 0x20000
        s_mov_b32 s{sWQKV+2}, {640*3840}
        s_mov_b32 s{sWQKV+3}, 0x20000
        s_mov_b32 s{sWO+2}, {640*1280}
        s_mov_b32 s{sWO+3}, 0x20000
        s_mov_b32 s{sW1+2}, {640*3456}
        s_mov_b32 s{sW1+3}, 0x20000
        s_mov_b32 s{sW2+2}, {1728*1280}
        s_mov_b32 s{sW2+3}, 0x20000
        s_mov_b32 s{sOUT+2}, {2048*1280}
        s_mov_b32 s{sOUT+3}, 0x20000
        s_mov_b32 s{sWS+2}, {WS_USED}
        s_mov_b32 s{sWS+3}, 0x20000
        s_mov_b32 s{sDBG+2}, 256
        s_mov_b32 s{sDBG+3}, 0x20000
        """)

    def prologue_finish(self):
        a = self.a
        a.M(f"""
        s_waitcnt lgkmcnt(0)
        s_mov_b64 s[{sX}:{sX+1}], s[48:49]
        s_mov_b64 s[{sWQKV}:{sWQKV+1}], s[50:51]
        s_mov_b64 s[{sWO}:{sWO+1}], s[52:53]
        s_mov_b64 s[{sW1}:{sW1+1}], s[56:57]
        s_mov_b64 s[{sW2}:{sW2+1}], s[58:59]
        s_mov_b64 s[{sOUT}:{sOUT+1}], s[60:61]
        s_mov_b64 s[{sDBG}:{sDBG+1}], s[62:63]
        s_mov_b64 s[{sWS}:{sWS+1}], s[64:65]
        """)
        if self.stamps: a.I("v_mov_b32 v0, s92")
        a.I("s_mov_b64 s[92:93], s[4:5]")

    def publish_nonce(self):
        a = self.a
        skip = self.lab("nn")
        a.M(f"""
        s_or_b32 s44, s2, s{sWAVE}
        s_cmp_lg_u32 s44, 0
        s_cbranch_scc1 {skip}
        s_memrealtime s[68:69]
        s_waitcnt lgkmcnt(0)
        s_or_b32 s44, s68, 1
        v_mov_b32 v2, s44
        v_mov_b32 v3, 0
        s_mov_b64 exec, 1
        """)
        a.raw(f"    buffer_store_dword v2, v3, {srd(sDBG)}, 0 offen sc1")
        a.I("s_mov_b64 exec, -1")
        a.label(skip)

    def get_nonce(self, vt):
        a = self.a
        lp, done = self.lab("gn"), self.lab("gnd")
        a.I(f"v_mov_b32 v{vt+1}, 0")
        a.I(f"s_mov_b32 s44, 0")
        a.drain(); a.fence()
        a.label(lp)
        a.M(f"""
        buffer_load_dword v{vt}, v{vt+1}, {srd(sDBG)}, 0 offen sc1
        s_waitcnt vmcnt(0)
        v_readfirstlane_b32 s{sNONCE}, v{vt}
        s_add_u32 s44, s44, 1
        s_cmp_gt_u32 s44, {SPIN_MAX}
        s_cbranch_scc1 {done}
        s_cmp_eq_u32 s{sNONCE}, 0
        s_cbranch_scc1 {lp}
        """)
        a.label(done)
        a.fence(False)

    def signal(self, soff, vt, sc='sc1'):
        a = self.a
        a.M(f"""
        v_mov_b32 v{vt}, s{sNONCE}
        v_lshlrev_b32 v{vt+1}, 2, v1
        s_mov_b32 exec_hi, 0
        buffer_store_dword v{vt}, v{vt+1}, {srd(sWS)}, s{soff} offen {sc}
        s_mov_b32 exec_hi, -1
        """)

    def poll(self, vaddrs, vt, pipe=True):
        a = self.a
        lp, done = self.lab("pl"), self.lab("pld")
        a.I("s_mov_b32 s44, 0")
        a.fence()
        assert len(vaddrs) == 1
        va = vaddrs[0]
        if not self.opt.get("pp", 1) or not pipe:
            a.label(lp)
            a.M(f"""
            buffer_load_dword v{vt}, v{va}, {srd(sWS)}, 0 offen sc1
            s_waitcnt vmcnt(0)
            v_cmp_ne_u32 vcc, s{sNONCE}, v{vt}
            s_add_u32 s44, s44, 1
            s_cmp_gt_u32 s44, {SPIN_MAX}
            s_cbranch_scc1 {done}
            """)
            if self.opt.get("psl"):
                a.I(f"s_cbranch_vccz {done}")
                a.I(f"s_sleep {self.opt['psl']}")
                a.I(f"s_branch {lp}")
            else:
                a.I(f"s_cbranch_vccnz {lp}")
            a.label(done)
            a.fence(False)
            return
        ld = lambda r: f"    buffer_load_dword v{r}, v{va}, {srd(sWS)}, 0 offen sc1"
        a.raw(ld(vt))
        a.raw(f"    s_nop {self.opt.get('ppd', 15)}")
        a.label(lp)
        for r, o in ((vt, vt + 1), (vt + 1, vt)):
            a.raw(ld(o))
            a.raw("    s_waitcnt vmcnt(1)")
            a.raw(f"    v_cmp_ne_u32 vcc, s{sNONCE}, v{r}")
            a.raw(f"    s_cbranch_vccz {done}")
        a.raw("    s_add_u32 s44, s44, 1")
        a.raw(f"    s_cmp_gt_u32 s44, {SPIN_MAX}")
        a.raw(f"    s_cbranch_scc0 {lp}")
        a.label(done)
        a.fence(False)
        a.nid += 1
        a.vm = [(a.nid, {("v", vt), ("v", vt + 1)}, None)]

    def dual(self, fn):
        a = self.a
        slow, back = self.lab("gm"), self.lab("gmb")
        a.I(f"s_cmp_lg_u32 s{sMODE}, 0")
        a.I(f"s_cbranch_scc1 {slow}")
        n0 = len(a.lines)
        fn()
        blk = a.lines[n0:]
        a.lines[n0:] = [l.replace(" SCX", " nt" if ("dwordx" in l and self.opt.get("nt", 1)) else "") for l in blk]
        a.label(back)
        labs = [l[:-1] for l in blk if l.endswith(":") and not l.startswith(" ")]
        def stub():
            a.label(slow)
            for l in blk:
                l = l.replace(" SCX", " sc1")
                for lb in labs: l = re.sub(r"\b" + lb + r"\b", lb + "_g", l)
                a.raw(l)
            a.raw(f"    s_branch {back}")
        self.stubs.append(stub)

    def xg_addr(self, vd):
        self.a.M(f"""
        v_and_b32 v{vd}, 31, v1
        v_lshl_add_u32 v{vd}, v{vd}, 3, s{sXCD}
        v_lshlrev_b32 v{vd}, 7, v{vd}
        v_add_u32 v{vd}, {XG_OFF}, v{vd}
        """)

    def xg_publish(self, vt):
        self.a.M(f"""
        s_lshl_b32 s66, s2, 7
        s_add_u32 s66, s66, {XG_OFF}
        s_cmp_eq_u32 s{sNONCE}, 0
        s_cselect_b32 s66, {OOB}, s66
        s_cmp_lg_u32 s{sWAVE}, 0
        s_cselect_b32 s66, {OOB}, s66
        s_xor_b32 s67, s{sNONCE}, s{sXCC}
        v_mov_b32 v{vt}, s67
        v_mov_b32 v{vt+1}, 0
        s_mov_b64 exec, 1
        buffer_store_dword v{vt}, v{vt+1}, {srd(sWS)}, s66 offen sc1
        s_mov_b64 exec, -1
        """)

    def xg_mode(self, vval):
        self.a.M(f"""
        s_xor_b32 s67, s{sNONCE}, s{sXCC}
        v_cmp_ne_u32 vcc, s67, v{vval}
        s_cmp_lg_u64 vcc, 0
        s_cselect_b32 s{sMODE}, 1, {self.opt.get('force_global', 0)}
        """)

    def check_flags(self, vval, vaddr):
        a = self.a
        slow, back = self.lab("cf"), self.lab("cfb")
        a.I(f"v_cmp_ne_u32 vcc, s{sNONCE}, v{vval}")
        a.I(f"s_cbranch_vccnz {slow}")
        a.label(back)
        def stub():
            a.vm = []; a.lg = []; a.hist = []
            a.label(slow)
            self.poll([vaddr], vval, False)
            a.I(f"s_branch {back}")
        self.stubs.append(stub)

    def bf16r(self, d, s):
        a = self.a
        a.I(f"v_cvt_pk_bf16_f32 v{d}, v{s}, v{s}")
        a.I(f"v_and_b32 v{d}, 0xffff0000, v{d}")

    def ln_stats(self, vsum, vsq, vr_, vm_, t):
        a = self.a
        a.I(f"v_mul_f32 v{vm_}, {hex(f2u(1.0/640))}, v{vsum}")
        a.I(f"v_mul_f32 v{t}, {hex(f2u(1.0/640))}, v{vsq}")
        a.I(f"v_fma_f32 v{t}, -v{vm_}, v{vm_}, v{t}")
        a.I(f"v_max_f32 v{t}, 0, v{t}")
        self.bf16r(t, t)
        a.I(f"v_add_f32 v{t}, {hex(f2u(1e-5))}, v{t}")
        self.bf16r(t, t)
        a.I(f"v_sqrt_f32 v{t}, v{t}")
        self.bf16r(t, t)
        a.I(f"v_rcp_f32 v{vr_}, v{t}")
        self.bf16r(vm_, vm_)

    def phase1(self):
        a = self.a
        AH = self.p1_ahead
        sRB, sCB, sKC, sT0, sT1 = 70, 71, 72, 73, 74
        sWT, sWF = 75, 76
        vDX, vDW, vRX, vRW = 160, 164, 168, 172
        vCS, vSEL = 36, 44
        ACC, XF, WF = 64, 128, 144
        skip = "L_p1_skip"
        a.M(f"""
        s_and_b32 s66, s{sXCD}, 1
        s_mul_i32 s66, s66, 30
        s_add_u32 s66, s66, s{sJ}
        s_lshr_b32 s{sCB}, s66, 2
        s_and_b32 s67, s66, 3
        s_lshr_b32 s{sRB}, s{sXCD}, 1
        s_lshl_b32 s{sRB}, s{sRB}, 2
        s_add_u32 s{sRB}, s{sRB}, s67
        s_and_b32 s66, s{sXCD}, 1
        s_mul_i32 s66, s66, 7
        s_add_u32 s66, s66, s{sXCD}
        s_add_u32 s66, s66, s{sJ}
        s_sub_u32 s66, s66, 30
        s_cmp_ge_u32 s{sJ}, 30
        s_cselect_b32 s{sCB}, s66, s{sCB}
        """)
        rot = self.opt.get("rot", 1)
        if rot == 10:
            a.M(f"""
            s_mul_i32 s67, s67, 3
            s_add_u32 s{sKC}, s{sCB}, s67
            s_cmp_ge_u32 s{sKC}, 20
            s_cselect_b32 s67, 20, 0
            s_sub_u32 s{sKC}, s{sKC}, s67
            s_cmp_ge_u32 s{sKC}, 10
            s_cselect_b32 s67, 10, 0
            s_sub_u32 s{sKC}, s{sKC}, s67
            """)
        elif rot == 1:
            a.I(f"s_mov_b32 s{sKC}, 0")
        else:
            a.M(f"""
            s_add_u32 s{sKC}, s{sCB}, s67
            s_and_b32 s{sKC}, s{sKC}, {rot-1}
            s_mul_i32 s{sKC}, s{sKC}, 10
            s_lshr_b32 s{sKC}, s{sKC}, {rot.bit_length()-1}
            """)
        a.M(f"""
        s_lshl_b32 s66, s{sRB}, 7
        s_lshl_b32 s67, s{sWAVE}, 5
        s_add_u32 s66, s66, s67
        v_lshrrev_b32 v2, 3, v1
        v_add_u32 v2, s66, v2
        v_mul_u32_u24 v2, 1280, v2
        v_and_b32 v3, 7, v1
        v_lshrrev_b32 v4, 4, v1
        v_xor_b32 v3, v3, v4
        v_lshlrev_b32 v3, 4, v3
        v_xor_b32 v5, 64, v3
        v_add_u32 v{vDX}, v2, v3
        v_add_u32 v{vDX+1}, v2, v5
        v_add_u32 v{vDX+1}, {10240-1024}, v{vDX+1}
        v_add_u32 v{vDX+2}, {2*(10240-1024)}, v{vDX}
        v_add_u32 v{vDX+3}, {2*(10240-1024)}, v{vDX+1}
        """)
        a.M(f"""
        s_lshl_b32 s67, s{sWAVE}, 4
        v_add_u32 v2, s67, v4
        v_mul_u32_u24 v2, 3840, v2
        v_and_b32 v3, 15, v1
        v_lshlrev_b32 v5, 2, v4
        v_xor_b32 v3, v3, v5
        v_lshlrev_b32 v3, 4, v3
        s_lshl_b32 s67, s{sCB}, 8
        v_add3_u32 v{vDW}, v2, v3, s67
        v_add_u32 v{vDW+1}, {4*3840-1024}, v{vDW}
        v_add_u32 v{vDW+2}, {2*(4*3840-1024)}, v{vDW}
        v_add_u32 v{vDW+3}, {3*(4*3840-1024)}, v{vDW}
        """)
        a.M(f"""
        s_lshl_b32 s66, s{sXCD}, 5
        s_add_u32 s66, s66, s{sJ}
        s_lshl_b32 s66, s66, 2
        s_add_u32 s66, s66, s{sWAVE}
        s_lshl_b32 s66, s66, 1
        v_lshrrev_b32 v2, 5, v1
        v_add_u32 v182, s66, v2
        v_mul_u32_u24 v180, 1280, v182
        v_and_b32 v2, 31, v1
        v_lshl_add_u32 v180, v2, 4, v180
        v_bfe_u32 v2, v1, 4, 1
        v_lshl_add_u32 v181, v2, 30, v180
        v_lshlrev_b32 v182, 4, v182
        v_mov_b32 v34, 0
        """)
        self.prologue_finish()
        self.stamp()
        self.publish_nonce()
        def row_loads():
            for c in range(3):
                a.I(f"buffer_load_dwordx4 {vr(240+4*c,4)}, v{180 + (c == 2)}, {srd(sX)}, 0 offen offset:{512*c}")
        vm0 = list(a.vm)
        def stat_calc():
            a.I("v_mov_b32 v185, 0x3f803f80")
            for k in range(12):
                a.I(f"v_dot2_f32_bf16 v183, v{240+k}, v185, {'0' if k == 0 else 'v183'}")
                a.I(f"v_dot2_f32_bf16 v184, v{240+k}, v{240+k}, {'0' if k == 0 else 'v184'}")
            for sh in (8, 4, 2, 1):
                for r in (183, 184):
                    a.I(f"v_add_f32_dpp v{r}, v{r}, v{r} row_ror:{sh} row_mask:0xf bank_mask:0xf")
            a.M("""
            v_mov_b32 v185, v183
            v_mov_b32 v186, v184
            v_permlane16_swap_b32 v183, v185
            v_permlane16_swap_b32 v184, v186
            v_add_f32 v183, v183, v185
            v_add_f32 v184, v184, v186
            """)
            self.ln_stats(183, 184, 176, 177, 185)
        def nonce_load(): a.I(f"buffer_load_dword v35, v34, {srd(sDBG)}, 0 offen sc1")
        def stat_publish():
            slow, back = self.lab("nz"), self.lab("nzb")
            a.I(f"v_readfirstlane_b32 s{sNONCE}, v35")
            a.I(f"s_mov_b32 s46, {S1_OFF}")
            a.I(f"s_cmp_eq_u32 s{sNONCE}, 0")
            a.I(f"s_cbranch_scc1 {slow}")
            a.label(back)
            a.M(f"""
            v_mov_b32 v178, s{sNONCE}
            v_mov_b32 v179, s{sNONCE}
            s_mov_b32 exec_lo, 1
            s_mov_b32 exec_hi, 1
            buffer_store_dwordx4 v[176:179], v182, {srd(sWS)}, s46 offen sc1
            s_mov_b64 exec, -1
            """)
            def stub():
                a.vm = []; a.lg = []; a.hist = []
                lp = self.lab("nzl")
                a.label(slow)
                a.I("s_mov_b32 s44, 0")
                a.label(lp)
                a.M(f"""
                buffer_load_dword v35, v34, {srd(sDBG)}, 0 offen sc1
                s_waitcnt vmcnt(0)
                v_readfirstlane_b32 s{sNONCE}, v35
                s_add_u32 s44, s44, 1
                s_cmp_gt_u32 s44, {SPIN_MAX}
                s_cbranch_scc1 {back}
                s_cmp_eq_u32 s{sNONCE}, 0
                s_cbranch_scc1 {lp}
                s_branch {back}
                """)
            self.stubs.append(stub)
        a.M(f"""
        s_cmp_ge_u32 s{sJ}, 30
        s_cbranch_scc1 {skip}
        """)
        dma_last = {}
        def dma_setup_x(c):
            a.I(f"s_lshl_b32 s{sT0}, s{sKC}, 7")
            a.I(f"s_add_u32 m0, s77, {(c % 4) * 16384}")
        def dma_x(c, i):
            dma_last[c] = a.I(f"buffer_load_dwordx4 v{vDX+i}, {srd(sX)}, s{sT0} offen offset:{1024*i} lds")
        def dma_setup_w(c):
            a.I(f"s_mul_i32 s{sT1}, s{sKC}, {64*3840}")
            a.I(f"s_add_u32 m0, s77, {65536 + (c % 4) * 16384}")
        def dma_w(c, i):
            dma_last[c] = a.I(f"buffer_load_dwordx4 v{vDW+i}, {srd(sWQKV)}, s{sT1} offen offset:{1024*i} lds")
        def kc_next():
            a.I(f"s_add_u32 s{sKC}, s{sKC}, 1")
            a.I(f"s_cmp_eq_u32 s{sKC}, 10")
            a.I(f"s_cselect_b32 s{sKC}, 0, s{sKC}")
        def dma_items(c):
            it = [lambda: (dma_setup_x(c), dma_x(c, 0))] + [lambda i=i: dma_x(c, i) for i in (1, 2, 3)]
            it += [lambda: (dma_setup_w(c), dma_w(c, 0))] + [lambda i=i: dma_w(c, i) for i in (1, 2)]
            it += [lambda: (dma_w(c, 3), kc_next())]
            return it
        a.I(f"s_lshl_b32 s77, s{sWAVE}, 12")
        NPRE = self.opt.get('npre', 2)
        for c in range(NPRE):
            for it in dma_items(c): it()
            if c == 0:
                a.M(f"""
                s_lshr_b32 s{sWT}, s{sWAVE}, 1
                s_and_b32 s{sWF}, s{sWAVE}, 1
                v_and_b32 v2, 31, v1
                v_lshrrev_b32 v3, 5, v1
                v_bfe_u32 v4, v1, 1, 3
                v_xor_b32 v4, v4, v3
                v_lshlrev_b32 v4, 4, v4
                v_lshl_add_u32 v4, v2, 7, v4
                s_lshl_b32 s66, s{sWT}, 13
                v_add_u32 v{vRX}, s66, v4
                v_xor_b32 v{vRX+1}, 32, v{vRX}
                v_xor_b32 v{vRX+2}, 64, v{vRX}
                v_xor_b32 v{vRX+3}, 96, v{vRX}
                """)
                a.M(f"""
                v_bfe_u32 v4, v1, 2, 2
                v_lshl_add_u32 v5, v3, 3, v4
                v_lshlrev_b32 v5, 8, v5
                s_lshl_b32 s66, s{sWF}, 1
                v_xor_b32 v4, s66, v4
                v_lshl_add_u32 v5, v4, 6, v5
                v_bfe_u32 v4, v1, 4, 1
                v_lshl_add_u32 v5, v4, 5, v5
                v_and_b32 v6, 3, v1
                v_lshl_add_u32 v5, v6, 3, v5
                v_add_u32 v{vRW}, 65536, v5
                v_xor_b32 v{vRW+1}, 64, v{vRW}
                """)
                a.M(f"""
                v_lshlrev_b32 v33, 4, v2
                v_lshl_add_u32 v13, v3, 10, v33
                s_lshl_b32 s79, s{sRB}, 1
                s_add_u32 s79, s79, s{sWT}
                s_lshl_b32 s66, s79, 8
                s_lshl_b32 s67, s{sCB}, 4
                s_add_u32 s66, s66, s67
                s_lshl_b32 s67, s{sWF}, 3
                s_add_u32 s66, s66, s67
                s_lshl_b32 s78, s66, 10
                s_lshl_b32 s80, s79, 10
                s_add_u32 s80, s80, {S1_OFF}
                s_lshl_b32 s66, s{sCB}, 1
                s_add_u32 s66, s66, s{sWF}
                s_lshl_b32 s66, s66, 5
                s_add_u32 s66, s66, s79
                s_lshl_b32 s66, s66, 7
                s_add_u32 s81, s66, {F1_OFF}
                s_add_u32 s79, s78, 4096
                s_cmp_lt_u32 s{sCB}, 5
                s_cselect_b32 s82, {hex(f2u(QSCALE))}, 1.0
                v_lshlrev_b32 v61, 3, v2
                s_lshl_b32 s91, s{sCB}, 1
                s_add_u32 s91, s91, s{sWF}
                s_lshl_b32 s91, s91, 9
                s_add_u32 s91, s91, {CQ_OFF}
                """)
            if c == self.opt.get("pf1", -1):
                row_loads()
                a.M(f"""
                s_lshl_b32 s66, s2, 2
                s_add_u32 s66, s66, s{sWAVE}
                s_mul_i32 s66, s66, {20*128}
                v_lshlrev_b32 v2, 7, v1
                s_mov_b64 exec, 0xfffff
                buffer_load_dword v187, v2, {srd(sWQKV)}, s66 offen
                s_mov_b64 exec, -1
                """)
            if self.fine: self.stamp()

        def reads(g):
            c, ks = divmod(g, 4)
            b = g & 1
            so = (c % 4) * 16384
            it = []
            for u in range(2):
                it.append(lambda u=u: a.I(f"ds_read_b128 {vr(XF+8*b+4*u,4)}, v{vRX+ks} offset:{so+4096*u}"))
            for u in range(2):
                for rd in range(2):
                    it.append(lambda u=u, rd=rd: a.I(f"ds_read_b64_tr_b16 {vr(WF+8*b+4*u+2*rd,2)}, v{vRW+u} offset:{so+ks*4096+rd*1024}"))
            return [it[0], it[2], it[3], it[1], it[4], it[5]]

        from gen2 import repack_setup
        from gen2 import phase2_setup
        a.capture = []
        self.rp = repack_setup(self)
        phase2_setup(self)
        setup, a.capture = a.capture, None
        groups = []
        for x in setup:
            if groups and x.split()[0] in ("s_cselect_b32", "s_cselect_b64", "s_addc_u32"): groups[-1].append(x)
            elif groups and groups[-1][0].startswith("s_cmp") and x.split()[0] in ("s_mov_b32", "s_movk_i32"): groups[-1].append(x)
            else: groups.append([x])
        a.wait_vm(dma_last[0])
        a.I("s_barrier")
        self.stamp()
        for it in reads(0): it()
        pend = []
        for c in range(NPRE, AH + 1): pend += dma_items(c)
        ST = 48
        def stat_loads():
            for u in range(2):
                a.I(f"buffer_load_dwordx2 {vr(vCS+4*u,2)}, v61, {srd(sWS)}, s91 offen offset:{256*u} sc1")
            for tu in range(2):
                r = a.I(f"buffer_load_dwordx4 {vr(ST+4*tu,4)}, v33, {srd(sWS)}, s80 offen offset:{512*tu} sc1")
            return r
        for g in range(40):
            c, ks = divmod(g, 4)
            b = g & 1
            X = [XF + 8*b, XF + 8*b + 4]
            W = [WF + 8*b, WF + 8*b + 4]
            rd = reads(g + 1) if g + 1 < 40 else []
            boundary = (ks == 3 and g + 1 < 40)
            a.I("s_waitcnt lgkmcnt(0)")
            order = [(0, 0), (0, 1), (1, 0), (1, 1)]
            for n, (fu, tu) in enumerate(order):
                d = ACC + 16 * (2*fu + tu)
                cc = "0" if g == 0 else vr(d, 16)
                a.I(f"v_mfma_f32_32x32x16_bf16 {vr(d,16)}, {vr(W[fu],4)}, {vr(X[tu],4)}, {cc}")
                if n == 0 and g == self.opt.get("scg", 7): stat_calc()
                if n == 0 and boundary:
                    a.wait_vm(dma_last[c + 1])
                    a.I("s_barrier")
                    if self.fine: self.stamp()
                    if c + 1 + AH < 10:
                        pend += dma_items(c + 1 + AH)
                    if c == 8 and False:
                        for gr in groups:
                            for x in gr: a.I(x)
                        print("setup left at c=8:", sum(map(len, groups)))
                        groups = []
                        pass
                take = {0: 3, 1: 3, 2: 0, 3: 0}[n]
                for it in rd[:take]: it()
                rd = rd[take:]
                if n == 2:
                    for _ in range(3 if g < 3 else 2):
                        if pend: pend.pop(0)()
                    if g == self.opt.get("gs", 34): stat_id = stat_loads()
                    if g == 2:
                        if self.opt.get('pf1', -1) < 0: row_loads()
                        nonce_load()
                    if g == 12: stat_publish()
                if self.opt.get('fillp1', 0) and (n == 3 or (n == 2 and not pend)):
                    k = 0
                    while groups and k < 5:
                        for x in groups.pop(0): a.I(x); k += 1
        assert not pend
        self.stamp()
        retry, ok = self.lab("st"), self.lab("sto")
        a.I("s_mov_b32 s44, 0")
        a.wait_vm(stat_id)
        a.fence()
        keep = list(a.vm)
        a.label(retry)
        a.M(f"""
        v_cmp_ne_u32 vcc, s{sNONCE}, v{ST+2}
        v_cmp_ne_u32 s[46:47], s{sNONCE}, v{ST+6}
        v_cmp_ne_u32 s[66:67], s{sNONCE}, v{vCS+1}
        s_or_b64 vcc, vcc, s[46:47]
        v_cmp_ne_u32 s[46:47], s{sNONCE}, v{vCS+5}
        s_or_b64 vcc, vcc, s[66:67]
        s_or_b64 vcc, vcc, s[46:47]
        s_cbranch_scc0 {ok}
        s_add_u32 s44, s44, 1
        s_cmp_gt_u32 s44, {SPIN_MAX}
        s_cbranch_scc1 {ok}
        """)
        stat_loads()
        a.I("s_waitcnt vmcnt(0)")
        a.I(f"s_branch {retry}")
        a.label(ok)
        a.fence(False)
        a.vm = keep
        if self.opt.get("f1"): self.stamp()
        EA, EB = XF, XF + 8
        for u in range(2):
            c0 = vCS + 4*u
            a.M(f"""
            v_and_b32 v2, 0xffff0000, v{c0}
            v_sub_f32 v3, v{c0}, v2
            v_and_b32 v4, 0xffff0000, v3
            v_sub_f32 v3, v3, v4
            v_cvt_pk_bf16_f32 v{EA+4*u}, v2, v4
            v_cvt_pk_bf16_f32 v{EA+4*u+1}, v3, 0
            v_mov_b32 v{EA+4*u+2}, 0
            v_mov_b32 v{EA+4*u+3}, 0
            v_mul_f32 v{ST+4*u+1}, -0.5, v{ST+4*u+1}
            v_cvt_pk_bf16_f32 v{EB+4*u}, v{ST+4*u+1}, v{ST+4*u+1}
            v_mov_b32 v{EB+4*u+1}, v{EB+4*u}
            v_mov_b32 v{EB+4*u+2}, 0
            v_mov_b32 v{EB+4*u+3}, 0
            v_mul_f32 v{ST+4*u}, s82, v{ST+4*u}
            """)
        tiles = [(0, 0), (0, 1), (1, 0), (1, 1)]
        for fu, tu in tiles:
            d = ACC + 16 * (2*fu + tu)
            a.I(f"v_mfma_f32_32x32x16_bf16 {vr(d,16)}, {vr(EA+4*fu,4)}, {vr(EB+4*tu,4)}, {vr(d,16)}")
        P = 176
        for n, (fu, tu) in enumerate(tiles):
            d = ACC + 16 * (2*fu + tu)
            st = ST + 4*tu
            p = P + 8 * n
            for k in range(8):
                a.I(f"v_pk_mul_f32 {vr(d+2*k,2)}, {vr(d+2*k,2)}, {vr(st,2)} op_sel:[0,0] op_sel_hi:[1,0]")
            for k in range(8):
                a.I(f"v_cvt_pk_bf16_f32 v{p+k}, v{d+2*k}, v{d+2*k+1}")
            for pr in range(2):
                a.I(f"v_permlane32_swap_b32 v{p+4*pr}, v{p+4*pr+2}")
                a.I(f"v_permlane32_swap_b32 v{p+4*pr+1}, v{p+4*pr+3}")
            for pr in range(2):
                a.I(f"buffer_store_dwordx4 {vr(p+4*pr,4)}, v13, {srd(sWS)}, s{78+fu} offen offset:{2048*pr+512*tu} sc1")
        self.stamp()
        for gr in groups:
            for x in gr: a.I(x)
        a.M(f"""
        s_mov_b32 s75, s81
        s_waitcnt lgkmcnt(0)
        s_branch L_p1_done
        """)
        vm_keep = list(a.vm)
        a.vm = vm0
        a.label(skip)
        a.fence(False)
        row_loads()
        a.I(f"s_lshl_b32 s77, s{sWAVE}, 12")
        ids = []
        def wq_dma(c):
            a.I(f"s_mov_b32 s{sT1}, {c*64*3840}")
            a.I(f"s_add_u32 m0, s77, {c*16384}")
            for i in range(4):
                r = a.I(f"buffer_load_dwordx4 v{vDW+i}, {srd(sWQKV)}, s{sT1} offen offset:{1024*i} lds")
            ids.append(r)
        for c in range(2): wq_dma(c)
        a.M(f"""
        v_lshrrev_b32 v3, 5, v1
        v_bfe_u32 v4, v1, 2, 2
        v_lshl_add_u32 v5, v3, 3, v4
        v_lshlrev_b32 v5, 8, v5
        v_lshl_add_u32 v5, v4, 6, v5
        v_bfe_u32 v4, v1, 4, 1
        v_lshl_add_u32 v5, v4, 5, v5
        v_and_b32 v6, 3, v1
        v_lshl_add_u32 v5, v6, 3, v5
        v_add_u32 v24, s77, v5
        v_xor_b32 v25, 64, v24
        v_xor_b32 v26, 128, v24
        v_xor_b32 v27, 192, v24
        v_and_b32 v6, 15, v1
        v_lshlrev_b32 v4, 2, v4
        v_cmp_eq_u32 vcc, v6, v4
        v_mov_b32 v6, 0x3f803f80
        v_cndmask_b32 v{vSEL}, 0, v6, vcc
        v_cndmask_b32 v{vSEL+1}, 0, v6, vcc
        v_cndmask_b32 v{vSEL+2}, 0, v6, vcc
        v_cndmask_b32 v{vSEL+3}, 0, v6, vcc
        """)
        stat_calc()
        for c in range(2, 5): wq_dma(c)
        nonce_load()
        for c in range(5, 10): wq_dma(c)
        stat_publish()
        for c in range(10):
            if c in (4, 8):
                for f in range(4): a.I(f"v_add_u32 v{24+f}, 65536, v{24+f}")
            a.wait_vm(ids[c])
            for f in range(4):
                for rd in range(2):
                    a.I(f"ds_read_b64_tr_b16 {vr(64+4*f+2*rd,2)}, v{24+f} offset:{(c%4)*16384+1024*rd}")
            for f in range(4):
                a.I(f"v_mfma_f32_16x16x32_bf16 {vr(48+4*f,4)}, {vr(vSEL,4)}, {vr(64+4*f,4)}, {'0' if c == 0 else vr(48+4*f,4)}")
        a.M(f"""
        v_lshl_add_u32 v24, v1, 2, s77
        s_lshl_b32 s66, s{sWAVE}, 8
        v_lshl_add_u32 v25, v1, 2, s66
        """)
        for f in range(4): a.I(f"ds_write_b32 v24, v{48+4*f} offset:{256*f}")
        a.I("s_waitcnt lgkmcnt(0)")
        a.I("s_barrier")
        for w in range(4): a.I(f"ds_read_b32 v{64+w}, v25 offset:{4096*w}")
        a.M(f"""
        v_add_f32 v64, v64, v65
        v_add_f32 v66, v66, v67
        v_add_f32 v64, v64, v66
        v_mov_b32 v65, s{sNONCE}
        v_lshlrev_b32 v24, 3, v1
        s_lshl_b32 s66, s{sCB}, 2
        s_add_u32 s66, s66, s{sWAVE}
        s_lshl_b32 s66, s66, 8
        s_add_u32 s66, s66, {CQ_OFF}
        s_mov_b32 exec_hi, 0
        buffer_store_dwordx2 v[64:65], v24, {srd(sWS)}, s66 offen sc1
        s_mov_b32 exec_hi, -1
        s_barrier
        """)
        if self.stamps:
            a.M(f"""
            {self.clk} s[68:69]
            s_waitcnt lgkmcnt(0)
            v_writelane_b32 v0, s68, 3
            """)
        a.I(f"s_mov_b32 s75, {OOB}")
        repack_setup(self)
        phase2_setup(self)
        a.fence()
        a.label("L_p1_done")
        a.fence(False)
        a.vm = [(-1 - i, set(), None) for i in range(8)]
        a.lg = []

    def build(self):
        a = self.a
        self.prologue()
        self.phase1()
        if self.stop == 1:
            a.I("s_waitcnt vmcnt(0)")
        if self.stop >= 2:
            from gen2 import phase2, phase3, phase4, phase5
            phase2(self)
            if self.stop >= 3: phase3(self)
            if self.stop >= 4: phase4(self)
            if self.stop >= 5: phase5(self)
        self.dump_stamps()
        a.drain()
        a.label("L_end")
        a.I("s_endpgm")
        if self.stop >= 2:
            from gen2 import slow_path
            slow_path(self)
        for st in self.stubs: st()
        head = open(f"cdna_kernels/{NAME}.s.ref").read().split("; Override launch")[0]
        out = head + f"""; @launch grid=(256,1,1) block=(256,1,1) lds=163840
.amdgcn_target "amdgcn-amd-amdhsa--gfx950"
.text
.globl {KNAME}
.p2align 8
.type {KNAME},@function
{KNAME}:
""" + a.text() + f"""L_code_end:
.set CODE_BYTES, L_code_end-{KNAME}
.section .rodata,"a"
.p2align 6
.amdhsa_kernel {KNAME}
  .amdhsa_next_free_vgpr 512
  .amdhsa_next_free_sgpr 102
  .amdhsa_accum_offset 256
  .amdhsa_group_segment_fixed_size 0
  .amdhsa_kernarg_size 72
  .amdhsa_user_sgpr_count 2
  .amdhsa_user_sgpr_kernarg_segment_ptr 1
  .amdhsa_system_sgpr_workgroup_id_x 1
.end_amdhsa_kernel
"""
        return out

if __name__ == "__main__":
    import argparse
    ap = argparse.ArgumentParser()
    ap.add_argument("-o", default="out.s")
    ap.add_argument("--stop", type=int, default=99)
    ap.add_argument("--stamps", action="store_true")
    ap.add_argument("--ahead", type=int, default=2)
    ap.add_argument("--probe", default=None)
    ap.add_argument("--opt", default="")
    args = ap.parse_args()
    kw = {k: int(v) for k, v in (x.split('=') for x in args.opt.split(',') if x)}
    g = Gen(stop=args.stop, stamps=args.stamps or args.probe is not None, p1_ahead=args.ahead, probe=tuple(map(int, args.probe.split(':'))) if args.probe else None, **kw)
    s = g.build()
    open(args.o, "w").write(s)
    print(f"stamps {g.nstamp} instrs {g.a.nins} nops {g.a.nnop} autowaits {g.a.nwait} bytes {len(s)}")
```

```python
from asmlib import vr
from gen import *

SLOT = 14336
NSLOT = 5
RING = 163840 - NSLOT * SLOT
RED = 163840 - 61440

sH, sQB, sPAR, sB3, sBLK = 43, 45, 48, 49, 50
sCB3, sRB64 = 51, 52
sW1S = 53
sKVS = 54
sQS = 55
sT0, sT1 = 56, 57
sKVD = 58
sW2S, sWOS = 59, 60
vXR = 160
sOS = 78
sOWN = 6
vH = 222

def w2reg(step, f):
    q = (step * 5 + f) * 4
    return ("a", q) if q < 256 else ("v", 232 + q - 256)

def worege(st, f):
    return 172 + 20*st + 4*f if st < 3 else 52 + 20*(st-3) + 4*f

def repack_setup(g, lds=0):
    a = g.a
    sR = 96
    a.M(f"""
    s_mul_i32 s83, s2, 3
    s_add_u32 s83, s83, s{sWAVE}
    s_cmp_eq_u32 s{sWAVE}, 3
    s_cselect_b32 s83, 1023, s83
    s_lshl_b32 s88, s83, 7
    s_add_u32 s88, s88, {FR_OFF}
    s_mov_b32 s85, {W2F_OFF}
    s_movk_i32 s86, 1280
    s_movk_i32 s87, 13108
    s_cmp_lt_u32 s83, 270
    s_cselect_b64 s[{sR}:{sR+1}], s[{sW2}:{sW2+1}], s[{sWO}:{sWO+1}]
    s_cselect_b32 s{sR+2}, s{sW2+2}, s{sWO+2}
    s_cselect_b32 s84, 0, 270
    s_cselect_b32 s85, s85, {WOF_OFF}
    s_cmp_lt_u32 s83, 370
    s_cselect_b64 s[{sR}:{sR+1}], s[{sR}:{sR+1}], s[{sW1}:{sW1+1}]
    s_cselect_b32 s{sR+2}, s{sR+2}, {640*3456}
    s_cselect_b32 s84, s84, 370
    s_cselect_b32 s85, s85, {W1F_OFF}
    s_cselect_b32 s86, s86, 3456
    s_cselect_b32 s87, s87, 4682
    s_cselect_b32 s89, 5, 14
    s_mov_b32 s{sR+3}, 0x20000
    s_sub_u32 s84, s83, s84
    s_lshl_b32 s90, s84, 13
    s_add_u32 s85, s85, s90
    s_lshl_b32 s90, s84, 9
    s_add_u32 s90, s90, {CS_OFF}
    s_cmp_lt_u32 s83, 370
    s_cselect_b32 s90, 0x7f000000, s90
    s_mul_i32 s87, s87, s84
    s_lshr_b32 s87, s87, 16
    s_mul_i32 s89, s89, s87
    s_sub_u32 s84, s84, s89
    s_mul_i32 s87, s87, s86
    s_lshl_b32 s87, s87, 5
    s_lshl_b32 s84, s84, 8
    s_add_u32 s87, s87, s84
    s_cmp_ge_u32 s83, 650
    s_cselect_b32 s{sR+2}, 0, s{sR+2}
    s_cselect_b32 s100, 0x7f000000, s85
    s_cselect_b32 s101, 0x7f000000, s88
    s_cselect_b32 s90, 0x7f000000, s90
    s_lshl_b32 s89, s86, 2
    s_sub_u32 s89, s89, 1024
    s_lshl_b32 s83, s{sWAVE}, 13
    s_add_u32 s83, s83, {lds}
    v_lshrrev_b32 v2, 4, v1
    v_mul_u32_u24 v3, s86, v2
    v_and_b32 v4, 15, v1
    v_lshlrev_b32 v5, 1, v2
    v_xor_b32 v4, v4, v5
    v_lshlrev_b32 v4, 4, v4
    v_add_u32 v252, v3, v4
    v_xor_b32 v4, 128, v4
    v_add_u32 v253, v3, v4
    v_bfe_u32 v3, v1, 2, 2
    v_lshl_add_u32 v4, v2, 3, v3
    v_lshlrev_b32 v4, 8, v4
    v_bfe_u32 v5, v1, 2, 3
    v_lshl_add_u32 v4, v5, 5, v4
    v_and_b32 v5, 3, v1
    v_lshl_add_u32 v4, v5, 3, v4
    v_add_u32 v254, s83, v4
    """)
    last = [None]
    def dma(i):
        if i % 4 == 0:
            a.I(f"s_add_u32 m0, s83, {1024*i}")
        if i == 4: a.I("s_add_u32 s87, s87, 4096")
        if i > 0: a.I("s_add_u32 s87, s87, s89")
        last[0] = a.I(f"buffer_load_dwordx4 v{252+((i>>1)&1)}, {srd(sR)}, s87 offen offset:{1024*(i%4)} lds")
    RP = 208
    def rd(t):
        for r in range(2):
            a.I(f"ds_read_b64_tr_b16 {vr(RP+4*t+2*r,2)}, v2 offset:{1024*r}")
    def st(t):
        if t == 4: a.I("s_add_u32 s100, s100, 4096")
        a.I(f"buffer_store_dwordx4 {vr(RP+4*t,4)}, v16, {srd(sWS)}, s100 offen offset:{1024*(t%4)} sc1")
    return ([lambda i=i: dma(i) for i in range(8)], lambda: a.wait_vm(last[0]),
            [lambda t=t: rd(t) for t in range(8)], [lambda t=t: st(t) for t in range(8)])

def w1f_dma(g, sub, vlin):
    a = g.a
    def p(k):
        a.I(f"s_add_u32 m0, s7, {sub*4*7168 + 4096*k}")
        a.I(f"s_add_u32 s{sT1}, s{sW1S}, {sub*4*112*1024 + 4096*k}")
    def f(i):
        return a.I(f"buffer_load_dwordx4 v{vlin}, {srd(sWS)}, s{sT1} offen offset:{1024*(i%4)} sc1 lds")
    return [(lambda: p(0), lambda: (f(0), f(1))), (None, lambda: (f(2), f(3))), (lambda: p(1), lambda: (f(4), f(5))), (None, lambda: f(6))]

def wb_l2(g):
    a = g.a
    sk = g.lab("wb")
    a.I(f"s_or_b32 s66, s{sJ}, s{sWAVE}")
    a.I(f"s_cbranch_scc1 {sk}")
    a.raw("    buffer_wbl2 sc1")
    a.label(sk)

def run(items):
    for pre, fn in items:
        if pre: pre()
        fn()

vKV, vK0, vK1, vV, vQ0 = 16, 24, 25, 26, 28
def phase2_setup(g):
    a = g.a
    a.M(f"""
    s_lshr_b32 s66, s{sJ}, 3
    s_lshl_b32 s{sRB64}, s{sXCD}, 2
    s_add_u32 s{sRB64}, s{sRB64}, s66
    s_mov_b32 s{sH}, s{sRB64}
    s_and_b32 s{sCB3}, s{sJ}, 7
    s_mov_b32 s{sQB}, s{sCB3}
    s_and_b32 s{sPAR}, s{sH}, 1
    s_lshr_b32 s66, s{sH}, 1
    s_mul_i32 s66, s66, 5
    s_lshl_b32 s67, s{sPAR}, 1
    s_add_u32 s{sB3}, s66, s67
    s_lshl_b32 s{sBLK}, s{sQB}, 2
    s_add_u32 s{sBLK}, s{sBLK}, s{sWAVE}
    s_lshr_b32 s61, s{sWAVE}, 1
    s_and_b32 s62, s{sWAVE}, 1
    """)
    a.M(f"""
    s_lshr_b32 s66, s{sB3}, 3
    s_add_u32 s67, s{sB3}, 2
    s_lshr_b32 s67, s67, 3
    s_sub_u32 s67, s67, s66
    v_bfe_u32 v2, v1, 4, 1
    v_mul_u32_u24 v2, s67, v2
    v_add_u32 v2, s66, v2
    s_mul_i32 s63, s61, 10
    s_add_u32 s63, s63, 10
    v_add_u32 v3, s63, v2
    v_and_b32 v4, 15, v1
    v_lshl_add_u32 v4, v4, 1, s62
    v_lshl_add_u32 v5, v3, 5, v4
    v_lshlrev_b32 v5, 7, v5
    v_add_u32 v19, {F1_OFF}, v5
    v_and_b32 v4, 3, v4
    s_lshl_b32 s63, s{sQB}, 2
    v_add_u32 v4, s63, v4
    v_lshl_add_u32 v3, v3, 5, v4
    v_lshl_add_u32 v2, v2, 5, s{sBLK}
    v_cmp_gt_u32 vcc, 32, v1
    v_cndmask_b32 v2, v2, v3, vcc
    v_lshlrev_b32 v2, 7, v2
    v_add_u32 v30, {F1_OFF}, v2
    """)
    a.M(f"""
    s_lshl_b32 s66, s61, 2
    v_lshlrev_b32 v{vKV}, 4, v1
    v_xor_b32 v2, s66, v1
    v_lshlrev_b32 v{vKV+1}, 4, v2
    s_lshl_b32 s66, s61, 3
    v_xor_b32 v2, s66, v1
    v_lshlrev_b32 v{vKV+2}, 4, v2
    s_mul_i32 s66, s61, 80
    s_add_u32 s66, s66, 80
    s_add_u32 s66, s66, s{sB3}
    s_lshl_b32 s67, s62, 8
    s_add_u32 s66, s66, s67
    s_lshl_b32 s67, s{sQB}, 10
    s_add_u32 s66, s66, s67
    s_lshl_b32 s{sKVS}, s66, 10
    s_mul_i32 s{sKVD}, s62, 7168
    s_mul_i32 s66, s61, 3072
    s_add_u32 s{sKVD}, s{sKVD}, s66
    s_add_u32 s{sKVD}, s{sKVD}, {RING}
    """)
    a.M(f"""
    v_and_b32 v2, 31, v1
    v_lshrrev_b32 v3, 5, v1
    v_lshlrev_b32 v2, 4, v2
    v_add_u32 v4, s{sPAR}, v3
    v_lshl_add_u32 v{vQ0}, v4, 10, v2
    v_add_u32 v{vK0}, {RING}, v{vQ0}
    s_cmp_eq_u32 s{sPAR}, 0
    s_cselect_b32 s63, 2048, 0
    v_add_u32 v31, s63, v2
    v_add_u32 v4, 6144, v2
    v_cndmask_b32 v{vK1}, v4, v31, vcc
    v_add_u32 v{vK1}, {RING}, v{vK1}
    """)
    a.M(f"""
    v_bfe_u32 v4, v1, 4, 1
    v_and_b32 v5, 3, v1
    v_lshl_add_u32 v4, v4, 2, v5
    v_lshrrev_b32 v5, 1, v4
    v_add_u32 v6, s{sPAR}, v5
    s_lshr_b32 s63, s63, 10
    v_mov_b32 v7, s63
    v_cmp_eq_u32 vcc, 2, v5
    v_cndmask_b32 v6, v6, v7, vcc
    v_and_b32 v8, 1, v4
    v_xor_b32 v9, s{sPAR}, v8
    v_cndmask_b32 v8, v8, v9, vcc
    v_cmp_le_u32 vcc, 5, v4
    v_cndmask_b32 v6, v6, 3, vcc
    v_cndmask_b32 v8, v8, 0, vcc
    v_cmp_eq_u32 vcc, 5, v4
    v_cndmask_b32 v8, v8, 1, vcc
    v_bfe_u32 v9, v1, 2, 2
    v_lshl_add_u32 v9, v3, 2, v9
    v_lshlrev_b32 v10, 2, v6
    v_xor_b32 v9, v9, v10
    v_lshlrev_b32 v9, 4, v9
    v_lshl_add_u32 v9, v6, 10, v9
    v_lshl_add_u32 v9, v8, 3, v9
    v_add_u32 v{vV}, {RING+3072}, v9
    v_xor_b32 v{vV+1}, 128, v{vV}
    """)
    a.M(f"""
    s_mul_i32 s66, s{sCB3}, 5
    s_mul_i32 s67, s{sWAVE}, {14*40}
    s_add_u32 s67, s67, s66
    s_lshl_b32 s67, s67, 10
    s_add_u32 s{sW2S}, s67, {W2F_OFF}
    s_mul_i32 s67, s{sWAVE}, {5*40}
    s_add_u32 s67, s67, s66
    s_lshl_b32 s67, s67, 10
    s_add_u32 s{sWOS}, s67, {WOF_OFF}
    s_and_b32 s5, s{sJ}, 15
    s_mul_i32 s63, s5, 7
    s_mul_i32 s67, s{sWAVE}, 112
    s_add_u32 s67, s67, s63
    s_lshl_b32 s67, s67, 10
    s_add_u32 s{sW1S}, s67, {W1F_OFF}
    s_mul_i32 s7, s{sWAVE}, 7168
    v_and_b32 v2, 1, v1
    v_lshrrev_b32 v3, 1, v1
    v_lshl_add_u32 v4, v2, 2, s66
    v_lshrrev_b32 v4, 3, v4
    v_mul_u32_u24 v5, 6, v2
    v_add_u32 v5, s63, v5
    v_lshrrev_b32 v5, 3, v5
    s_mul_i32 s67, s{sWAVE}, 14
    v_add_u32 v6, s67, v3
    v_min_u32 v6, 53, v6
    v_mad_u32_u24 v6, v6, 5, v4
    s_mul_i32 s67, s{sWAVE}, 5
    s_add_u32 s67, s67, {54-14}
    v_add_u32 v7, s67, v3
    v_mad_u32_u24 v7, v7, 5, v4
    v_cmp_le_u32 vcc, 14, v3
    v_cndmask_b32 v6, v6, v7, vcc
    v_subrev_u32 v7, 19, v3
    v_min_u32 v7, 4, v7
    v_lshl_add_u32 v7, v7, 2, s{sWAVE}
    v_mad_u32_u24 v7, v7, 14, v5
    v_add_u32 v7, 370, v7
    v_cmp_le_u32 vcc, 19, v3
    v_cndmask_b32 v6, v6, v7, vcc
    v_lshlrev_b32 v6, 7, v6
    v_add_u32 v29, {FR_OFF}, v6
    s_add_u32 s{sOWN}, s{sWAVE}, s{sCB3}
    s_and_b32 s{sOWN}, s{sOWN}, 3
    s_add_u32 s67, s{sOWN}, 1
    s_and_b32 s67, s67, 3
    s_lshl_b32 s66, s{sRB64}, 2
    s_add_u32 s66, s66, s67
    s_lshl_b32 s66, s66, 4
    v_and_b32 v2, 15, v1
    v_add_u32 v2, s66, v2
    v_mul_u32_u24 v2, 1280, v2
    v_lshrrev_b32 v3, 4, v1
    v_lshl_add_u32 v2, v3, 3, v2
    s_mul_i32 s66, s{sCB3}, 160
    v_add_u32 v14, s66, v2
    """)
    g.xg_addr(20)
    a.M(f"""
    s_mul_i32 s66, s{sJ}, 20
    v_add_u32 v11, s66, v1
    v_lshlrev_b32 v11, 7, v11
    v_min_u32 v11, CODE_BYTES-64, v11
    """)
    a.M(f"""
    s_lshl_b32 s66, s{sJ}, 2
    s_add_u32 s66, s66, s{sWAVE}
    s_lshl_b32 s67, s{sXCD}, 7
    s_add_u32 s66, s66, s67
    s_mul_i32 s67, s66, {54*128}
    s_add_u32 s67, s67, {H1_OFF}
    v_lshl_add_u32 v22, v1, 7, s67
    s_lshl_b32 s67, s66, 7
    s_add_u32 s67, s67, {ST_OFF}
    v_mov_b32 v2, s67
    v_cmp_le_u32 vcc, 54, v1
    v_cndmask_b32 v22, v22, v2, vcc
    s_mul_i32 s67, s66, {20*128}
    s_add_u32 s67, s67, {H_OFF}
    v_lshl_add_u32 v23, v1, 7, s67
    s_mul_i32 s67, s{sBLK}, 80
    s_add_u32 s67, s67, s{sB3}
    s_cmp_eq_u32 s{sPAR}, 0
    s_cselect_b32 s63, 2, 0
    s_add_u32 s67, s67, s63
    s_lshl_b32 s67, s67, 10
    s_add_u32 s67, s67, {O_OFF - 20*128}
    v_lshl_add_u32 v2, v1, 7, s67
    v_cmp_le_u32 vcc, 20, v1
    v_cndmask_b32 v23, v23, v2, vcc
    s_lshl_b32 s67, s66, 7
    s_add_u32 s67, s67, {F2_OFF - 28*131072}
    v_lshlrev_b32 v2, 17, v1
    v_add_u32 v2, s67, v2
    v_cmp_le_u32 vcc, 28, v1
    v_cndmask_b32 v23, v23, v2, vcc
    """)
    assert F3_OFF - F2_OFF == 131072 and F4_OFF - F3_OFF == 131072
    a.M(f"""
    v_and_b32 v2, 7, v1
    s_lshl_b32 s66, s{sWAVE}, 3
    v_add_u32 v2, s66, v2
    v_lshl_add_u32 v2, v2, 5, s{sRB64}
    v_lshlrev_b32 v2, 7, v2
    v_add_u32 v2, {F0_OFF}, v2
    v_lshrrev_b32 v3, 3, v1
    v_cmp_eq_u32 vcc, {6 if g.opt.get("so3", 1) else 60}, v3
    v_cndmask_b32 v29, v29, v2, vcc
    s_lshl_b32 s66, s{sWAVE}, 8
    s_add_u32 s66, s66, {RING+6144}
    v_lshl_add_u32 v21, v1, 2, s66
    s_lshl_b32 s{sQS}, s{sBLK}, 8
    s_add_u32 s{sQS}, s{sQS}, s{sB3}
    s_lshl_b32 s{sQS}, s{sQS}, 10
    """)

def phase2(g):
    a = g.a
    Q, KB, VB, P, S, O = 32, 48, 64, 80, 96, 128
    a.M(f"""
    s_barrier
    v_and_b32 v5, 3, v1
    v_mov_b32 v4, 0x3f80
    v_cmp_eq_u32 vcc, 0, v5
    v_cndmask_b32 v4, 0, v4, vcc
    """)
    for k in range(2 * NSLOT):
        a.I(f"ds_write_b32 v21, v4 offset:{k*7168}")
    a.I("s_waitcnt vmcnt(0)")
    g.signal(75, 2)
    g.stamp()
    a.M(f"""
    s_mul_i32 s66, s{sBLK}, 80
    s_add_u32 s66, s66, s{sB3}
    s_lshl_b32 s66, s66, 10
    s_add_u32 s{sOS}, s66, {O_OFF}
    s_cmp_eq_u32 s{sPAR}, 0
    s_cselect_b32 s67, 2048, 8
    s_add_u32 s{sOS+1}, s67, s{sOS}
    s_lshl_b32 s4, s{sH}, 5
    s_add_u32 s4, s4, s{sBLK}
    s_lshl_b32 s4, s4, 7
    s_add_u32 s4, s4, {F2_OFF}
    s_mov_b32 s61, 0
    v_add_u32 v170, 4096, v{vKV}
    v_lshrrev_b32 v171, 4, v1
    v_mov_b32 v172, -1
    v_mov_b32 v173, -1
    v_mov_b32 v174, -1
    v_mov_b32 v175, -1
    s_add_u32 s76, s4, {F0_OFF - F2_OFF}
    """)

    def wfrag(kind, st):
        base = sW2S if kind == "w2" else sWOS
        def p(k): a.I(f"s_add_u32 s{sT1}, s{base}, {st*40*1024 + 4096*k}")
        def f(i):
            fl, r = w2reg(st, i) if kind == "w2" else ("v", worege(st, i))
            a.I(f"buffer_load_dwordx4 {vr(r,4,fl)}, v{vKV if i < 4 else 170}, {srd(sWS)}, s{sT1} offen offset:{1024*(i%4)} sc1")
        return [(lambda: p(0), lambda: (f(0), f(1))), (None, lambda: (f(2), f(3))), (None, lambda: f(4))]
    g.wfrag = wfrag
    wq = [wfrag("w2", st) for st in range(14)] + [wfrag("wo", st) for st in range(3)] + [w1f_dma(g, sub, vKV) for sub in range(3)]
    g.poll([30], 2)
    g.stamp()

    kv_last = {}
    def kv_dma(c):
        def p0():
            a.I(f"s_add_u32 m0, s{sKVD}, {(c % NSLOT) * SLOT}")
            a.I(f"s_xor_b32 s{sT0}, s{sKVS}, {c << 19}")
        def f(i):
            kv_last[c] = a.I(f"buffer_load_dwordx4 v{vKV+i}, {srd(sWS)}, s{sT0} offen offset:{1024*i} sc1 lds")
        return [(p0, lambda: (f(0), f(1))), (None, lambda: f(2))]
    run(kv_dma(0))
    for t in range(2):
        a.I(f"buffer_load_dwordx4 {vr(Q+8*t,4)}, v{vQ0}, {srd(sWS)}, s{sQS} offen offset:{512*t} sc1")
        a.I(f"buffer_load_dwordx4 {vr(Q+8*t+4,4)}, v31, {srd(sWS)}, s{sQS} offen offset:{512*t} sc1")
    run(kv_dma(1))
    a.M(f"""
    s_cmp_eq_u32 s{sPAR}, 0
    s_cselect_b32 s62, -1, 0
    s_cselect_b32 s64, 0, -1
    s_mov_b32 s63, 0
    s_mov_b32 s65, 0
    """)
    for t in range(2):
        for k in range(4):
            m = "s[62:63]" if k < 2 else "s[64:65]"
            a.I(f"v_cndmask_b32 v{Q+8*t+4+k}, 0, v{Q+8*t+4+k}, {m}")
    a.wait_vm(kv_last[0])
    a.I("s_waitcnt lgkmcnt(0)")
    a.I("s_barrier")

    def koff(i):
        c, t = divmod(i, 4)
        return (c % NSLOT) * SLOT + (t >> 1) * 7168 + (t & 1) * 512
    def kread(i):
        b = KB + 8 * (i & 1)
        return [lambda: a.I(f"ds_read_b128 {vr(b,4)}, v{vK0} offset:{koff(i)}"),
                lambda: a.I(f"ds_read_b128 {vr(b+4,4)}, v{vK1} offset:{koff(i)}")]
    def vread(i):
        b = VB + 8 * (i & 1)
        return [lambda j=j, rd=rd: a.I(f"ds_read_b64_tr_b16 {vr(b+4*j+2*rd,2)}, v{vV+rd} offset:{koff(i)+256*j}")
                for j in range(2) for rd in range(2)]
    def qk(t, i):
        b = KB + 8 * (i & 1); s = S + 16 * t; q = Q + 8 * t
        return [f"v_mfma_f32_32x32x16_bf16 {vr(s,16)}, {vr(b,4)}, {vr(q,4)}, 0",
                f"v_mfma_f32_32x32x16_bf16 {vr(s,16)}, {vr(b+4,4)}, {vr(q+4,4)}, {vr(s,16)}"]
    def pv(t, i):
        b = VB + 8 * (i & 1); o = O + 16 * t; p = P + 8 * t
        c0 = "0" if i == 0 else vr(o, 16)
        return [f"v_mfma_f32_32x32x16_bf16 {vr(o,16)}, {vr(b,4)}, {vr(p,4)}, {c0}",
                f"v_mfma_f32_32x32x16_bf16 {vr(o,16)}, {vr(b+4,4)}, {vr(p+4,4)}, {vr(o,16)}"]

    for it in kread(0) + kread(1) + vread(0): it()
    for t in range(2):
        for m in qk(t, 0): a.I(m)
    a.I("s_mov_b32 s62, 0")
    a.I("s_mov_b32 s63, -1")
    for t in range(2):
        s = S + 16 * t
        a.I(f"v_max3_f32 v{2+t}, v{s}, v{s+1}, v{s+2}")
        for k in range(3, 15, 2):
            a.I(f"v_max3_f32 v{2+t}, v{2+t}, v{s+k}, v{s+k+1}")
        a.I(f"v_max_f32 v{2+t}, v{2+t}, v{s+15}")
        a.I(f"v_mov_b32 v{4+t}, v{2+t}")
        a.I(f"v_permlane32_swap_b32 v{2+t}, v{4+t}")
        a.I(f"v_max_f32 v{2+t}, v{2+t}, v{4+t}")
        a.I(f"v_cvt_pk_bf16_f32 v{2+t}, -v{2+t}, 0")
        a.I(f"v_cndmask_b32 v{Q+8*t+4}, v{Q+8*t+4}, v{2+t}, s[62:63]")
        if t == 0:
            for m in qk(0, 0): a.I(m)

    lastfill = [None]
    extra = []
    def half(t, mf, fill):
        s = S + 16 * t; p = P + 8 * t
        mf = list(mf); fill = list(fill)
        for q in range(4):
            item = extra.pop(0) if extra else None
            if item and item[0]: item[0]()
            if mf:
                a.I(mf.pop(0))
            if item: item[1]()
            if fill: lastfill[0] = fill.pop(0)()
            for k in range(4):
                a.I(f"v_exp_f32 v{s+4*q+k}, v{s+4*q+k}")
            if q > 0:
                for k in range(2):
                    a.I(f"v_cvt_pk_bf16_f32 v{p+2*(q-1)+k}, v{s+4*(q-1)+2*k}, v{s+4*(q-1)+2*k+1}")
        assert not fill and not mf
        for k in range(2):
            a.I(f"v_cvt_pk_bf16_f32 v{p+6+k}, v{s+12+2*k}, v{s+12+2*k+1}")

    g.stamp()
    nop = (None, lambda: None)
    SP = g.opt.get("spread", 1)
    def spaced(items):
        GR = g.opt.get("grp", 0)
        if GR:
            return [(items[0][0], lambda: run([(None, items[0][1])] + items[1:]))] + [nop] * GR
        out = []
        for it in items:
            if g.opt.get("single"):
                a.capture = []
                it[1]()
                cap, a.capture = a.capture, None
                if len(cap) == 2 and not any("lds" in x and "s56" in x for x in cap):
                    out += [(it[0], lambda x=cap[0]: a.I(x))] + [nop] * (SP // 2) + [(None, lambda x=cap[1]: a.I(x))] + [nop] * ((SP - 1) // 2)
                    continue
            out += [it] + [nop] * SP
        return out
    IL, IC = g.opt.get("il", 0), g.opt.get("ic", 2)
    def ld15(va): return [(None, lambda: a.I(f"buffer_load_dword v15, v{va}, {srd(sWS)}, 0 offen sc1"))]
    extra += ld15(19)
    for k in range(0, 8, 2): extra += [(None, lambda k=k: (g.rp[0][k](), g.rp[0][k+1]())), nop]
    extra += [(None, lambda: g.xg_publish(2))]
    SO3 = g.opt.get("so3", 1)
    def fill_o():
        a.I(f"buffer_store_dwordx4 v[172:175], v{vQ0}, {srd(sWS)}, s{sOS} offen sc1")
        a.I(f"buffer_store_dwordx4 v[172:175], v{vQ0}, {srd(sWS)}, s{sOS} offen offset:512 sc1")
        a.I(f"buffer_store_dwordx2 v[172:173], v{vKV}, {srd(sWS)}, s{sOS+1} offen sc1")
    if SO3: extra += [(None, fill_o)]
    def thin(k):
        m = ((1 << 14) - 1) << (14 * k) if k < 4 else (1 << 31) - 1
        a.I(f"s_mov_b32 exec_lo, {hex(m & 0xffffffff)}")
        a.I(f"s_mov_b32 exec_hi, {hex(m >> 32)}")
        a.I(f"buffer_load_dword v{6+k}, v{22 if k < 4 else 23}, {srd(sWS)}, 0 offen sc1")
        a.I("s_mov_b64 exec, -1")
    WN = {6: 5, 8: 4, 10: 4, 12: 4, 14: 3}
    half(0, qk(1, 0), [])
    for i in range(64):
        if i == 2 or ((i + 2) % 8 == 0 and i + 2 < 64):
            c = (i + 2) // 4
            while extra and extra[0] is nop: extra.pop(0)
            assert not extra, len(extra)
            a.wait_vm(kv_last[c if c == 1 else c + 1])
            a.I("s_barrier")
            if g.opt.get("att"): g.stamp()
            if c == 2:
                for k in range(8): extra += [(lambda k=k: a.I(f"v_xor_b32 v2, {32*k}, v254"), g.rp[2][k])]
                extra += [nop, nop]
                for k in range(0, 8, 2): extra += [(None, lambda k=k: (g.rp[3][k](), g.rp[3][k+1]())), nop, nop]
                extra += [(lambda: [a.I(f"v_mov_b32 v{172+k}, 0x3f803f80") for k in range(4)], lambda: None)]
                for k in range(8):
                    extra += [(lambda k=k: a.I(f"v_mfma_f32_16x16x32_bf16 {vr(176+4*k,4)}, v[172:175], {vr(208+4*k,4)}, 0"), lambda: None)]
                def pick():
                    for q in range(1, 4):
                        a.I(f"v_cmp_eq_u32 vcc, {q}, v171")
                        a.I(f"v_lshlrev_b32 v2, 2, v1" if q == 1 else "s_nop 0")
                        for hh in range(2):
                            a.I(f"v_cndmask_b32 v{176+16*hh}, v{176+16*hh}, v{176+16*hh+4*q}, vcc")
                extra += [nop, (pick, lambda: [a.I(f"buffer_store_dword v{176+16*hh}, v2, {srd(sWS)}, s90 offen offset:{256*hh} sc1") for hh in range(2)])]
            if c == 4:
                g.signal(101, 2)
                if SO3: g.signal(76, 2)
            if c == 6: g.check_flags(15, 29)
            if c == 10: extra += ld15(20)
            if c == 12: g.xg_mode(15)
            if c > 1 and c + 2 < 16: extra += spaced(kv_dma(c + 2) + kv_dma(c + 3)) if g.opt.get('kvg', 1) else spaced(kv_dma(c + 2)) + spaced(kv_dma(c + 3))
            if c == 4:
                extra += spaced([(None, lambda f=f: a.I(f"buffer_load_dwordx2 {vr(vXR+2*f,2)}, v14, {srd(sX)}, 0 offen offset:{32*f}")) for f in range(5)])
                extra += [nop] * (48 - len(extra)) + ld15(29)
            for _ in range(WN.get(c, 0)): extra += spaced(wq.pop(0))
            if 4 <= c <= 12 and g.opt.get("pt", 1): extra += [(None, lambda k=(c - 4) // 2: thin(k))]
            if g.opt.get("ctouch", 1) and c in (1, 8):
                def ct():
                    sk = g.lab("ct")
                    a.I(f"s_cmp_lg_u32 s{sWAVE}, 0")
                    a.I(f"s_cbranch_scc1 {sk}")
                    a.I("s_mov_b64 exec, 0xfffff")
                    a.raw("    global_load_dword v12, v11, s[92:93]")
                    a.I("s_mov_b64 exec, -1")
                    a.label(sk)
                extra += [(None, ct)]
            if g.opt.get("even") and c > 4:
                items = [x for x in extra if x is not nop]
                slots = 60 if c < 14 else 48
                extra[:] = []
                for k, x in enumerate(items):
                    while len(extra) < k * slots // len(items): extra.append(nop)
                    extra.append(x)
        if i == IC:
            g.check_flags(15, 19)
            if g.opt.get("att"): g.stamp()
            extra += spaced(kv_dma(2) + kv_dma(3))
        kr = kread(i + 2) if i + 2 < 64 else []
        vrd = vread(i + 1) if i + 1 < 64 else []
        mfb = (qk(0, i + 1) if i + 1 < 64 else []) + pv(0, i)
        if lastfill[0] is not None: a.wait_lg(lastfill[0])
        fl = kr + vrd
        half(1, mfb, fl[:4])
        if i + 1 < 64:
            half(0, qk(1, i + 1) + pv(1, i), fl[4:])
    assert not wq
    run(extra)
    g.stamp()
    for m in pv(1, 63): a.I(m)
    slow, back = "L_slow", "L_slow_back"
    a.label(back)
    a.I(f"s_mov_b32 s66, {hex(f2u(2.0**100))}")
    a.I(f"s_mov_b32 s67, {hex(f2u(2.0**-30))}")
    X = S + 16
    for t in range(2):
        o = O + 16 * t; p = S + 8 * t
        a.I(f"v_rcp_f32 v{2+2*t}, v{o+12}")
        a.I(f"v_cmp_nge_f32 s[{62+2*t}:{63+2*t}], v{o+12}, s67")
        for k in range(0, 12, 2):
            a.I(f"v_pk_mul_f32 {vr(o+k,2)}, {vr(o+k,2)}, {vr(2+2*t,2)} op_sel:[0,0] op_sel_hi:[1,0]")
        for k in range(6):
            a.I(f"v_cvt_pk_bf16_f32 v{p+k}, v{o+2*k}, v{o+2*k+1}")
        for k in range(3):
            a.I(f"v_pk_add_f32 {vr(o+4*k,2)}, {vr(o+4*k,2)}, {vr(o+4*k+2,2)}")
        a.I(f"v_permlane32_swap_b32 v{p}, v{p+2}")
        a.I(f"v_permlane32_swap_b32 v{p+1}, v{p+3}")
        a.I(f"v_pk_add_f32 {vr(o,2)}, {vr(o,2)}, {vr(o+4,2)}")
        a.I(f"v_pk_add_f32 {vr(o,2)}, {vr(o,2)}, {vr(o+8,2)}")
        a.I(f"v_add_f32 v{o}, v{o}, v{o+1}")
        a.I(f"v_fma_f32 v{o}, v{o}, 0, v{o+12}")
        if t == 0:
            a.I(f"v_cmp_nle_f32 vcc, v{o}, s66")
            a.I("s_or_b64 s[62:63], s[62:63], vcc")
    a.M(f"""
    v_cmp_nle_f32 vcc, v{O+16}, s66
    s_or_b64 s[62:63], s[62:63], s[64:65]
    v_permlane32_swap_b32 v{S+4}, v{S+12}
    v_permlane32_swap_b32 v{S+5}, v{S+13}
    s_or_b64 vcc, vcc, s[62:63]
    s_cbranch_scc1 {slow}
    """)
    a.label("L_slow_done")
    a.M(f"""
    buffer_store_dwordx4 {vr(S,4)}, v{vQ0}, {srd(sWS)}, s{sOS} offen sc1
    buffer_store_dwordx4 {vr(S+8,4)}, v{vQ0}, {srd(sWS)}, s{sOS} offen offset:512 sc1
    buffer_store_dwordx2 {vr(S+4,2)}, v{vKV}, {srd(sWS)}, s{sOS+1} offen sc1
    """)
    g.stamp()
    g.slow_args = dict(Q=Q, KB=KB, VB=VB, P=P, S=S, O=O, vK0=vQ0, vV=vV, vKV=vKV)

def slow_path(g, scratch=None):
    a = g.a
    A = g.slow_args
    Q, KB, VB, P, S, O, vK0, vV = A["Q"], A["KB"], A["VB"], A["P"], A["S"], A["O"], A["vK0"], A["vV"]
    a.vm = []; a.lg = []; a.hist = []
    a.label("L_slow")
    a.M(f"""
    s_cmp_lg_u32 s61, 0
    s_cbranch_scc1 L_slow_done
    s_waitcnt vmcnt(0) lgkmcnt(0)
    s_mov_b32 s61, 1
    s_mov_b32 s62, 0
    s_mov_b32 s63, -1
    s_add_u32 s64, s{sB3}, 80
    s_lshl_b32 s64, s64, 10
    v_mov_b32 v6, 0x3f803f80
    v_mov_b32 v2, 0xff800000
    v_mov_b32 v3, 0xff800000
    """)
    for t in range(2):
        for k in range(2):
            a.I(f"v_cndmask_b32 v{Q+8*t+4+k}, v{Q+8*t+4+k}, 0, s[62:63]")
    def load_k(off):
        a.I(f"buffer_load_dwordx4 {vr(KB,4)}, v{vK0}, {srd(sWS)}, s65 offen offset:{off} sc1")
        a.I(f"buffer_load_dwordx4 {vr(KB+4,4)}, v31, {srd(sWS)}, s65 offen offset:{off} sc1")
        for k in range(4):
            a.I(f"v_cndmask_b32 v{KB+4+k}, v{KB+4+k}, v6, s[62:63]")
        for t in range(2):
            s = S + 16 * t; q = Q + 8 * t
            a.I(f"v_mfma_f32_32x32x16_bf16 {vr(s,16)}, {vr(KB,4)}, {vr(q,4)}, 0")
            a.I(f"v_mfma_f32_32x32x16_bf16 {vr(s,16)}, {vr(KB+4,4)}, {vr(q+4,4)}, {vr(s,16)}")
    a.I("s_mov_b32 s66, 0")
    a.fence()
    a.label("L_slow1")
    a.I(f"s_mul_i32 s65, s66, {256*1024}")
    a.I("s_add_u32 s65, s65, s64")
    for tile in range(2):
        load_k(512 * tile)
        for t in range(2):
            s = S + 16 * t
            for k in range(0, 16, 2):
                a.I(f"v_max3_f32 v{2+t}, v{2+t}, v{s+k}, v{s+k+1}")
    a.M("""
    s_add_u32 s66, s66, 1
    s_cmp_lt_u32 s66, 32
    """)
    a.fence()
    a.I("s_cbranch_scc1 L_slow1")
    for t in range(2):
        a.M(f"""
        v_mov_b32 v4, v{2+t}
        v_permlane32_swap_b32 v{2+t}, v4
        v_max_f32 v{2+t}, v{2+t}, v4
        v_and_b32 v4, 0xffff0000, v{2+t}
        v_sub_f32 v5, v{2+t}, v4
        v_and_b32 v7, 0xffff0000, v5
        v_sub_f32 v5, v5, v7
        v_cvt_pk_bf16_f32 v4, -v4, -v7
        v_cvt_pk_bf16_f32 v5, -v5, 0
        v_cndmask_b32 v{Q+8*t+4}, v{Q+8*t+4}, v4, s[62:63]
        v_cndmask_b32 v{Q+8*t+5}, v{Q+8*t+5}, v5, s[62:63]
        """)
    if scratch is None: a.I("s_mov_b32 s67, s7")
    else:
        a.I(f"s_lshl_b32 s67, s{sWAVE}, 12")
        a.I(f"s_add_u32 s67, s67, {scratch}")
    a.M(f"""
    v_lshl_add_u32 v8, v1, 4, s67
    v_mov_b32 v{P}, 0x3f80
    v_mov_b32 v{P+1}, 0
    v_mov_b32 v{P+2}, 0
    v_mov_b32 v{P+3}, 0
    ds_write_b128 v8, {vr(P,4)} offset:3072
    v_lshlrev_b32 v9, 4, v1
    v_xor_b32 v10, 64, v9
    v_xor_b32 v11, 128, v9
    s_sub_u32 s66, s67, {RING+3072}
    v_add_u32 v12, s66, v{vV}
    v_add_u32 v13, s66, v{vV+1}
    s_mov_b32 m0, s67
    """)
    for r in range(32):
        a.I(f"v_mov_b32 v{O+r}, 0")
    a.I("s_mov_b32 s66, 0")
    a.drain(); a.fence()
    a.label("L_slow2")
    a.I(f"s_mul_i32 s65, s66, {256*1024}")
    a.I("s_add_u32 s65, s65, s64")
    a.I(f"s_add_u32 s67, s65, {80*1024}")
    for i in range(3):
        a.I(f"buffer_load_dwordx4 v{9+i}, {srd(sWS)}, s67 offen offset:{1024*i} sc1 lds")
    for tile in range(2):
        load_k(512 * tile)
        a.I("s_waitcnt vmcnt(0)")
        for j in range(2):
            for rd in range(2):
                a.I(f"ds_read_b64_tr_b16 {vr(VB+4*j+2*rd,2)}, v{12+rd} offset:{512*tile+256*j}")
        for t in range(2):
            s = S + 16 * t; p = P + 8 * t; o = O + 16 * t
            for k in range(16):
                a.I(f"v_exp_f32 v{s+k}, v{s+k}")
            for k in range(8):
                a.I(f"v_cvt_pk_bf16_f32 v{p+k}, v{s+2*k}, v{s+2*k+1}")
            a.I(f"v_mfma_f32_32x32x16_bf16 {vr(o,16)}, {vr(VB,4)}, {vr(p,4)}, {vr(o,16)}")
            a.I(f"v_mfma_f32_32x32x16_bf16 {vr(o,16)}, {vr(VB+4,4)}, {vr(p+4,4)}, {vr(o,16)}")
    a.M("""
    s_add_u32 s66, s66, 1
    s_cmp_lt_u32 s66, 32
    """)
    a.drain(); a.fence()
    a.I("s_cbranch_scc1 L_slow2")
    if scratch is None: run(w1f_dma(g, 0, A["vKV"]))
    a.drain(); a.fence()
    a.I("s_branch L_slow_back")

def rg_ops(r, t):
    return [f"v_mov_b32 v{t}, v{r}", f"v_permlane16_swap_b32 v{r}, v{t}", f"v_add_f32 v{r}, v{r}, v{t}",
            f"v_mov_b32 v{t}, v{r}", f"v_permlane32_swap_b32 v{r}, v{t}", f"v_add_f32 v{r}, v{r}, v{t}"]

def rg_reduce(g, r, t):
    for x in rg_ops(r, t): g.a.I(x)

vCK, vFL, vFA = 2, 3, 30

def max_ops(regs):
    regs = list(regs)
    if len(regs) == 1: return [], regs[0]
    ops = []
    cur = regs.pop(0)
    while regs:
        if len(regs) >= 2:
            ops.append(f"v_max3_u32 v{vCK}, v{cur}, v{regs[0]}, v{regs[1]}"); regs = regs[2:]
        else:
            ops.append(f"v_max_u32 v{vCK}, v{cur}, v{regs[0]}"); regs = regs[1:]
        cur = vCK
    return ops, vCK

def check_data(g, regs, reload):
    a = g.a
    slow, back, lp = g.lab("ck"), g.lab("ckb"), g.lab("ckl")
    ops, r = max_ops(regs)
    for x in ops: a.I(x)
    a.I(f"v_cmp_eq_u32 vcc, -1, v{r}")
    a.I(f"s_cbranch_vccnz {slow}")
    a.label(back)
    def stub():
        a.vm = []; a.lg = []; a.hist = []
        a.label(slow)
        a.I("s_mov_b32 s44, 0")
        a.I("s_mov_b32 s46, 0")
        a.label(lp)
        a.I(f"buffer_load_dword v{vFL}, v{vFA}, {srd(sWS)}, 0 offen sc1")
        reload()
        a.I("s_waitcnt vmcnt(0)")
        for x in ops: a.I(x)
        a.M(f"""
        v_cmp_eq_u32 vcc, -1, v{r}
        s_cbranch_vccz {back}
        s_cmp_lg_u32 s46, 0
        s_cbranch_scc1 {back}
        v_cmp_ne_u32 vcc, s{sNONCE}, v{vFL}
        s_add_u32 s44, s44, 1
        s_cmp_eq_u64 vcc, 0
        s_cselect_b32 s46, 1, 0
        s_cmp_gt_u32 s44, {SPIN_MAX}
        s_cbranch_scc0 {lp}
        s_branch {back}
        """)
    g.stubs.append(stub)

def ksplit_gemm(g, nst, wreg, load, areg, chk, nup, accs, cinit0, vRW, vRR, T, fillers, first_batch, bar_st):
    a = g.a
    total = 4 * nst
    first_batch()
    pendw = []
    fillers = list(fillers)
    late = []
    for u in range(4):
        acc = accs[u]
        for st in range(nst):
            n = u * nst + st
            if g.opt.get("fine5") == nst and (n == 1 or (st == 0 and u > 0) or (u == 3 and st in (bar_st, bar_st + 1))): g.stamp()
            if u == 3 and st == bar_st:
                assert not pendw
                a.I("s_waitcnt lgkmcnt(0)")
                a.I("s_barrier")
                late = [f"ds_read_b128 {vr(T+20*k+4*f,4)}, v{vRR} offset:{5120*k+1024*f}" for k in range(3) for f in range(5)]
                late += [None] * 4
                late += [f"v_add_f32 v{T+r}, v{T+r}, v{T+20+r}" for r in range(20)]
                late += [f"v_add_f32 v{T+r}, v{T+r}, v{T+40+r}" for r in range(20)]
            for f in range(5):
                fl, r = wreg(st, f)
                cc = "0" if (st == 0 and not (u == 0 and cinit0)) else vr(acc + 4*f, 4)
                a.I(f"v_mfma_f32_16x16x32_bf16 {vr(acc+4*f,4)}, {vr(r,4,fl)}, {vr(areg(n),4)}, {cc}")
                if chk and f == 3 and nup <= n + 1 < total:
                    check_data(g, chk(n + 1), lambda n=n: [load(k, True) for k in range(n + 1, min(n + 1 + nup, total))])
                last_loads = n + nup >= total
                if f == 0 and n + nup == total and nst == 14 and g.opt.get("wbl", 0): wb_l2(g)
                if f == 0 and not last_loads: load(n + nup, False)
                elif f == 4 and n + 1 < total and not late: pass
                elif pendw:
                    if (st >= 1 or nst <= 5 and f >= 3) and (f in (1, 3) or nst <= 5): pendw.pop(0)()
                elif late:
                    for _ in range(3 if nst - bar_st <= 4 else 2):
                        if late:
                            x = late.pop(0)
                            if x: a.I(x)
                elif fillers and n >= nup + 1:
                    a.I(fillers.pop(0))
        if u < 3:
            assert not pendw
            pendw = [lambda f=f, acc=acc, u=u: a.I(f"ds_write_b128 v{vRW+u}, {vr(acc+4*f,4)} offset:{1024*f}") for f in range(5)]
    for x in late + fillers:
        if x: a.I(x)

def red_addrs(g, vRW, vRR, vA):
    a = g.a
    a.M(f"""
    v_lshrrev_b32 v2, 4, v1
    v_and_b32 v3, 15, v1
    v_lshlrev_b32 v3, 4, v3
    v_lshl_add_u32 v3, v2, 10, v3
    """)
    for u in range(4):
        a.M(f"""
        s_add_u32 s66, s{sOWN}, {u+1}
        s_and_b32 s66, s66, 3
        s_lshl_b32 s67, s66, 8
        v_add_u32 v{vA+u}, s67, v3
        s_mul_i32 s66, s66, 15360
        s_add_u32 s66, s66, {RED + (5120*u if u < 3 else 0)}
        v_lshl_add_u32 v{vRW+u if u < 3 else vRR}, v1, 4, s66
        """)

def phase3(g):
    a = g.a
    AF = 92
    vRW, vRR, vA, vL = 8, 11, 12, 16
    accs = [32, AF, AF + 20, 32]
    SO3 = g.opt.get("so3", 1)
    ostore = a.vm[-1][0]
    WOL = g.opt.get("wol", 0) and SO3
    CP = 140
    a.M(f"""
    v_lshrrev_b32 v2, 3, v1
    v_mul_u32_u24 v3, 7168, v2
    v_and_b32 v4, 7, v1
    v_lshl_add_u32 v3, v4, 4, v3
    v_lshrrev_b32 v2, 5, v1
    v_lshl_add_u32 v4, v2, 30, v3
    s_mul_i32 s66, s5, 448
    s_mul_i32 s67, s{sWAVE}, 112
    s_add_u32 s66, s66, s67
    s_add_u32 s66, s66, {CS_OFF}
    s_add_u32 s67, s66, {8*7168}
    s_add_u32 s62, s66, {16*7168}
    buffer_load_dwordx4 {vr(CP,4)}, v3, {srd(sWS)}, s66 offen sc1
    buffer_load_dwordx4 {vr(CP+4,4)}, v3, {srd(sWS)}, s67 offen sc1
    buffer_load_dwordx4 {vr(CP+8,4)}, v4, {srd(sWS)}, s62 offen sc1
    """)
    if not WOL: run(g.wfrag("wo", 3) + g.wfrag("wo", 4))
    for r in range(10):
        a.I(f"v_lshlrev_b32 v{accs[0]+2*r}, 16, v{vXR+r}")
        a.I(f"v_and_b32 v{accs[0]+2*r+1}, 0xffff0000, v{vXR+r}")
    red_addrs(g, vRW, vRR, vA)
    a.M(f"""
    v_and_b32 v2, 7, v1
    s_lshl_b32 s66, s{sWAVE}, 3
    v_add_u32 v2, s66, v2
    v_lshl_add_u32 v2, v2, 5, s{sRB64}
    v_lshlrev_b32 v2, 7, v2
    v_add_u32 v{vFA}, {F2_OFF}, v2
    s_mul_i32 s62, s{sRB64}, 80
    s_mul_i32 s66, s{sWAVE}, 20
    s_add_u32 s62, s62, s66
    s_lshl_b32 s62, s62, 10
    s_add_u32 s62, s62, {O_OFF}
    s_add_u32 s63, s62, 4096
    s_add_u32 s64, s62, 8192
    s_add_u32 s65, s62, 12288
    s_add_u32 s58, s62, 16384
    """)
    so = [62, 63, 64, 65, 58]
    def load(n, retry):
        u, st = divmod(n, 5)
        a.I(f"buffer_load_dwordx4 {vr(AF+4*n,4)}, v{vA+u}, {srd(sWS)}, s{so[st]} offen sc1")
    NUP = g.opt.get("nb3", 8)
    chk = lambda n: [AF + 4*n, AF + 4*n + 2]
    def first():
        if not SO3:
            a.wait_vm(ostore)
            g.signal(4, 4)
            g.stamp()
            g.poll([vFA], 2)
            g.stamp()
        for n in range(NUP): load(n, False)
        bid = a.vm[-1][0]
        if WOL: run(g.wfrag("wo", 3) + g.wfrag("wo", 4))
        a.M(f"""
        s_lshl_b32 s66, s{sRB64}, 2
        s_add_u32 s66, s66, s{sOWN}
        s_lshl_b32 s66, s66, 4
        v_and_b32 v5, 15, v1
        v_add_u32 v24, s66, v5
        v_lshlrev_b32 v24, 6, v24
        v_bfe_u32 v2, v1, 4, 1
        v_lshrrev_b32 v3, 5, v1
        v_lshl_add_u32 v4, v2, 1, v3
        v_lshlrev_b32 v5, 4, v5
        v_lshl_add_u32 v25, v4, 10, v5
        v_lshl_add_u32 v5, v3, 10, v5
        v_lshl_add_u32 v26, v2, 3, v5
        s_mul_i32 s66, s{sRB64}, 80
        s_mul_i32 s67, s{sCB3}, 10
        s_add_u32 s66, s66, s67
        s_lshl_b32 s66, s66, 10
        s_lshl_b32 s67, s{sOWN}, 8
        s_add_u32 s66, s66, s67
        s_add_u32 s54, s66, {H_OFF}
        s_add_u32 s55, s54, 4096
        s_add_u32 s56, s54, 8192
        s_lshl_b32 s59, s{sCB3}, 3
        s_add_u32 s59, s59, {ST_OFF}
        v_mov_b32 v19, 0x3f803f80
        """)
        for e in range(4): a.I(f"v_add_f32 v{20+e}, v{CP+e}, v{CP+4+e}")
        for e in range(4): a.I(f"v_add_f32 v{20+e}, v{20+e}, v{CP+8+e}")
        for e in range(4): a.I(f"v_add_f32_dpp v{20+e}, v{20+e}, v{20+e} row_ror:8 row_mask:0xf bank_mask:0xf")
        for ops in zip(*[rg_ops(20+e, CP+e) for e in range(4)]):
            for x in ops: a.I(x)
        a.I("s_barrier")
        if SO3:
            a.wait_vm(bid)
            g.signal(4, 4)
            g.stamp()
            check_data(g, sum([chk(n) for n in range(NUP)], []), lambda: [load(n, True) for n in range(NUP)])
            g.stamp()
        a.M(f"""
        s_lshl_b32 s4, s{sRB64}, 3
        s_add_u32 s4, s4, s{sCB3}
        s_lshl_b32 s4, s4, 2
        s_add_u32 s4, s4, s{sOWN}
        s_lshl_b32 s4, s4, 7
        s_add_u32 s4, s4, {F3_OFF}
        """)
    T = AF
    ksplit_gemm(g, 5, lambda st, f: ("v", worege(st, f)), load, lambda n: AF + 4*n, chk if SO3 else None, NUP, accs, True,
                vRW, vRR, T, [], first, 2)
    R = accs[3]
    for r in range(0, 20, 2): a.I(f"v_pk_add_f32 {vr(R+r,2)}, {vr(R+r,2)}, {vr(T+r,2)}")
    for r in range(8): a.I(f"v_cvt_pk_bf16_f32 v{T+r}, v{R+2*r}, v{R+2*r+1}")
    for r in range(8, 10): a.I(f"v_cvt_pk_bf16_f32 v{vH+r}, v{R+2*r}, v{R+2*r+1}")
    for pr in range(2):
        a.I(f"v_permlane16_swap_b32 v{T+4*pr}, v{T+4*pr+2}")
        a.I(f"v_permlane16_swap_b32 v{T+4*pr+1}, v{T+4*pr+3}")
    def tail():
        a.M(f"""
        buffer_store_dwordx4 {vr(T,4)}, v25, {srd(sWS)}, s54 offen SCX
        buffer_store_dwordx4 {vr(T+4,4)}, v25, {srd(sWS)}, s55 offen SCX
        buffer_store_dwordx2 {vr(vH+8,2)}, v26, {srd(sWS)}, s56 offen SCX
        """)
        src = [T + r for r in range(8)] + [vH + 8, vH + 9]
        for i, r in enumerate(src):
            a.I(f"v_dot2_f32_bf16 v6, v{r}, v19, {'0' if i == 0 else 'v6'}")
            a.I(f"v_dot2_f32_bf16 v7, v{r}, v{r}, {'0' if i == 0 else 'v7'}")
        for x, y in zip(rg_ops(6, 2), rg_ops(7, 3)):
            a.I(x); a.I(y)
        a.M(f"""
        s_mov_b64 exec, 0xffff
        buffer_store_dwordx2 v[6:7], v24, {srd(sWS)}, s59 offen SCX
        s_mov_b64 exec, -1
        """)
    g.dual(tail)
    g.stamp()
    for r in range(8): a.I(f"v_cvt_pk_bf16_f32 v{vH+r}, v{R+2*r}, v{R+2*r+1}")
    if g.stop == 3:
        a.I("s_waitcnt vmcnt(0)")

def phase4(g):
    a = g.a
    sCB4 = 5
    ACC = 32
    WB = [88, 116]
    AF = 144
    NB = 9
    vTR, vA, vCSA = 24, 27, 28
    a.M(f"""
    s_lshr_b32 s66, s{sJ}, 4
    s_lshl_b32 s62, s{sXCD}, 1
    s_add_u32 s62, s62, s66
    s_lshl_b32 s63, s62, 1
    s_lshr_b32 s66, s{sWAVE}, 1
    s_add_u32 s63, s63, s66
    s_and_b32 s64, s{sWAVE}, 1
    v_lshrrev_b32 v2, 4, v1
    v_and_b32 v3, 15, v1
    v_lshlrev_b32 v4, 4, v3
    v_lshl_add_u32 v{vA}, v2, 10, v4
    v_lshlrev_b32 v{vCSA}, 4, v2
    v_lshl_add_u32 v29, v3, 6, v{vCSA}
    s_mul_i32 s65, s63, 80
    s_lshl_b32 s65, s65, 10
    s_lshl_b32 s66, s64, 9
    s_add_u32 s65, s65, s66
    s_add_u32 s65, s65, {H_OFF}
    s_lshl_b32 s58, s63, 6
    s_lshl_b32 s67, s64, 5
    s_add_u32 s58, s58, s67
    s_lshl_b32 s58, s58, 6
    s_add_u32 s58, s58, {ST_OFF}
    """)
    for st in range(20): a.I(f"s_add_u32 s{70+st}, s65, {4096*st}")
    def load(st, tus=(0, 1)):
        r = AF + 8 * (st % NB)
        for tu in tus:
            a.I(f"buffer_load_dwordx4 {vr(r+4*tu,4)}, v{vA}, {srd(sWS)}, s{70+st} offen offset:{256*tu} sc1")
    def chk(st):
        r = AF + 8 * (st % NB)
        return [r, r + 2, r + 4, r + 6]
    NU4 = g.opt.get("nb4", 4)
    def batch():
        for st in range(NU4): load(st)
        for tu in range(2):
            a.I(f"buffer_load_dwordx4 {vr(8+4*tu,4)}, v29, {srd(sWS)}, s58 offen offset:{1024*tu} sc1")
    a.M(f"""
    v_and_b32 v2, 7, v1
    s_lshl_b32 s66, s63, 3
    v_add_u32 v2, s66, v2
    v_bfe_u32 v3, v1, 3, 1
    v_lshl_add_u32 v2, v2, 2, v3
    s_lshl_b32 s66, s64, 1
    v_add_u32 v2, s66, v2
    v_lshlrev_b32 v2, 7, v2
    v_add_u32 v{vFA}, {F3_OFF}, v2
    s_waitcnt vmcnt(0)
    """)
    g.dual(lambda: g.signal(4, 4, "SCX"))
    g.stamp()
    a.I("s_barrier")
    a.M(f"""
    s_mul_i32 s66, s{sWAVE}, 112
    s_add_u32 s66, s66, 143360
    v_lshl_add_u32 v6, v1, 4, s66
    v_add_u32 v{vCSA}, 143360, v{vCSA}
    s_mov_b64 exec, 0x7f
    ds_write_b128 v6, v[20:23]
    s_mov_b64 exec, -1
    """)
    W1PRE = g.opt.get("w1pre", 0)
    if W1PRE >= 1: run(w1f_dma(g, 3, 16))
    if W1PRE >= 2: run(w1f_dma(g, 4, 16))
    g.poll([vFA], 2)
    g.stamp()
    batch()
    a.M(f"""
    v_lshlrev_b32 v{vTR}, 4, v1
    v_add_u32 v{vTR+1}, {8*7168}, v{vTR}
    v_add_u32 v{vTR+2}, {16*7168}, v{vTR}
    v_and_b32 v31, 31, v1
    v_lshlrev_b32 v31, 4, v31
    v_lshrrev_b32 v3, 5, v1
    v_lshl_add_u32 v31, v3, 10, v31
    s_mul_i32 s54, s63, 216
    s_mul_i32 s66, s{sCB4}, 14
    s_add_u32 s54, s54, s66
    s_lshl_b32 s54, s54, 10
    s_lshl_b32 s66, s64, 9
    s_add_u32 s54, s54, s66
    s_add_u32 s54, s54, {H1_OFF}
    """)
    def wreads(st):
        b = WB[st & 1]
        return [lambda f=f: a.I(f"ds_read_b128 {vr(b+4*f,4)}, v{vTR+st//8} offset:{(st%8)*7168+f*1024}") for f in range(7)]
    ids = [it() for it in wreads(0)]
    if g.opt.get("wb", 0): wb_l2(g)
    w1q = (w1f_dma(g, 3, 16) if W1PRE < 1 else []) + (w1f_dma(g, 4, 16) if W1PRE < 2 else [])
    a.M(f"""
    s_lshl_b32 s4, s62, 4
    s_add_u32 s4, s4, s{sCB4}
    s_lshl_b32 s4, s4, 2
    s_add_u32 s4, s4, s{sWAVE}
    s_lshl_b32 s4, s4, 7
    s_add_u32 s4, s4, {F4_OFF}
    """)
    fill = []
    for tu in range(2):
        m = 8 + 4*tu
        fill += [f"v_add_f32 v{m}, v{m}, v{m+2}"] + rg_ops(m, m + 1) + [f"v_mul_f32 v{m}, {hex(f2u(-1.0/640))}, v{m}",
                 f"v_cvt_pk_bf16_f32 v{m}, v{m}, v{m}", f"v_and_b32 v{m}, 0xffff0000, v{m}"]
    CS = AF + 8 * (20 % NB)
    assert NU4 == 4
    csq = [f"ds_read_b128 {vr(CS+4*f,4)}, v{vCSA} offset:{64*f}" for f in range(7)]
    a.capture = []
    run(w1q)
    cap, a.capture = a.capture, None
    w1q = []
    pre = []
    for x in cap:
        if x.startswith("s_"): pre.append(x)
        else:
            if pre: w1q.append(lambda pre=pre: [a.I(y) for y in pre])
            pre = []
            w1q.append(lambda x=x: a.I(x))
    for st in range(20):
        if g.opt.get("fine4") and st in (1, 5, 10, 11, 12, 16): g.stamp()
        if st == 11:
            assert not w1q
            if W1PRE < 2: a.wait_vm(w1id)
            a.I("s_barrier")
        rd = wreads(st + 1) if st + 1 < 20 else []
        b = WB[st & 1]; r = AF + 8 * (st % NB)
        prev, ids = ids, []
        for f in range(7):
            if f == 0: a.wait_lg(prev[6])
            for tu in range(2):
                d = ACC + 8 * f + 4 * tu
                cc = "0" if st == 0 else vr(d, 4)
                a.I(f"v_mfma_f32_16x16x32_bf16 {vr(d,4)}, {vr(b+4*f,4)}, {vr(r+4*tu,4)}, {cc}")
                k = 2 * f + tu
                if k in (1, 8):
                    if st + NU4 < 20: load(st + NU4, (k // 8,))
                    elif csq: a.I(csq.pop(0))
                elif rd and k >= 2: ids.append(rd.pop(0)())
                elif k in (10, 12) and w1q:
                    w1q.pop(0)()
                    w1id = a.vm[-1][0]
                elif fill and 10 <= k < 13: a.I(fill.pop(0))
    assert not fill and not csq
    g.stamp()
    a.I("s_waitcnt lgkmcnt(0)")
    P = WB[0]
    def epi():
        skip = g.lab("h1")
        for f in range(7):
            if f == 3:
                a.I(f"s_cmp_eq_u32 s{sCB4}, 15")
                a.I(f"s_cbranch_scc1 {skip}")
            for tu in range(2):
                d = ACC + 8 * f + 4 * tu
                for e in range(0, 4, 2):
                    a.I(f"v_pk_fma_f32 {vr(d+e,2)}, {vr(CS+4*f+e,2)}, {vr(8+4*tu,2)}, {vr(d+e,2)} op_sel:[0,0,0] op_sel_hi:[1,0,1]")
            for tu in range(2):
                d = ACC + 8 * f + 4 * tu
                for k in range(2):
                    a.I(f"v_cvt_pk_bf16_f32 v{P+4*f+2*tu+k}, v{d+2*k}, v{d+2*k+1}")
            for k in (0, 2, 1, 3):
                a.I(f"v_pk_max_i16 v{P+4*f+k}, v{P+4*f+k}, 0")
            if f % 2 == 0 and f > 0: a.I("s_add_u32 s54, s54, 4096")
            a.I(f"v_permlane16_swap_b32 v{P+4*f}, v{P+4*f+2}")
            a.I(f"v_permlane16_swap_b32 v{P+4*f+1}, v{P+4*f+3}")
            a.I(f"buffer_store_dwordx4 {vr(P+4*f,4)}, v31, {srd(sWS)}, s54 offen offset:{2048*(f%2)} SCX")
        a.fence()
        a.label(skip)
    g.dual(epi)
    g.stamp()
    if g.stop == 4:
        a.I("s_waitcnt vmcnt(0)")

def phase5(g):
    a = g.a
    vRW, vRR, vA = 8, 11, 12
    NUP = g.opt.get('nb5', 8)
    AF, NB, T, HU = 32, NUP + 1, 96, 156
    accs = [176, 196, 176, 196]
    assert AF + 4 * NB <= T
    red_addrs(g, vRW, vRR, vA)
    a.M(f"""
    s_mul_i32 s62, s{sRB64}, 216
    s_mul_i32 s66, s{sWAVE}, 56
    s_add_u32 s63, s62, 212
    s_lshl_b32 s65, s62, 10
    s_add_u32 s65, s65, {H1_OFF}
    s_add_u32 s62, s62, s66
    s_lshl_b32 s62, s62, 10
    s_add_u32 s62, s62, {H1_OFF}
    s_lshl_b32 s63, s63, 10
    s_add_u32 s63, s63, {H1_OFF}
    s_lshl_b32 s66, s{sRB64}, 2
    s_add_u32 s66, s66, s{sOWN}
    s_lshl_b32 s66, s66, 4
    v_and_b32 v2, 15, v1
    v_add_u32 v24, s66, v2
    v_lshrrev_b32 v3, 4, v1
    v_lshlrev_b32 v4, 6, v24
    v_lshl_add_u32 v25, v3, 4, v4
    s_mov_b32 s58, {ST_OFF}
    """)
    def areg(n): return AF + 4 * (n % NB)
    def load(n, retry):
        u, st = divmod(n, 14)
        a.I(f"buffer_load_dwordx4 {vr(areg(n),4)}, v{vA+u}, {srd(sWS)}, s{70+st} offen sc1")
    for st in range(14):
        a.I(f"s_add_u32 s{70+st}, s62, {4096*st}")
        if st >= 12: a.I(f"s_min_u32 s{70+st}, s{70+st}, s63")
    def first():
        a.M(f"""
        v_and_b32 v2, 3, v1
        s_lshl_b32 s67, s{sWAVE}, 2
        s_lshr_b32 s66, s{sRB64}, 1
        s_lshl_b32 s66, s66, 4
        s_add_u32 s66, s66, s67
        v_add_u32 v2, s66, v2
        v_bfe_u32 v3, v1, 2, 1
        v_lshl_add_u32 v2, v2, 2, v3
        s_and_b32 s66, s{sRB64}, 1
        s_lshl_b32 s66, s66, 1
        v_add_u32 v2, s66, v2
        v_lshlrev_b32 v2, 7, v2
        v_add_u32 v{vFA}, {F4_OFF}, v2
        s_waitcnt vmcnt(0)
        """)
        g.dual(lambda: g.signal(4, 4, "SCX"))
        g.stamp()
        a.I("s_barrier")
        g.poll([vFA], 2)
        g.stamp()
        for n in range(NUP): load(n, False)
        a.I(f"buffer_load_dwordx4 v[16:19], v25, {srd(sWS)}, s58 offen sc1")
        if g.opt.get("wb", 0): wb_l2(g)
        a.M(f"""
        v_mul_u32_u24 v4, 1280, v24
        v_bfe_u32 v2, v1, 4, 1
        v_lshrrev_b32 v3, 5, v1
        v_lshl_add_u32 v5, v2, 1, v3
        v_lshl_add_u32 v27, v5, 4, v4
        v_lshrrev_b32 v6, 4, v1
        v_lshl_add_u32 v28, v6, 3, v4
        s_mul_i32 s59, s{sCB3}, 160
        """)
        for r in range(10):
            a.I(f"v_lshlrev_b32 v{HU+2*r}, 16, v{vH+r}")
            a.I(f"v_and_b32 v{HU+2*r+1}, 0xffff0000, v{vH+r}")
    k = hex(f2u(1.0/640))
    fill = ["v_add_f32 v16, v16, v18", "v_add_f32 v17, v17, v19"]
    for x, y in zip(rg_ops(16, 21), rg_ops(17, 22)): fill += [x, y]
    rnd = lambda r: [f"v_cvt_pk_bf16_f32 v{r}, v{r}, v{r}", f"v_and_b32 v{r}, 0xffff0000, v{r}"]
    fill += [f"v_mul_f32 v16, {k}, v16", f"v_mul_f32 v17, {k}, v17", "v_fma_f32 v17, -v16, v16, v17", "v_max_f32 v17, 0, v17"]
    fill += rnd(17) + [f"v_add_f32 v17, {hex(f2u(1e-5))}, v17"] + rnd(17) + ["v_sqrt_f32 v17, v17"] + rnd(17) + ["v_rcp_f32 v18, v17"]
    ksplit_gemm(g, 14, w2reg, load, areg, None, NUP, accs, False, vRW, vRR, T, fill, first, 5)
    g.stamp()
    R = accs[3]
    for r in range(0, 20, 2): a.I(f"v_pk_add_f32 {vr(R+r,2)}, {vr(R+r,2)}, {vr(T+r,2)}")
    for r in range(0, 20, 2):
        a.I(f"v_pk_fma_f32 {vr(HU+r,2)}, {vr(R+r,2)}, v[18:19], {vr(HU+r,2)} op_sel:[0,0,0] op_sel_hi:[1,0,1]")
    P = T + 20
    osc = ['', 'sc1', 'nt'][g.opt.get('osc', 0)]
    for r in range(10): a.I(f"v_cvt_pk_bf16_f32 v{P+r}, v{HU+2*r}, v{HU+2*r+1}")
    for pr in range(2):
        a.I(f"v_permlane16_swap_b32 v{P+4*pr}, v{P+4*pr+2}")
        a.I(f"v_permlane16_swap_b32 v{P+4*pr+1}, v{P+4*pr+3}")
    a.M(f"""
    buffer_store_dwordx4 {vr(P,4)}, v27, {srd(sOUT)}, s59 offen {osc}
    buffer_store_dwordx4 {vr(P+4,4)}, v27, {srd(sOUT)}, s59 offen offset:64 {osc}
    buffer_store_dwordx2 {vr(P+8,2)}, v28, {srd(sOUT)}, s59 offen offset:128 {osc}
    """)
    g.stamp()
```

```python
import sys
from asmlib import Asm, vr
import gen as G0
from gen import *
import gen2
from gen2 import (SLOT, NSLOT, RING, RED, sH, sQB, sPAR, sB3, sBLK, sCB3, sRB64, sW1S, sKVS, sQS, sT0, sT1, sKVD, sW2S, sWOS,
                  vXR, sOWN, sOS, vH, rg_ops, check_data, red_addrs, run, w1f_dma, repack_setup, vKV, vK0, vK1, vV, vQ0, vFA)

QST = 32768
WST = RING
SLOWS = RING + 2 * SLOT
KSL = 4
sRB, sCB, sKC = 70, 71, 72

class Gen4(Gen):
    def bar(self, name):
        self.a.I("s_barrier")
        self.bars.append(name)

    def reset(self):
        a = self.a
        a.vm = []; a.lg = []; a.hist = []

    def coords(self):
        self.a.M(f"""
        s_and_b32 s66, s{sXCD}, 1
        s_mul_i32 s66, s66, 30
        s_add_u32 s66, s66, s{sJ}
        s_lshr_b32 s{sCB}, s66, 2
        s_and_b32 s67, s66, 3
        s_add_u32 s{sKC}, s{sCB}, s67
        s_lshr_b32 s{sRB}, s{sXCD}, 1
        s_lshl_b32 s{sRB}, s{sRB}, 2
        s_add_u32 s{sRB}, s{sRB}, s67
        s_and_b32 s66, s{sXCD}, 1
        s_mul_i32 s66, s66, 7
        s_add_u32 s66, s66, s{sXCD}
        s_add_u32 s66, s66, s{sJ}
        s_sub_u32 s66, s66, 30
        s_cmp_ge_u32 s{sJ}, 30
        s_cselect_b32 s{sCB}, s66, s{sCB}
        """)

    def roles(self):
        self.a.M(f"""
        s_lshr_b32 s66, s{sJ}, 3
        s_lshl_b32 s{sRB64}, s{sXCD}, 2
        s_add_u32 s{sRB64}, s{sRB64}, s66
        s_mov_b32 s{sH}, s{sRB64}
        s_and_b32 s{sCB3}, s{sJ}, 7
        s_mov_b32 s{sQB}, s{sCB3}
        s_and_b32 s{sPAR}, s{sH}, 1
        s_lshr_b32 s66, s{sH}, 1
        s_mul_i32 s66, s66, 5
        s_lshl_b32 s67, s{sPAR}, 1
        s_add_u32 s{sB3}, s66, s67
        s_lshl_b32 s{sBLK}, s{sQB}, 2
        s_add_u32 s{sBLK}, s{sBLK}, s{sWAVE}
        s_and_b32 s5, s{sJ}, 15
        s_add_u32 s{sOWN}, s{sWAVE}, s{sCB3}
        s_and_b32 s{sOWN}, s{sOWN}, 3
        v_lshlrev_b32 v{vKV}, 4, v1
        v_and_b32 v2, 31, v1
        v_lshrrev_b32 v3, 5, v1
        v_lshlrev_b32 v2, 4, v2
        v_add_u32 v4, s{sPAR}, v3
        v_lshl_add_u32 v{vQ0}, v4, 10, v2
        s_mul_i32 s66, s{sBLK}, 80
        s_add_u32 s66, s66, s{sB3}
        s_lshl_b32 s66, s66, 10
        s_add_u32 s88, s66, {O_OFF}
        s_cmp_eq_u32 s{sPAR}, 0
        s_cselect_b32 s67, 2048, 8
        s_add_u32 s89, s67, s88
        s_lshl_b32 s4, s{sH}, 5
        s_add_u32 s4, s4, s{sBLK}
        s_lshl_b32 s4, s4, 7
        s_add_u32 s4, s4, {F2_OFF}
        """)

    def nonce_check(self, v, vz):
        a = self.a
        slow, back = self.lab("nz"), self.lab("nzb")
        a.I(f"v_readfirstlane_b32 s{sNONCE}, v{v}")
        a.I("s_nop 0")
        a.I(f"s_cmp_eq_u32 s{sNONCE}, 0")
        a.I(f"s_cbranch_scc1 {slow}")
        a.label(back)
        def stub():
            self.reset()
            lp = self.lab("nzl")
            a.label(slow)
            a.I("s_mov_b32 s44, 0")
            a.label(lp)
            a.M(f"""
            buffer_load_dword v{v}, v{vz}, {srd(sDBG)}, 0 offen sc1
            s_waitcnt vmcnt(0)
            v_readfirstlane_b32 s{sNONCE}, v{v}
            s_add_u32 s44, s44, 1
            s_cmp_gt_u32 s44, {SPIN_MAX}
            s_cbranch_scc1 {back}
            s_cmp_eq_u32 s{sNONCE}, 0
            s_cbranch_scc1 {lp}
            s_branch {back}
            """)
        self.stubs.append(stub)

    def c_phase1(self):
        a = self.a
        sWT, sWF = 75, 76
        vRX, vRW, vCS, ST = 168, 172, 36, 48
        ACC, XF, WF = 64, 128, 144
        a.M(f"""
        s_lshl_b32 s66, s{sXCD}, 5
        s_add_u32 s66, s66, s{sJ}
        s_lshl_b32 s66, s66, 2
        s_add_u32 s66, s66, s{sWAVE}
        s_lshl_b32 s66, s66, 1
        v_lshrrev_b32 v2, 5, v1
        v_add_u32 v182, s66, v2
        v_mul_u32_u24 v180, 1280, v182
        v_and_b32 v2, 31, v1
        v_lshl_add_u32 v180, v2, 4, v180
        v_bfe_u32 v2, v1, 4, 1
        v_lshl_add_u32 v181, v2, 30, v180
        v_lshlrev_b32 v182, 4, v182
        v_mov_b32 v34, 0
        s_lshr_b32 s{sWT}, s{sWAVE}, 1
        s_and_b32 s{sWF}, s{sWAVE}, 1
        v_and_b32 v2, 31, v1
        v_lshrrev_b32 v3, 5, v1
        v_bfe_u32 v4, v1, 1, 3
        v_xor_b32 v4, v4, v3
        v_lshlrev_b32 v4, 4, v4
        v_lshl_add_u32 v4, v2, 7, v4
        s_lshl_b32 s66, s{sWT}, 13
        v_add_u32 v{vRX}, s66, v4
        v_xor_b32 v{vRX+1}, 32, v{vRX}
        v_xor_b32 v{vRX+2}, 64, v{vRX}
        v_xor_b32 v{vRX+3}, 96, v{vRX}
        v_bfe_u32 v4, v1, 2, 2
        v_lshl_add_u32 v5, v3, 3, v4
        v_lshlrev_b32 v5, 8, v5
        s_lshl_b32 s66, s{sWF}, 1
        v_xor_b32 v4, s66, v4
        v_lshl_add_u32 v5, v4, 6, v5
        v_bfe_u32 v4, v1, 4, 1
        v_lshl_add_u32 v5, v4, 5, v5
        v_and_b32 v6, 3, v1
        v_lshl_add_u32 v5, v6, 3, v5
        v_add_u32 v{vRW}, 65536, v5
        v_xor_b32 v{vRW+1}, 64, v{vRW}
        v_lshlrev_b32 v33, 4, v2
        v_lshl_add_u32 v13, v3, 10, v33
        s_lshl_b32 s79, s{sRB}, 1
        s_add_u32 s79, s79, s{sWT}
        s_lshl_b32 s66, s79, 8
        s_lshl_b32 s67, s{sCB}, 4
        s_add_u32 s66, s66, s67
        s_lshl_b32 s67, s{sWF}, 3
        s_add_u32 s66, s66, s67
        s_lshl_b32 s78, s66, 10
        s_lshl_b32 s80, s79, 10
        s_add_u32 s80, s80, {S1_OFF}
        s_lshl_b32 s66, s{sCB}, 1
        s_add_u32 s66, s66, s{sWF}
        s_lshl_b32 s91, s66, 9
        s_add_u32 s91, s91, {CQ_OFF}
        s_lshl_b32 s66, s66, 5
        s_add_u32 s66, s66, s79
        s_lshl_b32 s66, s66, 7
        s_add_u32 s81, s66, {F1_OFF}
        s_add_u32 s79, s78, 4096
        s_cmp_lt_u32 s{sCB}, 5
        s_cselect_b32 s82, {hex(f2u(QSCALE))}, 1.0
        v_lshlrev_b32 v61, 3, v2
        """)
        self.prologue_finish()
        self.stamp()
        self.publish_nonce()
        def row_loads():
            for c in range(3):
                a.I(f"buffer_load_dwordx4 {vr(240+4*c,4)}, v{180 + (c == 2)}, {srd(sX)}, 0 offen offset:{512*c}")
        def stat_calc():
            a.I("v_mov_b32 v185, 0x3f803f80")
            for k in range(12):
                a.I(f"v_dot2_f32_bf16 v183, v{240+k}, v185, {'0' if k == 0 else 'v183'}")
                a.I(f"v_dot2_f32_bf16 v184, v{240+k}, v{240+k}, {'0' if k == 0 else 'v184'}")
            for sh in (8, 4, 2, 1):
                for r in (183, 184):
                    a.I(f"v_add_f32_dpp v{r}, v{r}, v{r} row_ror:{sh} row_mask:0xf bank_mask:0xf")
            a.M("""
            v_mov_b32 v185, v183
            v_mov_b32 v186, v184
            v_permlane16_swap_b32 v183, v185
            v_permlane16_swap_b32 v184, v186
            v_add_f32 v183, v183, v185
            v_add_f32 v184, v184, v186
            """)
            self.ln_stats(183, 184, 176, 177, 185)
        def nonce_load(): a.I(f"buffer_load_dword v35, v34, {srd(sDBG)}, 0 offen sc1")
        def stat_publish():
            self.nonce_check(35, 34)
            a.M(f"""
            s_mov_b32 s46, {S1_OFF}
            v_mov_b32 v178, s{sNONCE}
            v_mov_b32 v179, s{sNONCE}
            s_mov_b32 exec_lo, 1
            s_mov_b32 exec_hi, 1
            buffer_store_dwordx4 v[176:179], v182, {srd(sWS)}, s46 offen sc1
            s_mov_b64 exec, -1
            """)
        SCG = self.opt.get("scg", 7)
        if SCG < 0: row_loads()
        self.c_setup2()
        if SCG >= 0: row_loads()
        vm0 = list(a.vm)
        a.M(f"""
        s_cmp_ge_u32 s{sJ}, 30
        s_cbranch_scc1 L_c_idle
        """)
        if SCG < 0: stat_calc()
        def reads(g):
            c, ks = divmod(g, 4)
            b = g & 1
            so = (c % 4) * 16384
            it = []
            for u in range(2):
                it.append(lambda u=u: a.I(f"ds_read_b128 {vr(XF+8*b+4*u,4)}, v{vRX+ks} offset:{so+4096*u}"))
            for u in range(2):
                for rd in range(2):
                    it.append(lambda u=u, rd=rd: a.I(f"ds_read_b64_tr_b16 {vr(WF+8*b+4*u+2*rd,2)}, v{vRW+u} offset:{so+ks*4096+rd*1024}"))
            return [it[0], it[2], it[3], it[1], it[4], it[5]]
        def stat_loads():
            for u in range(2):
                a.I(f"buffer_load_dwordx2 {vr(vCS+4*u,2)}, v61, {srd(sWS)}, s91 offen offset:{256*u} sc1")
            for tu in range(2):
                r = a.I(f"buffer_load_dwordx4 {vr(ST+4*tu,4)}, v33, {srd(sWS)}, s80 offen offset:{512*tu} sc1")
            return r
        if self.opt.get("prio", 1): a.I(f"s_setprio {self.opt.get('prio', 1)}")
        self.bar("p1_0")
        self.stamp()
        for it in reads(0): it()
        EA, EB = 184, 192
        def ext_prep():
            retry, ok = self.lab("st"), self.lab("sto")
            a.M(f"""
            v_cmp_ne_u32 vcc, s{sNONCE}, v{ST+2}
            v_cmp_ne_u32 s[46:47], s{sNONCE}, v{ST+6}
            v_cmp_ne_u32 s[66:67], s{sNONCE}, v{vCS+1}
            s_or_b64 vcc, vcc, s[46:47]
            v_cmp_ne_u32 s[46:47], s{sNONCE}, v{vCS+5}
            s_or_b64 vcc, vcc, s[66:67]
            s_or_b64 vcc, vcc, s[46:47]
            s_cbranch_scc1 {retry}
            """)
            a.label(ok)
            def stub():
                self.reset()
                lp = self.lab("stl")
                a.label(retry)
                a.I("s_mov_b32 s44, 0")
                a.label(lp)
                stat_loads()
                a.M(f"""
                s_waitcnt vmcnt(0)
                v_cmp_ne_u32 vcc, s{sNONCE}, v{ST+2}
                v_cmp_ne_u32 s[46:47], s{sNONCE}, v{ST+6}
                v_cmp_ne_u32 s[66:67], s{sNONCE}, v{vCS+1}
                s_or_b64 vcc, vcc, s[46:47]
                v_cmp_ne_u32 s[46:47], s{sNONCE}, v{vCS+5}
                s_or_b64 vcc, vcc, s[66:67]
                s_or_b64 vcc, vcc, s[46:47]
                s_cbranch_scc0 {ok}
                s_add_u32 s44, s44, 1
                s_cmp_gt_u32 s44, {SPIN_MAX}
                s_cbranch_scc0 {lp}
                s_branch {ok}
                """)
            self.stubs.append(stub)
            ops = []
            for u in range(2):
                c0 = vCS + 4*u
                ops += f"""v_and_b32 v2, 0xffff0000, v{c0}
                v_sub_f32 v3, v{c0}, v2
                v_and_b32 v4, 0xffff0000, v3
                v_sub_f32 v3, v3, v4
                v_cvt_pk_bf16_f32 v{EA+4*u}, v2, v4
                v_cvt_pk_bf16_f32 v{EA+4*u+1}, v3, 0
                v_mov_b32 v{EA+4*u+2}, 0
                v_mov_b32 v{EA+4*u+3}, 0
                v_mul_f32 v{ST+4*u+1}, -0.5, v{ST+4*u+1}
                v_cvt_pk_bf16_f32 v{EB+4*u}, v{ST+4*u+1}, v{ST+4*u+1}
                v_mov_b32 v{EB+4*u+1}, v{EB+4*u}
                v_mov_b32 v{EB+4*u+2}, 0
                v_mov_b32 v{EB+4*u+3}, 0
                v_mul_f32 v{ST+4*u}, s82, v{ST+4*u}""".split("\n")
            return [x.strip() for x in ops]
        fill = []
        tiles = [(0, 0), (0, 1), (1, 0), (1, 1)]
        for g in range(40):
            c, ks = divmod(g, 4)
            b = g & 1
            X = [XF + 8*b, XF + 8*b + 4]
            W = [WF + 8*b, WF + 8*b + 4]
            rd = reads(g + 1) if g + 1 < 40 else []
            a.I("s_waitcnt lgkmcnt(0)")
            for n, (fu, tu) in enumerate(tiles):
                d = ACC + 16 * (2*fu + tu)
                cc = "0" if g == 0 else vr(d, 16)
                a.I(f"v_mfma_f32_32x32x16_bf16 {vr(d,16)}, {vr(W[fu],4)}, {vr(X[tu],4)}, {cc}")
                if n == 0 and g == SCG: stat_calc()
                if n == 0 and ks == 3:
                    self.bar(f"p1_{c+1}")
                    if self.fine: self.stamp()
                take = {0: 3, 1: 3, 2: 0, 3: 0}[n]
                for it in rd[:take]: it()
                rd = rd[take:]
                if n == 2:
                    if g == self.opt.get("gs", 33): stat_loads()
                    if g == 4: nonce_load()
                    if g == 10: stat_publish()
                    if g == 38: fill = ext_prep()
                if g >= 38 and (n >= 2 or g == 39):
                    for _ in range(5):
                        if fill: a.I(fill.pop(0))
        for x in fill: a.I(x)
        self.stamp()
        for fu, tu in tiles:
            d = ACC + 16 * (2*fu + tu)
            a.I(f"v_mfma_f32_32x32x16_bf16 {vr(d,16)}, {vr(EA+4*fu,4)}, {vr(EB+4*tu,4)}, {vr(d,16)}")
        P = 208
        for n, (fu, tu) in enumerate(tiles):
            d = ACC + 16 * (2*fu + tu)
            st = ST + 4*tu
            p = P + 8 * n
            for k in range(8):
                a.I(f"v_pk_mul_f32 {vr(d+2*k,2)}, {vr(d+2*k,2)}, {vr(st,2)} op_sel:[0,0] op_sel_hi:[1,0]")
            for k in range(8):
                a.I(f"v_cvt_pk_bf16_f32 v{p+k}, v{d+2*k}, v{d+2*k+1}")
            for pr in range(2):
                a.I(f"v_permlane32_swap_b32 v{p+4*pr}, v{p+4*pr+2}")
                a.I(f"v_permlane32_swap_b32 v{p+4*pr+1}, v{p+4*pr+3}")
            for pr in range(2):
                a.I(f"buffer_store_dwordx4 {vr(p+4*pr,4)}, v13, {srd(sWS)}, s{78+fu} offen offset:{2048*pr+512*tu} sc1")
        self.stamp()
        a.I("s_waitcnt vmcnt(0)")
        self.signal(81, 2)
        a.I("s_branch L_c_p1_done")
        a.vm = vm0; a.lg = []
        a.label("L_c_idle")
        a.fence(False)
        stat_calc()
        nonce_load()
        stat_publish()
        if self.opt.get("prio", 1): a.I(f"s_setprio {self.opt.get('prio', 1)}")
        a.I("s_barrier"); a.I("s_barrier")
        a.fence()
        a.label("L_c_p1_done")
        a.fence(False)
        a.vm = [(-1, set(), None)]; a.lg = []
        self.stamp()
        if self.opt.get("ackbar", 1): self.bar("acked")

    def c_setup2(self):
        a = self.a
        self.roles()
        a.M(f"""
        v_add_u32 v{vK0}, {RING}, v{vQ0}
        s_cmp_eq_u32 s{sPAR}, 0
        s_cselect_b32 s63, 2048, 0
        v_add_u32 v31, s63, v2
        v_add_u32 v4, 6144, v2
        v_cmp_gt_u32 vcc, 32, v1
        v_cndmask_b32 v{vK1}, v4, v31, vcc
        v_add_u32 v{vK1}, {RING}, v{vK1}
        v_bfe_u32 v4, v1, 4, 1
        v_and_b32 v5, 3, v1
        v_lshl_add_u32 v4, v4, 2, v5
        v_lshrrev_b32 v5, 1, v4
        v_add_u32 v6, s{sPAR}, v5
        s_lshr_b32 s63, s63, 10
        v_mov_b32 v7, s63
        v_cmp_eq_u32 vcc, 2, v5
        v_cndmask_b32 v6, v6, v7, vcc
        v_and_b32 v8, 1, v4
        v_xor_b32 v9, s{sPAR}, v8
        v_cndmask_b32 v8, v8, v9, vcc
        v_cmp_le_u32 vcc, 5, v4
        v_cndmask_b32 v6, v6, 3, vcc
        v_cndmask_b32 v8, v8, 0, vcc
        v_cmp_eq_u32 vcc, 5, v4
        v_cndmask_b32 v8, v8, 1, vcc
        v_bfe_u32 v9, v1, 2, 2
        v_lshl_add_u32 v9, v3, 2, v9
        v_lshlrev_b32 v10, 2, v6
        v_xor_b32 v9, v9, v10
        v_lshlrev_b32 v9, 4, v9
        v_lshl_add_u32 v9, v6, 10, v9
        v_lshl_add_u32 v9, v8, 3, v9
        v_add_u32 v{vV}, {RING+3072}, v9
        v_xor_b32 v{vV+1}, 128, v{vV}
        s_add_u32 s67, s{sOWN}, 1
        s_and_b32 s67, s67, 3
        s_lshl_b32 s66, s{sRB64}, 2
        s_add_u32 s66, s66, s67
        s_lshl_b32 s66, s66, 4
        v_and_b32 v2, 15, v1
        v_add_u32 v2, s66, v2
        v_mul_u32_u24 v2, 1280, v2
        v_lshrrev_b32 v3, 4, v1
        v_lshl_add_u32 v2, v3, 3, v2
        s_mul_i32 s66, s{sCB3}, 160
        v_add_u32 v14, s66, v2
        s_mul_i32 s66, s{sWAVE}, 3072
        s_add_u32 s66, s66, {QST}
        v_add_u32 v17, s66, v{vQ0}
        v_add_u32 v18, s66, v31
        s_mul_i32 s66, s{sWAVE}, 20480
        v_add_u32 v19, s66, v{vKV}
        s_mul_i32 s66, s{sWAVE}, 5120
        s_add_u32 s66, s66, {WST}
        v_add_u32 v21, s66, v{vKV}
        s_mov_b32 s61, 0
        """)
        self.xg_addr(20)

    def wor(self, st, f):
        return 176 + 20*st + 4*f if st < 4 else 52 + 4*f

    def c_phase2(self):
        a = self.a
        Q, KB, VB, P, S, O = 32, 48, 64, 80, 96, 128
        for f in range(5):
            a.I(f"buffer_load_dwordx2 {vr(vXR+2*f,2)}, v14, {srd(sX)}, 0 offen offset:{32*f}")
        a.M(f"""
        s_cmp_eq_u32 s{sPAR}, 0
        s_cselect_b32 s62, -1, 0
        s_cselect_b32 s64, 0, -1
        s_mov_b32 s63, 0
        s_mov_b32 s65, 0
        """)
        self.bar("first")
        a.I(f"buffer_load_dword v15, v20, {srd(sWS)}, 0 offen sc1")
        self.stamp()
        def koff(i):
            c, t = divmod(i, 4)
            return ((c + KSL) % NSLOT) * SLOT + (t >> 1) * 7168 + (t & 1) * 512
        def kread(i):
            b = KB + 8 * (i & 1)
            return [lambda: a.I(f"ds_read_b128 {vr(b,4)}, v{vK0} offset:{koff(i)}"),
                    lambda: a.I(f"ds_read_b128 {vr(b+4,4)}, v{vK1} offset:{koff(i)}")]
        def vread(i):
            b = VB + 8 * (i & 1)
            return [lambda j=j, rd=rd: a.I(f"ds_read_b64_tr_b16 {vr(b+4*j+2*rd,2)}, v{vV+rd} offset:{koff(i)+256*j}")
                    for j in range(2) for rd in range(2)]
        def qk(t, i):
            b = KB + 8 * (i & 1); s = S + 16 * t; q = Q + 8 * t
            return [f"v_mfma_f32_32x32x16_bf16 {vr(s,16)}, {vr(b,4)}, {vr(q,4)}, 0",
                    f"v_mfma_f32_32x32x16_bf16 {vr(s,16)}, {vr(b+4,4)}, {vr(q+4,4)}, {vr(s,16)}"]
        def pv(t, i):
            b = VB + 8 * (i & 1); o = O + 16 * t; p = P + 8 * t
            c0 = "0" if i == 0 else vr(o, 16)
            return [f"v_mfma_f32_32x32x16_bf16 {vr(o,16)}, {vr(b,4)}, {vr(p,4)}, {c0}",
                    f"v_mfma_f32_32x32x16_bf16 {vr(o,16)}, {vr(b+4,4)}, {vr(p+4,4)}, {vr(o,16)}"]
        for t in range(2):
            a.I(f"ds_read_b128 {vr(Q+8*t+4,4)}, v18 offset:{512*t}")
        for t in range(2):
            a.I(f"ds_read_b128 {vr(Q+8*t,4)}, v17 offset:{512*t}")
        for it in kread(0) + kread(1) + vread(0): it()
        for t in range(2):
            for k in range(4):
                m = "s[62:63]" if k < 2 else "s[64:65]"
                a.I(f"v_cndmask_b32 v{Q+8*t+4+k}, 0, v{Q+8*t+4+k}, {m}")
        for t in range(2):
            for m in qk(t, 0): a.I(m)
        a.I("s_mov_b32 s62, 0")
        a.I("s_mov_b32 s63, -1")
        for t in range(2):
            s = S + 16 * t
            a.I(f"v_max3_f32 v{2+t}, v{s}, v{s+1}, v{s+2}")
            for k in range(3, 15, 2):
                a.I(f"v_max3_f32 v{2+t}, v{2+t}, v{s+k}, v{s+k+1}")
            a.I(f"v_max_f32 v{2+t}, v{2+t}, v{s+15}")
            a.I(f"v_mov_b32 v{4+t}, v{2+t}")
            a.I(f"v_permlane32_swap_b32 v{2+t}, v{4+t}")
            a.I(f"v_max_f32 v{2+t}, v{2+t}, v{4+t}")
            a.I(f"v_cvt_pk_bf16_f32 v{2+t}, -v{2+t}, 0")
            a.I(f"v_cndmask_b32 v{Q+8*t+4}, v{Q+8*t+4}, v{2+t}, s[62:63]")
            if t == 0:
                for m in qk(0, 0): a.I(m)
        lastfill = [None]
        extra = []
        def half(t, mf, fill):
            s = S + 16 * t; p = P + 8 * t
            mf = list(mf); fill = list(fill)
            for q in range(4):
                if mf: a.I(mf.pop(0))
                if fill: lastfill[0] = fill.pop(0)()
                elif extra:
                    a.I(extra.pop(0))
                    if extra: a.I(extra.pop(0))
                for k in range(4):
                    a.I(f"v_exp_f32 v{s+4*q+k}, v{s+4*q+k}")
                if q > 0:
                    for k in range(2):
                        a.I(f"v_cvt_pk_bf16_f32 v{p+2*(q-1)+k}, v{s+4*(q-1)+2*k}, v{s+4*(q-1)+2*k+1}")
            assert not fill and not mf
            for k in range(2):
                a.I(f"v_cvt_pk_bf16_f32 v{p+6+k}, v{s+12+2*k}, v{s+12+2*k+1}")
        self.stamp()
        half(0, qk(1, 0), [])
        for i in range(64):
            if lastfill[0] is not None: a.wait_lg(lastfill[0])
            if i == 2 or ((i + 2) % 8 == 0 and i + 2 < 64):
                c = (i + 2) // 4
                assert not extra
                self.bar(f"kv{c}")
                if self.opt.get("att"): self.stamp()
                if c == 8:
                    extra += [f"ds_read_b128 {vr(self.wor(st,f),4)}, v19 offset:{5120*st+1024*f}" for st in range(4) for f in range(5)]
            if i == 63: self.bar("att_end")
            kr = kread(i + 2) if i + 2 < 64 else []
            vrd = vread(i + 1) if i + 1 < 64 else []
            mfb = (qk(0, i + 1) if i + 1 < 64 else []) + pv(0, i)
            fl = kr + vrd
            half(1, mfb, fl[:4])
            if i + 1 < 64:
                half(0, qk(1, i + 1) + pv(1, i), fl[4:])
        self.stamp()
        for m in pv(1, 63): a.I(m)
        a.label("L_slow_back")
        a.I(f"s_mov_b32 s66, {hex(f2u(2.0**100))}")
        a.I(f"s_mov_b32 s67, {hex(f2u(2.0**-30))}")
        for t in range(2):
            o = O + 16 * t; p = S + 8 * t
            a.I(f"v_rcp_f32 v{2+2*t}, v{o+12}")
            a.I(f"v_cmp_nge_f32 s[{62+2*t}:{63+2*t}], v{o+12}, s67")
            for k in range(0, 12, 2):
                a.I(f"v_pk_mul_f32 {vr(o+k,2)}, {vr(o+k,2)}, {vr(2+2*t,2)} op_sel:[0,0] op_sel_hi:[1,0]")
            for k in range(6):
                a.I(f"v_cvt_pk_bf16_f32 v{p+k}, v{o+2*k}, v{o+2*k+1}")
            for k in range(3):
                a.I(f"v_pk_add_f32 {vr(o+4*k,2)}, {vr(o+4*k,2)}, {vr(o+4*k+2,2)}")
            a.I(f"v_permlane32_swap_b32 v{p}, v{p+2}")
            a.I(f"v_permlane32_swap_b32 v{p+1}, v{p+3}")
            a.I(f"v_pk_add_f32 {vr(o,2)}, {vr(o,2)}, {vr(o+4,2)}")
            a.I(f"v_pk_add_f32 {vr(o,2)}, {vr(o,2)}, {vr(o+8,2)}")
            a.I(f"v_add_f32 v{o}, v{o}, v{o+1}")
            a.I(f"v_fma_f32 v{o}, v{o}, 0, v{o+12}")
            if t == 0:
                a.I(f"v_cmp_nle_f32 vcc, v{o}, s66")
                a.I("s_or_b64 s[62:63], s[62:63], vcc")
        a.M(f"""
        v_cmp_nle_f32 vcc, v{O+16}, s66
        s_or_b64 s[62:63], s[62:63], s[64:65]
        v_permlane32_swap_b32 v{S+4}, v{S+12}
        v_permlane32_swap_b32 v{S+5}, v{S+13}
        s_or_b64 vcc, vcc, s[62:63]
        s_cbranch_scc1 L_slow
        """)
        a.label("L_slow_done")
        a.M(f"""
        buffer_store_dwordx4 {vr(S,4)}, v{vQ0}, {srd(sWS)}, s88 offen sc1
        buffer_store_dwordx4 {vr(S+8,4)}, v{vQ0}, {srd(sWS)}, s88 offen offset:512 sc1
        buffer_store_dwordx2 {vr(S+4,2)}, v{vKV}, {srd(sWS)}, s89 offen sc1
        """)
        self.stamp()
        self.slow_args = dict(Q=Q, KB=KB, VB=VB, P=P, S=S, O=O, vK0=vQ0, vV=vV, vKV=vKV)

    def ksplit(self, nst, wreg, load, areg, chk, nup, accs, cinit0, wr, hooks, fillers=()):
        a = self.a
        total = 4 * nst
        pendw = []
        fillers = list(fillers)
        late = []
        for u in range(4):
            acc = accs[u]
            for st in range(nst):
                n = u * nst + st
                if (u, st) in hooks:
                    assert not pendw
                    late = hooks[(u, st)]() or []
                for f in range(5):
                    cc = "0" if (st == 0 and not (u == 0 and cinit0)) else vr(acc + 4*f, 4)
                    a.I(f"v_mfma_f32_16x16x32_bf16 {vr(acc+4*f,4)}, {vr(wreg(st,f),4)}, {vr(areg(n),4)}, {cc}")
                    if chk and f == 3 and nup <= n + 1 < total:
                        check_data(self, chk(n + 1), lambda n=n: [load(k) for k in range(n + 1, min(n + 1 + nup, total))])
                    if f == 0 and n + nup < total: load(n + nup)
                    elif f == 4 and n + 1 < total and not late and not pendw: pass
                    elif pendw:
                        if st >= 1 or f >= 3 or (pendw[0].startswith("v_") and f >= 2):
                            k = 0
                            while pendw and k < 4:
                                x = pendw.pop(0); a.I(x)
                                k += 1 if x.startswith("v_") else 4
                    elif late:
                        for _ in range(3):
                            if late:
                                x = late.pop(0)
                                if x: a.I(x)
                    elif fillers and n >= nup + 1:
                        a.I(fillers.pop(0))
            assert not pendw
            pendw = wr(u) or []
        return pendw, [x for x in late if x] + fillers

    def c_phase3(self):
        a = self.a
        AF = 72
        vRW, vRR, vA = 8, 11, 12
        accs = [32, AF, AF + 20, 32]
        SO3 = self.opt.get("so3", 1)
        ostore = a.vm[-1][0]
        self.xg_mode(15)
        for f in range(5): a.I(f"ds_read_b128 {vr(self.wor(4,f),4)}, v21 offset:{1024*f}")
        for r in range(10):
            a.I(f"v_lshlrev_b32 v{accs[0]+2*r}, 16, v{vXR+r}")
            a.I(f"v_and_b32 v{accs[0]+2*r+1}, 0xffff0000, v{vXR+r}")
        a.M(f"""
        v_lshrrev_b32 v2, 4, v1
        v_and_b32 v3, 15, v1
        v_lshlrev_b32 v3, 4, v3
        v_lshl_add_u32 v3, v2, 10, v3
        """)
        for u in range(4):
            a.M(f"""
            s_add_u32 s66, s{sOWN}, {u+1}
            s_and_b32 s66, s66, 3
            s_lshl_b32 s67, s66, 8
            v_add_u32 v{vA+u}, s67, v3
            s_mul_i32 s66, s66, 5120
            s_add_u32 s66, s66, 143360
            v_add_u32 v{vRW+u}, s66, v{vKV}
            """)
        a.M(f"""
        v_and_b32 v2, 7, v1
        s_lshl_b32 s66, s{sWAVE}, 3
        v_add_u32 v2, s66, v2
        v_lshl_add_u32 v2, v2, 5, s{sRB64}
        v_lshlrev_b32 v2, 7, v2
        v_add_u32 v{vFA}, {F2_OFF}, v2
        s_mul_i32 s62, s{sRB64}, 80
        s_mul_i32 s66, s{sWAVE}, 20
        s_add_u32 s62, s62, s66
        s_lshl_b32 s62, s62, 10
        s_add_u32 s62, s62, {O_OFF}
        s_add_u32 s63, s62, 4096
        s_add_u32 s64, s62, 8192
        s_add_u32 s65, s62, 12288
        s_add_u32 s58, s62, 16384
        s_lshl_b32 s66, s{sRB64}, 2
        s_add_u32 s66, s66, s{sOWN}
        s_lshl_b32 s66, s66, 4
        v_and_b32 v5, 15, v1
        v_add_u32 v24, s66, v5
        v_lshlrev_b32 v24, 6, v24
        v_bfe_u32 v2, v1, 4, 1
        v_lshrrev_b32 v3, 5, v1
        v_lshl_add_u32 v4, v2, 1, v3
        v_lshlrev_b32 v5, 4, v5
        v_lshl_add_u32 v25, v4, 10, v5
        v_lshl_add_u32 v5, v3, 10, v5
        v_lshl_add_u32 v26, v2, 3, v5
        s_mul_i32 s66, s{sRB64}, 80
        s_mul_i32 s67, s{sCB3}, 10
        s_add_u32 s66, s66, s67
        s_lshl_b32 s66, s66, 10
        s_lshl_b32 s67, s{sOWN}, 8
        s_add_u32 s66, s66, s67
        s_add_u32 s54, s66, {H_OFF}
        s_add_u32 s55, s54, 4096
        s_add_u32 s56, s54, 8192
        s_lshl_b32 s59, s{sCB3}, 3
        s_add_u32 s59, s59, {ST_OFF}
        v_mov_b32 v19, 0x3f803f80
        """)
        so = [62, 63, 64, 65, 58]
        def load(n):
            u, st = divmod(n, 5)
            a.I(f"buffer_load_dwordx4 {vr(AF+4*n,4)}, v{vA+u}, {srd(sWS)}, s{so[st]} offen sc1")
        NUP = self.opt.get("nb3", 8)
        chk = lambda n: [AF + 4*n, AF + 4*n + 2]
        a.I("s_waitcnt lgkmcnt(0)")
        if SO3:
            if self.opt.get("ackfirst", 1):
                a.wait_vm(ostore)
                self.signal(4, 4)
            for n in range(NUP): load(n)
            self.bar("wo_read")
            a.I("s_waitcnt vmcnt(0)")
            if not self.opt.get("ackfirst", 1): self.signal(4, 4)
            self.stamp()
            check_data(self, sum([chk(n) for n in range(NUP)], []), lambda: [load(n) for n in range(NUP)])
            self.stamp()
        else:
            a.wait_vm(ostore)
            self.signal(4, 4)
            self.stamp()
            self.bar("wo_read")
            self.poll([vFA], 2)
            self.stamp()
            for n in range(NUP): load(n)
        a.M(f"""
        s_lshl_b32 s4, s{sRB64}, 3
        s_add_u32 s4, s4, s{sCB3}
        s_lshl_b32 s4, s4, 2
        s_add_u32 s4, s4, s{sOWN}
        s_lshl_b32 s4, s4, 7
        s_add_u32 s4, s4, {F3_OFF}
        """)
        T = 152
        def gather(u):
            def f():
                a.I("s_waitcnt lgkmcnt(0)")
                self.bar(f"red3_{u}")
                return [f"ds_read_b128 {vr(T+4*f,4)}, v{vRW+u} offset:{1024*f}" for f in range(5)]
            return f
        def wr(u):
            if u == 3: return None
            out = []
            for f in range(5):
                if u > 0: out += [f"v_add_f32 v{accs[u]+4*f+e}, v{accs[u]+4*f+e}, v{T+4*f+e}" for e in range(4)]
                out.append(f"ds_write_b128 v{vRW+u}, {vr(accs[u]+4*f,4)} offset:{1024*f}")
            return out
        _, rest = self.ksplit(5, self.wor, load, lambda n: AF + 4*n, chk if SO3 else None, NUP, accs, True, wr,
                              {(1, 2): gather(1), (2, 3): gather(2), (3, 3): gather(3)})
        for x in rest: a.I(x)
        R = accs[3]
        for r in range(0, 20, 2): a.I(f"v_pk_add_f32 {vr(R+r,2)}, {vr(R+r,2)}, {vr(T+r,2)}")
        for r in range(8): a.I(f"v_cvt_pk_bf16_f32 v{T+r}, v{R+2*r}, v{R+2*r+1}")
        for r in range(8, 10): a.I(f"v_cvt_pk_bf16_f32 v{vH+r}, v{R+2*r}, v{R+2*r+1}")
        for pr in range(2):
            a.I(f"v_permlane16_swap_b32 v{T+4*pr}, v{T+4*pr+2}")
            a.I(f"v_permlane16_swap_b32 v{T+4*pr+1}, v{T+4*pr+3}")
        def tail():
            a.M(f"""
            buffer_store_dwordx4 {vr(T,4)}, v25, {srd(sWS)}, s54 offen SCX
            buffer_store_dwordx4 {vr(T+4,4)}, v25, {srd(sWS)}, s55 offen SCX
            buffer_store_dwordx2 {vr(vH+8,2)}, v26, {srd(sWS)}, s56 offen SCX
            """)
            src = [T + r for r in range(8)] + [vH + 8, vH + 9]
            for i, r in enumerate(src):
                a.I(f"v_dot2_f32_bf16 v6, v{r}, v19, {'0' if i == 0 else 'v6'}")
                a.I(f"v_dot2_f32_bf16 v7, v{r}, v{r}, {'0' if i == 0 else 'v7'}")
            for x, y in zip(rg_ops(6, 2), rg_ops(7, 3)):
                a.I(x); a.I(y)
            a.M(f"""
            s_mov_b64 exec, 0xffff
            buffer_store_dwordx2 v[6:7], v24, {srd(sWS)}, s59 offen SCX
            s_mov_b64 exec, -1
            """)
        self.dual(tail)
        self.stamp()
        for r in range(8): a.I(f"v_cvt_pk_bf16_f32 v{vH+r}, v{R+2*r}, v{R+2*r+1}")

    def c_phase4(self):
        a = self.a
        sCB4 = 5
        ACC = 32
        WB = [88, 116]
        AF, NB = 144, 9
        vTR, vA, vCSA = 24, 27, 28
        a.M(f"""
        s_lshr_b32 s66, s{sJ}, 4
        s_lshl_b32 s62, s{sXCD}, 1
        s_add_u32 s62, s62, s66
        s_lshl_b32 s63, s62, 1
        s_lshr_b32 s66, s{sWAVE}, 1
        s_add_u32 s63, s63, s66
        s_and_b32 s64, s{sWAVE}, 1
        v_and_b32 v2, 7, v1
        s_lshl_b32 s66, s63, 3
        v_add_u32 v2, s66, v2
        v_bfe_u32 v3, v1, 3, 1
        v_lshl_add_u32 v2, v2, 2, v3
        s_lshl_b32 s66, s64, 1
        v_add_u32 v2, s66, v2
        v_lshlrev_b32 v2, 7, v2
        v_add_u32 v{vFA}, {F3_OFF}, v2
        v_lshrrev_b32 v2, 4, v1
        v_and_b32 v3, 15, v1
        v_lshlrev_b32 v4, 4, v3
        v_lshl_add_u32 v{vA}, v2, 10, v4
        v_lshlrev_b32 v{vCSA}, 4, v2
        v_lshl_add_u32 v29, v3, 6, v{vCSA}
        v_add_u32 v{vCSA}, 143360, v{vCSA}
        s_mul_i32 s65, s63, 80
        s_lshl_b32 s65, s65, 10
        s_lshl_b32 s66, s64, 9
        s_add_u32 s65, s65, s66
        s_add_u32 s70, s65, {H_OFF}
        s_add_u32 s71, s70, 4096
        s_add_u32 s72, s70, 8192
        s_add_u32 s73, s70, 12288
        s_lshl_b32 s58, s63, 6
        s_lshl_b32 s67, s64, 5
        s_add_u32 s58, s58, s67
        s_lshl_b32 s58, s58, 6
        s_add_u32 s58, s58, {ST_OFF}
        s_waitcnt vmcnt(0)
        """)
        self.dual(lambda: self.signal(4, 4, "SCX"))
        self.stamp()
        self.bar("red3_done")
        a.I(f"v_add_u32 v{vTR+1}, {8*7168}, v{vKV}")
        a.I(f"v_add_u32 v{vTR+2}, {16*7168}, v{vKV}")
        a.I(f"v_mov_b32 v{vTR}, v{vKV}")
        def wreads(st):
            b = WB[st & 1]
            return [lambda f=f: a.I(f"ds_read_b128 {vr(b+4*f,4)}, v{vTR+st//8} offset:{(st%8)*7168+f*1024}") for f in range(7)]
        ids = [it() for it in wreads(0)]
        self.poll([vFA], 2)
        self.stamp()
        def load(st, tus=(0, 1)):
            r = AF + 8 * (st % NB)
            for tu in tus:
                a.I(f"buffer_load_dwordx4 {vr(r+4*tu,4)}, v{vA}, {srd(sWS)}, s{70+st} offen offset:{256*tu} sc1")
        NU4 = 4
        for st in range(NU4): load(st)
        for tu in range(2):
            a.I(f"buffer_load_dwordx4 {vr(8+4*tu,4)}, v29, {srd(sWS)}, s58 offen offset:{1024*tu} sc1")
        for st in range(4, 20): a.I(f"s_add_u32 s{70+st}, s70, {4096*st}")
        a.M(f"""
        v_and_b32 v31, 31, v1
        v_lshlrev_b32 v31, 4, v31
        v_lshrrev_b32 v4, 5, v1
        v_lshl_add_u32 v31, v4, 10, v31
        s_mul_i32 s54, s63, 216
        s_mul_i32 s66, s{sCB4}, 14
        s_add_u32 s54, s54, s66
        s_lshl_b32 s54, s54, 10
        s_lshl_b32 s66, s64, 9
        s_add_u32 s54, s54, s66
        s_add_u32 s54, s54, {H1_OFF}
        s_lshl_b32 s4, s62, 4
        s_add_u32 s4, s4, s{sCB4}
        s_lshl_b32 s4, s4, 2
        s_add_u32 s4, s4, s{sWAVE}
        s_lshl_b32 s4, s4, 7
        s_add_u32 s4, s4, {F4_OFF}
        """)
        fill = []
        for tu in range(2):
            m = 8 + 4*tu
            fill += [f"v_add_f32 v{m}, v{m}, v{m+2}"] + rg_ops(m, m + 1) + [f"v_mul_f32 v{m}, {hex(f2u(-1.0/640))}, v{m}",
                     f"v_cvt_pk_bf16_f32 v{m}, v{m}, v{m}", f"v_and_b32 v{m}, 0xffff0000, v{m}"]
        CS = AF + 8 * (20 % NB)
        csq = [f"ds_read_b128 {vr(CS+4*f,4)}, v{vCSA} offset:{64*f}" for f in range(7)]
        for st in range(20):
            if self.opt.get("fine4") and st in (1, 5, 9, 10, 19): self.stamp()
            rd = wreads(st + 1) if st + 1 < 20 else []
            b = WB[st & 1]; r = AF + 8 * (st % NB)
            prev, ids = ids, []
            for f in range(7):
                if f == 0: a.wait_lg(prev[6])
                for tu in range(2):
                    d = ACC + 8 * f + 4 * tu
                    cc = "0" if st == 0 else vr(d, 4)
                    a.I(f"v_mfma_f32_16x16x32_bf16 {vr(d,4)}, {vr(b+4*f,4)}, {vr(r+4*tu,4)}, {cc}")
                    k = 2 * f + tu
                    if k == 0 and st == 9: self.bar("w1_mid")
                    if k == 0 and st == 19: self.bar("w1_done")
                    if k in (1, 8) and st + NU4 < 20: load(st + NU4, (k // 8,))
                    elif rd and k >= 2: ids.append(rd.pop(0)())
                    elif csq and st >= 16 and k >= 10: a.I(csq.pop(0))
                    elif fill and st >= 3 and 10 <= k < 13: a.I(fill.pop(0))
            if st == 17: assert not csq
        assert not fill and not csq
        self.stamp()
        P = WB[0]
        def epi():
            skip = self.lab("h1")
            for f in range(7):
                if f == 3:
                    a.I(f"s_cmp_eq_u32 s{sCB4}, 15")
                    a.I(f"s_cbranch_scc1 {skip}")
                for tu in range(2):
                    d = ACC + 8 * f + 4 * tu
                    for e in range(0, 4, 2):
                        a.I(f"v_pk_fma_f32 {vr(d+e,2)}, {vr(CS+4*f+e,2)}, {vr(8+4*tu,2)}, {vr(d+e,2)} op_sel:[0,0,0] op_sel_hi:[1,0,1]")
                for tu in range(2):
                    d = ACC + 8 * f + 4 * tu
                    for k in range(2):
                        a.I(f"v_cvt_pk_bf16_f32 v{P+4*f+2*tu+k}, v{d+2*k}, v{d+2*k+1}")
                for k in (0, 2, 1, 3):
                    a.I(f"v_pk_max_i16 v{P+4*f+k}, v{P+4*f+k}, 0")
                if f % 2 == 0 and f > 0: a.I("s_add_u32 s54, s54, 4096")
                a.I(f"v_permlane16_swap_b32 v{P+4*f}, v{P+4*f+2}")
                a.I(f"v_permlane16_swap_b32 v{P+4*f+1}, v{P+4*f+3}")
                a.I(f"buffer_store_dwordx4 {vr(P+4*f,4)}, v31, {srd(sWS)}, s54 offen offset:{2048*(f%2)} SCX")
            a.fence()
            a.label(skip)
        self.dual(epi)
        self.stamp()

    def p5_addrs(self, vA, vW, first_slot, nw, steps):
        a = self.a
        a.M(f"""
        v_lshrrev_b32 v2, 4, v1
        v_and_b32 v3, 15, v1
        v_lshlrev_b32 v3, 4, v3
        v_lshl_add_u32 v3, v2, 10, v3
        s_mul_i32 s62, s{sRB64}, 216
        s_mul_i32 s66, s{sWAVE}, 56
        s_add_u32 s63, s62, 212
        s_add_u32 s62, s62, s66
        s_lshl_b32 s62, s62, 10
        s_add_u32 s62, s62, {H1_OFF}
        s_lshl_b32 s63, s63, 10
        s_add_u32 s63, s63, {H1_OFF}
        """)
        for u in range(4):
            a.M(f"""
            s_add_u32 s66, s{sOWN}, {u+1}
            s_and_b32 s66, s66, 3
            s_lshl_b32 s67, s66, 8
            v_add_u32 v{vA+u}, s67, v3
            s_mul_i32 s66, s66, 35840
            s_add_u32 s66, s66, {5120*(first_slot+u) if u < nw else 0}
            v_add_u32 v{vW+u}, s66, v{vKV}
            """)
        for k, st in enumerate(steps):
            a.I(f"s_add_u32 s{70+k}, s62, {4096*st}")
            if st >= 12: a.I(f"s_min_u32 s{70+k}, s{70+k}, s63")

    def c_phase5(self):
        a = self.a
        vW, vA = 8, 12
        HS = self.opt.get("hs", 9)
        NC = 14 - HS
        WF, AF, NUP = 100, 32, self.opt.get("nb5c", 6)
        NB = NUP + 1
        accs = [60, 80, 60, 80]
        HU, T = 232, 116
        assert AF + 4 * NB <= 60 and WF + 20 * NC <= 222
        a.I(f"s_mul_i32 s66, s{sWAVE}, 5120")
        a.I(f"v_add_u32 v17, s66, v{vKV}")
        a.I(f"v_add_u32 v18, 61440, v17")
        def wread(k):
            for f in range(5):
                a.I(f"ds_read_b128 {vr(WF+20*k+4*f,4)}, v{17 if k < 3 else 18} offset:{20480*(k % 3)+1024*f}")
        for k in range(3): wread(k)
        self.p5_addrs(vA, vW, 0, 3, [11, 12, 13] + list(range(HS, 11)))
        a.I("s_waitcnt vmcnt(0)")
        self.dual(lambda: self.signal(4, 4, "SCX"))
        self.stamp()
        self.bar("w2_hand")
        for k in range(3, NC): wread(k)
        a.M(f"""
        s_lshl_b32 s66, s{sRB64}, 2
        s_add_u32 s66, s66, s{sOWN}
        s_lshl_b32 s66, s66, 4
        v_and_b32 v2, 15, v1
        v_add_u32 v24, s66, v2
        v_lshrrev_b32 v3, 4, v1
        v_lshlrev_b32 v4, 6, v24
        v_lshl_add_u32 v25, v3, 4, v4
        s_mov_b32 s58, {ST_OFF}
        """)
        a.M(f"""
        v_mul_u32_u24 v4, 1280, v24
        v_bfe_u32 v2, v1, 4, 1
        v_lshrrev_b32 v3, 5, v1
        v_lshl_add_u32 v6, v2, 1, v3
        v_lshl_add_u32 v27, v6, 4, v4
        v_lshrrev_b32 v6, 4, v1
        v_lshl_add_u32 v28, v6, 3, v4
        s_mul_i32 s59, s{sCB3}, 160
        """)
        for r in range(10):
            a.I(f"v_lshlrev_b32 v{HU+2*r}, 16, v{vH+r}")
            a.I(f"v_and_b32 v{HU+2*r+1}, 0xffff0000, v{vH+r}")
        a.I("s_waitcnt lgkmcnt(0)")
        if self.opt.get("pr5", 0): a.I(f"s_setprio {self.opt.get('pr5c', 2)}")
        self.bar("h1_ready")
        self.stamp()
        def areg(n): return AF + 4 * (n % NB)
        def load(n):
            u, k = divmod(n, NC)
            a.I(f"buffer_load_dwordx4 {vr(areg(n),4)}, v{vA+u}, {srd(sWS)}, s{70+k} offen sc1")
        for n in range(NUP): load(n)
        a.I(f"buffer_load_dwordx4 v[20:23], v25, {srd(sWS)}, s58 offen sc1")
        wr = lambda u: [f"ds_write_b128 v{vW+u}, {vr(accs[u]+4*f,4)} offset:{1024*f}" for f in range(5)] if u < 3 else None
        self.ksplit(NC, lambda st, f: WF + 20*st + 4*f, load, areg, None, NUP, accs, False, wr, {})
        if self.opt.get("fine4"): self.stamp()
        if self.opt.get("pr5", 0): a.I("s_setprio 0")
        a.I("v_add_f32 v20, v20, v22")
        a.I("v_add_f32 v21, v21, v23")
        for x, y in zip(rg_ops(20, 22), rg_ops(21, 23)):
            a.I(x); a.I(y)
        self.ln_stats(20, 21, 22, 23, 2)
        R = accs[3]
        a.I("s_waitcnt lgkmcnt(0)")
        self.bar("red5x")
        for k in range(5):
            for f in range(5):
                a.I(f"ds_read_b128 {vr(T+20*k+4*f,4)}, v{vW+3} offset:{5120*k+1024*f}")
        for k in range(5):
            for r in range(20): a.I(f"v_add_f32 v{R+r}, v{R+r}, v{T+20*k+r}")
        self.bar("red5a")
        if self.opt.get("fine4"): self.stamp()
        for f in range(5):
            a.I(f"ds_read_b128 {vr(T+4*f,4)}, v{vW+3} offset:{5120*5+1024*f}")
        for r in range(20): a.I(f"v_add_f32 v{R+r}, v{R+r}, v{T+r}")
        for r in range(20): a.I(f"v_fmac_f32 v{HU+r}, v22, v{R+r}")
        if self.opt.get("fine4"): self.stamp()
        self.bar("red5b")
        self.stamp()
        for f in range(5): a.I(f"ds_read_b128 {vr(T+4*f,4)}, v{vW+3} offset:{5120*6+1024*f}")
        for r in range(0, 20, 2):
            a.I(f"v_pk_fma_f32 {vr(HU+r,2)}, {vr(T+r,2)}, v[22:23], {vr(HU+r,2)} op_sel:[0,0,0] op_sel_hi:[1,0,1]")
        P = T + 20
        for r in range(10): a.I(f"v_cvt_pk_bf16_f32 v{P+r}, v{HU+2*r}, v{HU+2*r+1}")
        for pr in range(2):
            a.I(f"v_permlane16_swap_b32 v{P+4*pr}, v{P+4*pr+2}")
            a.I(f"v_permlane16_swap_b32 v{P+4*pr+1}, v{P+4*pr+3}")
        a.M(f"""
        buffer_store_dwordx4 {vr(P,4)}, v27, {srd(sOUT)}, s59 offen
        buffer_store_dwordx4 {vr(P+4,4)}, v27, {srd(sOUT)}, s59 offen offset:64
        buffer_store_dwordx2 {vr(P+8,2)}, v28, {srd(sOUT)}, s59 offen offset:128
        """)
        self.stamp()

    def h_phase1(self):
        a = self.a
        AH = self.p1_ahead
        vDX, vDW, vSEL = 160, 164, 44
        rot = self.opt.get("rot", 1)
        if rot == 1: a.I(f"s_mov_b32 s{sKC}, 0")
        else:
            a.M(f"""
            s_and_b32 s{sKC}, s{sKC}, {rot-1}
            s_mul_i32 s{sKC}, s{sKC}, 10
            s_lshr_b32 s{sKC}, s{sKC}, {rot.bit_length()-1}
            """)
        a.M(f"""
        s_lshl_b32 s66, s{sRB}, 7
        s_lshl_b32 s67, s{sWAVE}, 5
        s_add_u32 s66, s66, s67
        v_lshrrev_b32 v2, 3, v1
        v_add_u32 v2, s66, v2
        v_mul_u32_u24 v2, 1280, v2
        v_and_b32 v3, 7, v1
        v_lshrrev_b32 v4, 4, v1
        v_xor_b32 v3, v3, v4
        v_lshlrev_b32 v3, 4, v3
        v_xor_b32 v5, 64, v3
        v_add_u32 v{vDX}, v2, v3
        v_add_u32 v{vDX+1}, v2, v5
        v_add_u32 v{vDX+1}, {10240-1024}, v{vDX+1}
        v_add_u32 v{vDX+2}, {2*(10240-1024)}, v{vDX}
        v_add_u32 v{vDX+3}, {2*(10240-1024)}, v{vDX+1}
        s_lshl_b32 s67, s{sWAVE}, 4
        v_add_u32 v2, s67, v4
        v_mul_u32_u24 v2, 3840, v2
        v_and_b32 v3, 15, v1
        v_lshlrev_b32 v5, 2, v4
        v_xor_b32 v3, v3, v5
        v_lshlrev_b32 v3, 4, v3
        s_lshl_b32 s67, s{sCB}, 8
        v_add3_u32 v{vDW}, v2, v3, s67
        v_add_u32 v{vDW+1}, {4*3840-1024}, v{vDW}
        v_add_u32 v{vDW+2}, {2*(4*3840-1024)}, v{vDW}
        v_add_u32 v{vDW+3}, {3*(4*3840-1024)}, v{vDW}
        s_lshl_b32 s77, s{sWAVE}, 12
        v_mov_b32 v34, 0
        """)
        st = self.stamps; self.stamps = False
        self.prologue_finish()
        a.M(f"""
        s_cmp_ge_u32 s{sJ}, 30
        s_cbranch_scc1 L_h_idle
        """)
        last = {}
        def dma(c):
            a.I(f"s_add_u32 m0, s77, {(c % 4) * 16384}")
            a.I(f"s_lshl_b32 s73, s{sKC}, 7")
            for i in range(4): a.I(f"buffer_load_dwordx4 v{vDX+i}, {srd(sX)}, s73 offen offset:{1024*i} lds")
            a.I(f"s_add_u32 m0, s77, {65536 + (c % 4) * 16384}")
            a.I(f"s_mul_i32 s74, s{sKC}, {64*3840}")
            for i in range(4): last[c] = a.I(f"buffer_load_dwordx4 v{vDW+i}, {srd(sWQKV)}, s74 offen offset:{1024*i} lds")
            a.I(f"s_add_u32 s{sKC}, s{sKC}, 1")
            a.I(f"s_cmp_eq_u32 s{sKC}, 10")
            a.I(f"s_cselect_b32 s{sKC}, 0, s{sKC}")
        def nonce_load(): a.I(f"buffer_load_dword v35, v34, {srd(sDBG)}, 0 offen sc1")
        dma(0); dma(1)
        nxt = 2
        for c in range(10):
            a.wait_vm(last[c])
            self.bar(f"p1_{c}")
            k = 0
            while nxt < 10 and nxt <= min(c + AH, c + 3) and k < (2 if c == self.opt.get("dbl", 99) else 1):
                dma(nxt); nxt += 1; k += 1
            if c == 2: nonce_load()
            if c == 5:
                self.nonce_check(35, 34)
                self.xg_publish(2)
        self.bar("p1_10")
        a.I("s_branch L_h_p1_done")
        self.reset()
        a.label("L_h_idle")
        ids = []
        def wq_dma(c):
            a.I(f"s_add_u32 m0, s77, {c*16384}")
            a.I(f"s_mov_b32 s74, {c*64*3840}")
            for i in range(4):
                r = a.I(f"buffer_load_dwordx4 v{vDW+i}, {srd(sWQKV)}, s74 offen offset:{1024*i} lds")
            ids.append(r)
        for c in range(2): wq_dma(c)
        a.M(f"""
        v_lshrrev_b32 v3, 5, v1
        v_bfe_u32 v4, v1, 2, 2
        v_lshl_add_u32 v5, v3, 3, v4
        v_lshlrev_b32 v5, 8, v5
        v_lshl_add_u32 v5, v4, 6, v5
        v_bfe_u32 v4, v1, 4, 1
        v_lshl_add_u32 v5, v4, 5, v5
        v_and_b32 v6, 3, v1
        v_lshl_add_u32 v5, v6, 3, v5
        v_add_u32 v24, s77, v5
        v_xor_b32 v25, 64, v24
        v_xor_b32 v26, 128, v24
        v_xor_b32 v27, 192, v24
        v_and_b32 v6, 15, v1
        v_lshlrev_b32 v4, 2, v4
        v_cmp_eq_u32 vcc, v6, v4
        v_mov_b32 v6, 0x3f803f80
        v_cndmask_b32 v{vSEL}, 0, v6, vcc
        v_cndmask_b32 v{vSEL+1}, 0, v6, vcc
        v_cndmask_b32 v{vSEL+2}, 0, v6, vcc
        v_cndmask_b32 v{vSEL+3}, 0, v6, vcc
        """)
        for c in range(2, 6): wq_dma(c)
        nonce_load()
        for c in range(6, 10): wq_dma(c)
        self.nonce_check(35, 34)
        for c in range(10):
            if c in (4, 8):
                for f in range(4): a.I(f"v_add_u32 v{24+f}, 65536, v{24+f}")
            a.wait_vm(ids[c])
            for f in range(4):
                for rd in range(2):
                    a.I(f"ds_read_b64_tr_b16 {vr(64+4*f+2*rd,2)}, v{24+f} offset:{(c%4)*16384+1024*rd}")
            for f in range(4):
                a.I(f"v_mfma_f32_16x16x32_bf16 {vr(48+4*f,4)}, {vr(vSEL,4)}, {vr(64+4*f,4)}, {'0' if c == 0 else vr(48+4*f,4)}")
        a.M(f"""
        v_lshl_add_u32 v24, v1, 2, s77
        s_lshl_b32 s66, s{sWAVE}, 8
        v_lshl_add_u32 v25, v1, 2, s66
        """)
        for f in range(4): a.I(f"ds_write_b32 v24, v{48+4*f} offset:{256*f}")
        a.I("s_waitcnt lgkmcnt(0)")
        a.I("s_barrier")
        for w in range(4): a.I(f"ds_read_b32 v{64+w}, v25 offset:{4096*w}")
        a.M(f"""
        v_add_f32 v64, v64, v65
        v_add_f32 v66, v66, v67
        v_add_f32 v64, v64, v66
        v_mov_b32 v65, s{sNONCE}
        v_lshlrev_b32 v24, 3, v1
        s_lshl_b32 s66, s{sCB}, 2
        s_add_u32 s66, s66, s{sWAVE}
        s_lshl_b32 s66, s66, 8
        s_add_u32 s66, s66, {CQ_OFF}
        s_mov_b32 exec_hi, 0
        buffer_store_dwordx2 v[64:65], v24, {srd(sWS)}, s66 offen sc1
        s_mov_b32 exec_hi, -1
        """)
        self.xg_publish(2)
        a.I("s_barrier")
        a.fence()
        a.label("L_h_p1_done")
        a.fence(False)
        a.vm = [(-1, set(), None), (-2, set(), None)]; a.lg = []
        self.rp = repack_setup(self)
        self.h_setup2()

    def h_setup2(self):
        a = self.a
        a.I("s_mov_b32 s91, s89")
        self.roles()
        a.M(f"""
        s_lshr_b32 s61, s{sWAVE}, 1
        s_and_b32 s62, s{sWAVE}, 1
        s_lshr_b32 s66, s{sB3}, 3
        s_add_u32 s67, s{sB3}, 2
        s_lshr_b32 s67, s67, 3
        s_sub_u32 s67, s67, s66
        v_bfe_u32 v2, v1, 4, 1
        v_mul_u32_u24 v2, s67, v2
        v_add_u32 v2, s66, v2
        s_mul_i32 s63, s61, 10
        s_add_u32 s63, s63, 10
        v_add_u32 v3, s63, v2
        v_and_b32 v4, 15, v1
        v_lshl_add_u32 v4, v4, 1, s62
        v_lshl_add_u32 v5, v3, 5, v4
        v_lshlrev_b32 v5, 7, v5
        v_add_u32 v19, {F1_OFF}, v5
        v_and_b32 v4, {3 if self.opt.get('f2g', 1) else 1}, v4
        s_lshl_b32 s63, s{sQB}, 2
        v_add_u32 v4, s63, v4
        v_lshl_add_u32 v3, v3, 5, v4
        v_lshl_add_u32 v2, v2, 5, s{sBLK}
        v_cmp_gt_u32 vcc, 32, v1
        v_cndmask_b32 v2, v2, v3, vcc
        v_lshlrev_b32 v2, 7, v2
        v_add_u32 v30, {F1_OFF}, v2
        s_lshl_b32 s66, s61, 2
        v_xor_b32 v2, s66, v1
        v_lshlrev_b32 v{vKV+1}, 4, v2
        s_lshl_b32 s66, s61, 3
        v_xor_b32 v2, s66, v1
        v_lshlrev_b32 v{vKV+2}, 4, v2
        s_mul_i32 s66, s61, 80
        s_add_u32 s66, s66, 80
        s_add_u32 s66, s66, s{sB3}
        s_lshl_b32 s67, s62, 8
        s_add_u32 s66, s66, s67
        s_lshl_b32 s67, s{sQB}, 10
        s_add_u32 s66, s66, s67
        s_lshl_b32 s{sKVS}, s66, 10
        s_mul_i32 s{sKVD}, s62, 7168
        s_mul_i32 s66, s61, 3072
        s_add_u32 s{sKVD}, s{sKVD}, s66
        s_add_u32 s{sKVD}, s{sKVD}, {RING}
        s_mul_i32 s66, s{sCB3}, 5
        s_mul_i32 s67, s{sWAVE}, {14*40}
        s_add_u32 s67, s67, s66
        s_lshl_b32 s67, s67, 10
        s_add_u32 s{sW2S}, s67, {W2F_OFF}
        s_mul_i32 s67, s{sWAVE}, {5*40}
        s_add_u32 s67, s67, s66
        s_lshl_b32 s67, s67, 10
        s_add_u32 s{sWOS}, s67, {WOF_OFF}
        s_mul_i32 s63, s5, 7
        s_mul_i32 s67, s{sWAVE}, 112
        s_add_u32 s67, s67, s63
        s_lshl_b32 s67, s67, 10
        s_add_u32 s{sW1S}, s67, {W1F_OFF}
        s_mul_i32 s7, s{sWAVE}, 7168
        v_and_b32 v2, 1, v1
        v_lshrrev_b32 v3, 1, v1
        v_lshl_add_u32 v4, v2, 2, s66
        v_lshrrev_b32 v4, 3, v4
        v_mul_u32_u24 v5, 6, v2
        v_add_u32 v5, s63, v5
        v_lshrrev_b32 v5, 3, v5
        s_mul_i32 s67, s{sWAVE}, 14
        v_add_u32 v6, s67, v3
        v_min_u32 v6, 53, v6
        v_mad_u32_u24 v6, v6, 5, v4
        s_mul_i32 s67, s{sWAVE}, 5
        s_add_u32 s67, s67, {54-14}
        v_add_u32 v7, s67, v3
        v_mad_u32_u24 v7, v7, 5, v4
        v_cmp_le_u32 vcc, 14, v3
        v_cndmask_b32 v6, v6, v7, vcc
        v_subrev_u32 v7, 19, v3
        v_min_u32 v7, 4, v7
        v_lshl_add_u32 v7, v7, 2, s{sWAVE}
        v_mad_u32_u24 v7, v7, 14, v5
        v_add_u32 v7, 370, v7
        v_cmp_le_u32 vcc, 19, v3
        v_cndmask_b32 v6, v6, v7, vcc
        v_lshlrev_b32 v6, 7, v6
        v_add_u32 v29, {FR_OFF}, v6
        s_lshl_b32 s66, s{sJ}, 2
        s_add_u32 s66, s66, s{sWAVE}
        s_mul_i32 s67, s66, 5
        v_add_u32 v11, s67, v1
        v_lshlrev_b32 v11, 7, v11
        v_min_u32 v11, CODE_BYTES-64, v11
        s_lshl_b32 s67, s{sXCD}, 7
        s_add_u32 s66, s66, s67
        s_mul_i32 s67, s66, {54*128}
        s_add_u32 s67, s67, {H1_OFF}
        v_lshl_add_u32 v22, v1, 7, s67
        s_lshl_b32 s67, s66, 7
        s_add_u32 s67, s67, {ST_OFF}
        v_mov_b32 v2, s67
        v_cmp_le_u32 vcc, 54, v1
        v_cndmask_b32 v22, v22, v2, vcc
        s_mul_i32 s67, s66, {20*128}
        s_add_u32 s67, s67, {H_OFF}
        v_lshl_add_u32 v23, v1, 7, s67
        s_and_b32 s67, s89, 0xfffffc00
        s_sub_u32 s67, s67, {20*128}
        v_lshl_add_u32 v2, v1, 7, s67
        v_cmp_le_u32 vcc, 20, v1
        v_cndmask_b32 v23, v23, v2, vcc
        s_lshl_b32 s67, s66, 7
        s_add_u32 s67, s67, {F2_OFF - 28*131072}
        v_lshlrev_b32 v2, 17, v1
        v_add_u32 v2, s67, v2
        v_cmp_le_u32 vcc, 28, v1
        v_cndmask_b32 v23, v23, v2, vcc
        v_and_b32 v2, 7, v1
        s_lshl_b32 s66, s{sWAVE}, 3
        v_add_u32 v2, s66, v2
        v_lshl_add_u32 v2, v2, 5, s{sRB64}
        v_lshlrev_b32 v2, 7, v2
        v_add_u32 v2, {F0_OFF}, v2
        v_lshrrev_b32 v3, 3, v1
        v_cmp_eq_u32 vcc, {6 if self.opt.get("so3", 1) else 60}, v3
        v_cndmask_b32 v29, v29, v2, vcc
        s_lshl_b32 s66, s{sWAVE}, 8
        s_add_u32 s66, s66, {RING+6144}
        v_lshl_add_u32 v21, v1, 2, s66
        s_lshl_b32 s{sQS}, s{sBLK}, 8
        s_add_u32 s{sQS}, s{sQS}, s{sB3}
        s_lshl_b32 s{sQS}, s{sQS}, 10
        s_add_u32 s76, s4, {F0_OFF - F2_OFF}
        v_add_u32 v20, 4096, v{vKV}
        v_and_b32 v5, 3, v1
        v_mov_b32 v10, 0x3f80
        v_cmp_eq_u32 vcc, 0, v5
        v_cndmask_b32 v10, 0, v10, vcc
        """)

    def w2h(self, st, f): return 36 + 20*st + 4*f

    def h_rest(self):
        a = self.a
        SO3 = self.opt.get("so3", 1)
        for k in range(2 * NSLOT):
            a.I(f"ds_write_b32 v21, v10 offset:{k*7168}")
        kv = {}
        def kv_dma(c):
            a.I(f"s_add_u32 m0, s{sKVD}, {((c + KSL) % NSLOT) * SLOT}")
            a.I(f"s_xor_b32 s{sT0}, s{sKVS}, {c << 19}")
            for i in range(3):
                kv[c] = a.I(f"buffer_load_dwordx4 v{vKV+i}, {srd(sWS)}, s{sT0} offen offset:{1024*i} sc1 lds")
        def w2load(st):
            a.I(f"s_add_u32 s{sT1}, s{sW2S}, {st*40*1024}")
            for i in range(5):
                a.I(f"buffer_load_dwordx4 {vr(self.w2h(st,i),4)}, v{vKV if i < 4 else 20}, {srd(sWS)}, s{sT1} offen offset:{1024*(i%4)} sc1")
        def frag_dma(base, st, dst):
            a.I(f"s_add_u32 m0, s66, {dst}")
            a.I(f"s_add_u32 s{sT1}, s{base}, {st*40*1024}")
            for i in range(4): a.I(f"buffer_load_dwordx4 v{vKV}, {srd(sWS)}, s{sT1} offen offset:{1024*i} sc1 lds")
            a.I(f"s_add_u32 m0, s66, {dst+4096}")
            return a.I(f"buffer_load_dwordx4 v20, {srd(sWS)}, s{sT1} offen sc1 lds")
        def thin(k):
            m = ((1 << 14) - 1) << (14 * k) if k < 4 else (1 << 31) - 1
            a.I(f"s_mov_b32 exec_lo, {hex(m & 0xffffffff)}")
            a.I(f"s_mov_b32 exec_hi, {hex(m >> 32)}")
            a.I(f"buffer_load_dword v{4+k}, v{22 if k < 4 else 23}, {srd(sWS)}, 0 offen sc1")
            a.I("s_mov_b64 exec, -1")
        def ctouch():
            if not self.opt.get("ctouch", 1): return
            a.I("s_mov_b64 exec, 0x1f")
            a.I("global_load_dword v12, v11, s[92:93]")
            a.I("s_mov_b64 exec, -1")
        if self.opt.get("ackbar", 1): self.bar("acked")
        self.poll([30], 2)
        kv_dma(0)
        a.I(f"s_mul_i32 s66, s{sWAVE}, 3072")
        a.I(f"s_add_u32 m0, s66, {QST}")
        for i in range(3): q = a.I(f"buffer_load_dwordx4 v{vKV}, {srd(sWS)}, s{sQS} offen offset:{1024*i} sc1 lds")
        if self.opt.get('f2g', 1): kv_dma(1)
        a.wait_vm(q)
        a.I("s_waitcnt lgkmcnt(0)")
        self.bar("first")
        self.poll([19], 2, False)
        if not self.opt.get('f2g', 1): kv_dma(1)
        kv_dma(2); kv_dma(3)
        a.wait_vm(kv[1])
        self.bar("kv1")
        ctouch()
        a.I("s_mov_b32 s75, s89")
        a.I("s_mov_b32 s89, s91")
        for it in self.rp[0]: it()
        if SO3:
            for k in range(4): a.I(f"v_mov_b32 v{172+k}, -1")
            a.I(f"buffer_store_dwordx4 v[172:175], v{vQ0}, {srd(sWS)}, s88 offen sc1")
            a.I(f"buffer_store_dwordx4 v[172:175], v{vQ0}, {srd(sWS)}, s88 offen offset:512 sc1")
            a.I(f"buffer_store_dwordx2 v[172:173], v{vKV}, {srd(sWS)}, s75 offen sc1")
        a.wait_vm(kv[3])
        self.bar("kv2")
        kv_dma(4); kv_dma(5)
        if self.opt.get("ctouch", 1) > 1: ctouch()
        self.rp[1]()
        for k in range(8):
            a.I(f"v_xor_b32 v2, {32*k}, v254")
            self.rp[2][k]()
        for k in range(8): self.rp[3][k]()
        for k in range(4): a.I(f"v_mov_b32 v{168+k}, 0x3f803f80")
        for k in range(8):
            a.I(f"v_mfma_f32_16x16x32_bf16 {vr(176+4*k,4)}, v[168:171], {vr(208+4*k,4)}, 0")
        a.I("v_lshrrev_b32 v3, 4, v1")
        a.I("v_lshlrev_b32 v2, 2, v1")
        for q in range(1, 4):
            a.I(f"v_cmp_eq_u32 vcc, {q}, v3")
            for hh in range(2):
                a.I(f"v_cndmask_b32 v{176+16*hh}, v{176+16*hh}, v{176+16*hh+4*q}, vcc")
        for hh in range(2): a.I(f"buffer_store_dword v{176+16*hh}, v2, {srd(sWS)}, s90 offen offset:{256*hh} sc1")
        rpst = a.vm[-1][0]
        a.wait_vm(kv[5])
        self.bar("kv4")
        kv_dma(6); kv_dma(7)
        a.wait_vm(rpst)
        self.signal(101, 2)
        if SO3: self.signal(76, 2)
        thin(0); thin(1)
        SCH = self.opt.get("sch", 0)
        if SCH:
            self.poll([29], 2, False)
            for st in range(0, 2): w2load(st)
        a.wait_vm(kv[7])
        self.bar("kv6")
        if not SCH: self.poll([29], 2, False)
        kv_dma(8); kv_dma(9)
        if self.opt.get("ctouch", 1) > 1: ctouch()
        a.I(f"s_mul_i32 s66, s{sWAVE}, 20480")
        for st in range(4): w = frag_dma(sWOS, st, 5120*st)
        if not SCH: w2load(0)
        a.wait_vm(w)
        self.bar("kv8")
        kv_dma(10); kv_dma(11)
        for st in range(2 if SCH else 1, 5): w2load(st)
        thin(2)
        ctouch()
        a.wait_vm(kv[11])
        self.bar("kv10")
        kv_dma(12); kv_dma(13)
        for st in range(5, 8): w2load(st)
        run(w1f_dma(self, 0, vKV))
        thin(3)
        if SCH: thin(4)
        a.wait_vm(kv[13])
        self.bar("kv12")
        kv_dma(14); kv_dma(15)
        if self.opt.get("ctouch", 1) > 1: ctouch()
        for st in range(8, 11): w2load(st)
        run(w1f_dma(self, 1, vKV))
        if not SCH: thin(4)
        a.wait_vm(kv[15])
        self.bar("kv14")
        a.I(f"s_mul_i32 s66, s{sWAVE}, 5120")
        frag_dma(sWOS, 4, WST)
        run(w1f_dma(self, 2, vKV))
        CP = 24
        a.M(f"""
        v_lshrrev_b32 v2, 3, v1
        v_mul_u32_u24 v3, 7168, v2
        v_and_b32 v9, 7, v1
        v_lshl_add_u32 v3, v9, 4, v3
        v_lshrrev_b32 v2, 5, v1
        v_lshl_add_u32 v9, v2, 30, v3
        s_mul_i32 s66, s5, 448
        s_mul_i32 s67, s{sWAVE}, 112
        s_add_u32 s66, s66, s67
        s_add_u32 s66, s66, {CS_OFF}
        s_add_u32 s67, s66, {8*7168}
        s_add_u32 s62, s66, {16*7168}
        buffer_load_dwordx4 {vr(CP,4)}, v3, {srd(sWS)}, s66 offen sc1
        buffer_load_dwordx4 {vr(CP+4,4)}, v3, {srd(sWS)}, s67 offen sc1
        buffer_load_dwordx4 {vr(CP+8,4)}, v9, {srd(sWS)}, s62 offen sc1
        """)
        if self.opt.get("rt2", 1):
            a.M(f"""
            s_mov_b32 exec_hi, 0
            buffer_load_dword v4, v23, {srd(sWS)}, 0 offen sc1
            s_mov_b32 exec_hi, -1
            buffer_load_dword v5, v22, {srd(sWS)}, 0 offen sc1
            v_min_u32 v2, 55, v1
            v_lshlrev_b32 v2, 7, v2
            s_add_u32 s66, s{sW1S}, {3*4*112*1024}
            s_add_u32 s67, s{sW1S}, {4*4*112*1024}
            buffer_load_dword v6, v2, {srd(sWS)}, s66 offen sc1
            buffer_load_dword v7, v2, {srd(sWS)}, s67 offen sc1
            """)
        a.I("s_waitcnt vmcnt(%d)" % (4 if self.opt.get("rt2", 1) else 0))
        self.bar("att_end")
        for e in range(4): a.I(f"v_add_f32 v{CP+e}, v{CP+e}, v{CP+4+e}")
        for e in range(4): a.I(f"v_add_f32 v{CP+e}, v{CP+e}, v{CP+8+e}")
        for e in range(4): a.I(f"v_add_f32_dpp v{CP+e}, v{CP+e}, v{CP+e} row_ror:8 row_mask:0xf bank_mask:0xf")
        for ops in zip(*[rg_ops(CP+e, CP+4+e) for e in range(4)]):
            for x in ops: a.I(x)
        vW, vA = 8, 12
        a.I("s_waitcnt vmcnt(0)")
        self.p5_addrs(vA, vW, 3, 4, list(range(9)))
        a.M(f"""
        v_and_b32 v2, 3, v1
        s_lshl_b32 s67, s{sWAVE}, 2
        s_lshr_b32 s66, s{sRB64}, 1
        s_lshl_b32 s66, s66, 4
        s_add_u32 s66, s66, s67
        v_add_u32 v2, s66, v2
        v_bfe_u32 v3, v1, 2, 1
        v_lshl_add_u32 v2, v2, 2, v3
        s_and_b32 s66, s{sRB64}, 1
        s_lshl_b32 s66, s66, 1
        v_add_u32 v2, s66, v2
        v_lshlrev_b32 v2, 7, v2
        v_add_u32 v17, {F4_OFF}, v2
        s_mul_i32 s66, s{sWAVE}, 112
        s_add_u32 s66, s66, 143360
        v_add_u32 v6, s66, v{vKV}
        s_mul_i32 s66, s{sWAVE}, 5120
        s_add_u32 s67, s66, 61440
        v_add_u32 v7, s67, v{vKV}
        """)
        W1T = self.opt.get("w1t", 1)
        self.bar("wo_read")
        if W1T == 0: run(w1f_dma(self, 3, vKV) + w1f_dma(self, 4, vKV))
        if W1T == 1: run(w1f_dma(self, 3, vKV))
        self.bar("red3_1")
        self.bar("red3_2")
        self.bar("red3_3")
        if W1T == 1: run(w1f_dma(self, 4, vKV))
        if W1T == 2: run(w1f_dma(self, 3, vKV) + w1f_dma(self, 4, vKV))
        self.bar("red3_done")
        a.M(f"""
        s_mov_b64 exec, 0x7f
        ds_write_b128 v6, {vr(CP,4)}
        s_mov_b64 exec, -1
        s_waitcnt vmcnt(0) lgkmcnt(0)
        """)
        self.bar("w1_mid")
        for k, st in enumerate((11, 12, 13)):
            frag_dma(sW2S, st, 20480*k)
            a.I("s_waitcnt vmcnt(0)")
        self.bar("w1_done")
        HS = self.opt.get("hs", 9)
        for k in range(11 - HS):
            for f in range(5): a.I(f"ds_write_b128 v7, {vr(self.w2h(HS+k,f),4)} offset:{20480*k+1024*f}")
        a.I("s_waitcnt lgkmcnt(0)")
        self.bar("w2_hand")
        slots = [20, 24, 28, 32] + list(range(36 + 20*HS, 216, 4))
        NUP = min(self.opt.get("nb5h", 6), len(slots) - 1)
        NB = NUP + 1
        accs = [216, 236, 216, 236]
        def areg(n): return slots[n % NB]
        def load(n):
            u, k = divmod(n, HS)
            a.I(f"buffer_load_dwordx4 {vr(areg(n),4)}, v{vA+u}, {srd(sWS)}, s{70+k} offen sc1")
        self.poll([17], 2)
        for n in range(NUP): load(n)
        if self.opt.get("pr5", 0): a.I("s_setprio 1")
        self.bar("h1_ready")
        wr = lambda u: [f"ds_write_b128 v{vW+u}, {vr(accs[u]+4*f,4)} offset:{1024*f}" for f in range(5)]
        def mid(name):
            def f():
                a.I("s_waitcnt lgkmcnt(0)")
                self.bar(name)
            return f
        last, _ = self.ksplit(HS, self.w2h, load, areg, None, NUP, accs, False, wr, {(2, self.opt.get("r5x", 2)): mid("red5x"), (3, 2): mid("red5a")})
        for x in last: a.I(x)
        a.I("s_waitcnt lgkmcnt(0)")
        self.bar("red5b")

    def build(self):
        a = self.a
        self.prologue()
        a.I(f"s_lshr_b32 s7, s{sWAVE}, 2")
        a.I(f"s_and_b32 s{sWAVE}, s{sWAVE}, 3")
        self.coords()
        a.I("s_cmp_eq_u32 s7, 0")
        a.I("s_cbranch_scc1 L_compute")
        state = (list(a.vm), list(a.lg))
        self.bars = []
        keep = self.stamps
        self.h_phase1(); self.h_rest()
        a.I("s_endpgm")
        self.stamps = keep
        cb, self.bars = self.bars, []
        a.vm, a.lg = state; a.hist = []
        a.label("L_compute")
        self.c_phase1(); self.c_phase2(); self.c_phase3(); self.c_phase4(); self.c_phase5()
        self.dump_stamps()
        a.label("L_end")
        a.I("s_endpgm")
        assert cb == self.bars, (cb, self.bars)
        n0 = len(a.lines)
        gen2.slow_path(self, scratch=SLOWS)
        i = 0
        while i < len(self.stubs):
            self.stubs[i](); i += 1
        head = open(f"cdna_kernels/{NAME}.s.ref").read().split("; Override launch")[0]
        return head + f"""; @launch grid=(256,1,1) block=(512,1,1) lds=163840
.amdgcn_target "amdgcn-amd-amdhsa--gfx950"
.text
.globl {KNAME}
.p2align 8
.type {KNAME},@function
{KNAME}:
""" + a.text() + f"""L_code_end:
.set CODE_BYTES, L_code_end-{KNAME}
.section .rodata,"a"
.p2align 6
.amdhsa_kernel {KNAME}
  .amdhsa_next_free_vgpr 256
  .amdhsa_next_free_sgpr 102
  .amdhsa_accum_offset 256
  .amdhsa_group_segment_fixed_size 0
  .amdhsa_kernarg_size 72
  .amdhsa_user_sgpr_count 2
  .amdhsa_user_sgpr_kernarg_segment_ptr 1
  .amdhsa_system_sgpr_workgroup_id_x 1
.end_amdhsa_kernel
"""

if __name__ == "__main__":
    import argparse
    ap = argparse.ArgumentParser()
    ap.add_argument("-o", default="out.s")
    ap.add_argument("--stamps", action="store_true")
    ap.add_argument("--ahead", type=int, default=3)
    ap.add_argument("--probe", default=None)
    ap.add_argument("--opt", default="")
    args = ap.parse_args()
    kw = {k: int(v) for k, v in (x.split('=') for x in args.opt.split(',') if x)}
    g = Gen4(stamps=args.stamps or args.probe is not None, p1_ahead=args.ahead,
             probe=tuple(map(int, args.probe.split(':'))) if args.probe else None, **kw)
    s = g.build()
    open(args.o, "w").write(s)
    print(f"stamps {g.nstamp} instrs {g.a.nins} nops {g.a.nnop} autowaits {g.a.nwait} bytes {len(s)}")
```

```python
import sys
from asmlib import Asm, vr
import gen as G0
from gen import *
import gen2
from gen2 import (SLOT, NSLOT, RING, RED, sH, sQB, sPAR, sB3, sBLK, sCB3, sRB64, sW1S, sKVS, sQS, sT0, sT1, sKVD, sW2S, sWOS,
                  vXR, sOWN, sOS, vH, rg_ops, check_data, red_addrs, run, w1f_dma, repack_setup, vKV, vK0, vK1, vV, vQ0, vFA)

QST = RING + 2 * SLOT
WST = RING
SLOWS = RING + SLOT
KSL = 3
sRB, sCT = (70, 72), (71, 73)
XS, WS0, NS1 = 16384, 65536, 4

class Gen4(Gen):
    def bar(self, name):
        self.a.I("s_barrier")
        self.bars.append(name)

    def reset(self):
        a = self.a
        a.vm = []; a.lg = []; a.hist = []

    def coords(self):
        self.a.M(f"""
        s_mul_i32 s66, s{sJ}, 6554
        s_lshr_b32 s66, s66, 16
        s_mul_i32 s67, s66, 10
        s_sub_u32 s67, s{sJ}, s67
        s_and_b32 s74, s{sXCD}, 3
        s_mul_i32 s74, s74, 3
        s_add_u32 s74, s74, s66
        s_add_u32 s{sRB[1]}, s74, 4
        s_lshr_b32 s74, s{sXCD}, 2
        s_mul_i32 s74, s74, 10
        s_add_u32 s74, s74, s67
        s_add_u32 s{sCT[1]}, s74, 10
        s_and_b32 s74, s{sXCD}, 2
        s_and_b32 s75, s{sJ}, 1
        s_add_u32 s74, s74, s75
        s_and_b32 s75, s{sXCD}, 1
        s_mul_i32 s75, s75, 15
        s_lshr_b32 s76, s{sJ}, 1
        s_add_u32 s75, s75, s76
        s_cmp_lt_u32 s{sXCD}, 4
        s_cselect_b32 s{sRB[0]}, s74, s{sRB[1]}
        s_cselect_b32 s{sCT[0]}, s75, s67
        """)

    def roles(self):
        self.a.M(f"""
        s_lshr_b32 s66, s{sJ}, 3
        s_lshl_b32 s{sRB64}, s{sXCD}, 2
        s_add_u32 s{sRB64}, s{sRB64}, s66
        s_mov_b32 s{sH}, s{sRB64}
        s_and_b32 s{sCB3}, s{sJ}, 7
        s_mov_b32 s{sQB}, s{sCB3}
        s_and_b32 s{sPAR}, s{sH}, 1
        s_lshr_b32 s66, s{sH}, 1
        s_mul_i32 s66, s66, 5
        s_lshl_b32 s67, s{sPAR}, 1
        s_add_u32 s{sB3}, s66, s67
        s_lshl_b32 s{sBLK}, s{sQB}, 2
        s_add_u32 s{sBLK}, s{sBLK}, s{sWAVE}
        s_and_b32 s5, s{sJ}, 15
        s_add_u32 s{sOWN}, s{sWAVE}, s{sCB3}
        s_and_b32 s{sOWN}, s{sOWN}, 3
        v_lshlrev_b32 v{vKV}, 4, v1
        v_and_b32 v2, 31, v1
        v_lshrrev_b32 v3, 5, v1
        v_lshlrev_b32 v2, 4, v2
        v_add_u32 v4, s{sPAR}, v3
        v_lshl_add_u32 v{vQ0}, v4, 10, v2
        s_mul_i32 s66, s{sBLK}, 80
        s_add_u32 s66, s66, s{sB3}
        s_lshl_b32 s66, s66, 10
        s_add_u32 s88, s66, {O_OFF}
        s_cmp_eq_u32 s{sPAR}, 0
        s_cselect_b32 s67, 2048, 8
        s_add_u32 s89, s67, s88
        s_lshl_b32 s4, s{sH}, 5
        s_add_u32 s4, s4, s{sBLK}
        s_lshl_b32 s4, s4, 7
        s_add_u32 s4, s4, {F2_OFF}
        """)

    def nonce_check(self, v, vz):
        a = self.a
        slow, back = self.lab("nz"), self.lab("nzb")
        a.I(f"v_readfirstlane_b32 s{sNONCE}, v{v}")
        a.I("s_nop 0")
        a.I(f"s_cmp_eq_u32 s{sNONCE}, 0")
        a.I(f"s_cbranch_scc1 {slow}")
        a.label(back)
        def stub():
            self.reset()
            lp = self.lab("nzl")
            a.label(slow)
            a.I("s_mov_b32 s44, 0")
            a.label(lp)
            a.M(f"""
            buffer_load_dword v{v}, v{vz}, {srd(sDBG)}, 0 offen sc1
            s_waitcnt vmcnt(0)
            v_readfirstlane_b32 s{sNONCE}, v{v}
            s_add_u32 s44, s44, 1
            s_cmp_gt_u32 s44, {SPIN_MAX}
            s_cbranch_scc1 {back}
            s_cmp_eq_u32 s{sNONCE}, 0
            s_cbranch_scc1 {lp}
            s_branch {back}
            """)
        self.stubs.append(stub)

    def c_phase1(self):
        a = self.a
        sWT, sWF = 75, 76
        vRX, vRW, vSEL = 252, 32, 44
        ACC, CSA, ST = (64, 96), (36, 40), (48, 56)
        FR = (128, 192)
        a.M(f"""
        s_lshl_b32 s66, s{sXCD}, 5
        s_add_u32 s66, s66, s{sJ}
        s_lshl_b32 s66, s66, 2
        s_add_u32 s66, s66, s{sWAVE}
        s_lshl_b32 s66, s66, 1
        v_lshrrev_b32 v2, 5, v1
        v_add_u32 v182, s66, v2
        v_mul_u32_u24 v180, 1280, v182
        v_and_b32 v2, 31, v1
        v_lshl_add_u32 v180, v2, 4, v180
        v_bfe_u32 v2, v1, 4, 1
        v_lshl_add_u32 v181, v2, 30, v180
        v_lshlrev_b32 v182, 4, v182
        v_mov_b32 v34, 0
        s_lshr_b32 s{sWT}, s{sWAVE}, 1
        s_and_b32 s{sWF}, s{sWAVE}, 1
        v_and_b32 v2, 31, v1
        v_lshrrev_b32 v3, 5, v1
        v_bfe_u32 v4, v1, 1, 3
        v_xor_b32 v4, v4, v3
        v_lshlrev_b32 v4, 4, v4
        v_lshl_add_u32 v4, v2, 7, v4
        s_lshl_b32 s66, s{sWT}, 13
        v_add_u32 v{vRX}, s66, v4
        v_xor_b32 v{vRX+1}, 32, v{vRX}
        v_xor_b32 v{vRX+2}, 64, v{vRX}
        v_xor_b32 v{vRX+3}, 96, v{vRX}
        v_bfe_u32 v4, v1, 2, 2
        v_lshl_add_u32 v5, v3, 3, v4
        v_lshlrev_b32 v5, 7, v5
        v_lshrrev_b32 v4, 1, v4
        v_xor_b32 v4, s{sWF}, v4
        v_lshl_add_u32 v5, v4, 6, v5
        v_bfe_u32 v4, v1, 4, 1
        v_lshl_add_u32 v5, v4, 5, v5
        v_and_b32 v6, 3, v1
        v_lshl_add_u32 v5, v6, 3, v5
        v_add_u32 v{vRW}, {WS0}, v5
        v_and_b32 v6, 15, v1
        v_lshlrev_b32 v4, 2, v4
        v_cmp_eq_u32 vcc, v6, v4
        v_mov_b32 v6, 0x3f803f80
        v_cndmask_b32 v{vSEL}, 0, v6, vcc
        v_cndmask_b32 v{vSEL+1}, 0, v6, vcc
        v_cndmask_b32 v{vSEL+2}, 0, v6, vcc
        v_cndmask_b32 v{vSEL+3}, 0, v6, vcc
        v_lshlrev_b32 v33, 4, v2
        v_lshl_add_u32 v13, v3, 10, v33
        """)
        for p in range(2):
            a.M(f"""
            s_lshl_b32 s74, s{sRB[p]}, 1
            s_add_u32 s74, s74, s{sWT}
            s_lshl_b32 s67, s{sCT[p]}, 1
            s_add_u32 s67, s67, s{sWF}
            s_lshl_b32 s66, s74, 6
            s_add_u32 s66, s66, s67
            s_lshl_b32 s{78+p}, s66, 12
            s_lshl_b32 s{80+p}, s74, 10
            s_add_u32 s{80+p}, s{80+p}, {S1_OFF}
            s_lshl_b32 s67, s67, 5
            s_add_u32 s67, s67, s74
            s_lshl_b32 s67, s67, 7
            s_add_u32 s{82+p}, s67, {F1_OFF}
            """)
        a.M(f"""
        s_cmp_lt_u32 s{sCT[0]}, 10
        s_cselect_b32 s84, {hex(f2u(QSCALE))}, 1.0
        """)
        self.prologue_finish()
        self.stamp()
        self.publish_nonce()
        def row_loads():
            for c in range(3):
                a.I(f"buffer_load_dwordx4 {vr(240+4*c,4)}, v{180 + (c == 2)}, {srd(sX)}, 0 offen offset:{512*c}")
        def stat_calc():
            a.I("v_mov_b32 v185, 0x3f803f80")
            for k in range(12):
                a.I(f"v_dot2_f32_bf16 v183, v{240+k}, v185, {'0' if k == 0 else 'v183'}")
                a.I(f"v_dot2_f32_bf16 v184, v{240+k}, v{240+k}, {'0' if k == 0 else 'v184'}")
            for sh in (8, 4, 2, 1):
                for r in (183, 184):
                    a.I(f"v_add_f32_dpp v{r}, v{r}, v{r} row_ror:{sh} row_mask:0xf bank_mask:0xf")
            a.M("""
            v_mov_b32 v185, v183
            v_mov_b32 v186, v184
            v_permlane16_swap_b32 v183, v185
            v_permlane16_swap_b32 v184, v186
            v_add_f32 v183, v183, v185
            v_add_f32 v184, v184, v186
            """)
            self.ln_stats(183, 184, 176, 177, 185)
        def nonce_load(): a.I(f"buffer_load_dword v35, v34, {srd(sDBG)}, 0 offen sc1")
        def stat_publish():
            self.nonce_check(35, 34)
            a.M(f"""
            s_mov_b32 s46, {S1_OFF}
            v_mov_b32 v178, s{sNONCE}
            v_mov_b32 v179, s{sNONCE}
            s_mov_b32 exec_lo, 1
            s_mov_b32 exec_hi, 1
            buffer_store_dwordx4 v[176:179], v182, {srd(sWS)}, s46 offen sc1
            s_mov_b64 exec, -1
            """)
        self.c_setup2()
        row_loads()
        vm0 = list(a.vm)
        a.M(f"""
        s_cmp_ge_u32 s{sJ}, 30
        s_cbranch_scc1 L_c_idle
        """)
        def xf(g, u): return FR[(g // 4) & 1] + 12 * (g % 4) + 4 * u
        def wf(g): return FR[(g // 4) & 1] + 12 * (g % 4) + 8
        def reads(g):
            c, ks = divmod(g, 4)
            it = [lambda u=u: a.I(f"ds_read_b128 {vr(xf(g,u),4)}, v{vRX+ks} offset:{(c%NS1)*XS+4096*u}") for u in range(2)]
            it += [lambda rd=rd: a.I(f"ds_read_b64_tr_b16 {vr(wf(g)+2*rd,2)}, v{vRW} offset:{(c%NS1)*8192+ks*2048+rd*512}") for rd in range(2)]
            return [it[0], it[2], it[3], it[1]]
        def stat_loads(p):
            for tu in range(2):
                a.I(f"buffer_load_dwordx4 {vr(ST[p]+4*tu,4)}, v33, {srd(sWS)}, s{80+p} offen offset:{512*tu} sc1")
        EA, EB = 240, 244
        def stat_check(p):
            retry, ok = self.lab("st"), self.lab("sto")
            chk = f"""
            v_cmp_ne_u32 vcc, s{sNONCE}, v{ST[p]+2}
            v_cmp_ne_u32 s[46:47], s{sNONCE}, v{ST[p]+6}
            s_or_b64 vcc, vcc, s[46:47]
            """
            a.M(chk)
            a.I(f"s_cbranch_scc1 {retry}")
            a.label(ok)
            def stub():
                self.reset()
                lp = self.lab("stl")
                a.label(retry)
                a.I("s_mov_b32 s44, 0")
                a.label(lp)
                stat_loads(p)
                a.I("s_waitcnt vmcnt(0)")
                a.M(chk)
                a.M(f"""
                s_cbranch_scc0 {ok}
                s_add_u32 s44, s44, 1
                s_cmp_gt_u32 s44, {SPIN_MAX}
                s_cbranch_scc0 {lp}
                s_branch {ok}
                """)
            self.stubs.append(stub)
        def pre_ops(p):
            ops = [f"v_mov_b32 v{EA+2}, 0", f"v_mov_b32 v{EA+3}, 0"]
            for u in range(2):
                st = ST[p] + 4*u
                ops += [f"v_cvt_pk_bf16_f32 v{EB+4*u}, -v{st+1}, -v{st+1}", f"v_mov_b32 v{EB+4*u+1}, v{EB+4*u}",
                        f"v_mov_b32 v{EB+4*u+2}, 0", f"v_mov_b32 v{EB+4*u+3}, 0"]
                if p == 0: ops.append(f"v_mul_f32 v{st}, s84, v{st}")
            return ops
        def epilogue(p, packed):
            c0 = CSA[p]
            ops = [f"v_and_b32 v2, 0xffff0000, v{c0}", f"v_sub_f32 v3, v{c0}, v2", "v_and_b32 v4, 0xffff0000, v3",
                   "v_sub_f32 v3, v3, v4", f"v_cvt_pk_bf16_f32 v{EA}, v2, v4", f"v_cvt_pk_bf16_f32 v{EA+1}, v3, 0"]
            for tu in range(2):
                d = ACC[p] + 16*tu
                ops.append(f"v_mfma_f32_32x32x16_bf16 {vr(d,16)}, {vr(EA,4)}, {vr(EB+4*tu,4)}, {vr(d,16)}")
            if not packed: ops += [None] * 6
            for tu in range(2):
                d = ACC[p] + 16*tu; st = ST[p] + 4*tu; q = d
                if packed:
                    ops += [f"v_pk_mul_f32 {vr(d+2*k,2)}, {vr(d+2*k,2)}, {vr(st,2)} op_sel:[0,0] op_sel_hi:[1,0]" for k in range(8)]
                else:
                    ops += [f"v_mul_f32 v{d+k}, v{st}, v{d+k}" for k in range(16)]
                ops += [f"v_cvt_pk_bf16_f32 v{q+k}, v{d+2*k}, v{d+2*k+1}" for k in range(8)]
                for pr in range(2):
                    ops += [f"v_permlane32_swap_b32 v{q+4*pr}, v{q+4*pr+2}", f"v_permlane32_swap_b32 v{q+4*pr+1}, v{q+4*pr+3}"]
                ops += [f"buffer_store_dwordx4 {vr(q+4*pr,4)}, v13, {srd(sWS)}, s{78+p} offen offset:{2048*pr+512*tu} sc1" for pr in range(2)]
            return ops
        if self.opt.get("prio", 1): a.I(f"s_setprio {self.opt.get('prio', 1)}")
        self.bar("p1_0")
        self.stamp()
        for g in range(4):
            for it in reads(g): it()
        fill = []
        rd = []
        SIG = self.opt.get("sig", 52)
        for g in range(80):
            p, gl = divmod(g, 40)
            c, ks = divmod(g, 4)
            if ks == 0: a.I("s_waitcnt lgkmcnt(0)")
            for tu in range(2):
                d = ACC[p] + 16*tu
                a.I(f"v_mfma_f32_32x32x16_bf16 {vr(d,16)}, {vr(wf(g),4)}, {vr(xf(g,tu),4)}, {'0' if gl == 0 else vr(d,16)}")
                if tu == 0 and g == self.opt.get("scg", 8): stat_calc()
                if tu == 0 and ks == 0 and c < 19:
                    self.bar(f"p1_{c+1}")
                    if self.fine and c % 2: self.stamp()
                    rd = sum([reads(4*(c+1) + k) for k in range(4)], [])
                n = 0
                while rd and n < 4:
                    rd.pop(0)(); n += 1
                if tu == 1:
                    if g == 4: nonce_load()
                    if g == self.opt.get("pub", 14): stat_publish()
                    if gl == self.opt.get("gs", 30): stat_loads(p)
                    if gl == 38:
                        stat_check(p)
                        fill += pre_ops(p)
                    if g == 40: fill += [None] * 4 + epilogue(0, False)
                    if g == SIG:
                        assert not fill
                        a.I("s_waitcnt vmcnt(0)")
                        self.signal(82, 2)
                while fill and n < self.opt.get('nf', 8):
                    x = fill.pop(0); n += 1
                    if x: a.I(x)
            a.I(f"v_mfma_f32_16x16x32_bf16 {vr(CSA[p],4)}, {vr(vSEL,4)}, {vr(wf(g),4)}, {'0' if gl == 0 else vr(CSA[p],4)}")
        self.stamp()
        for x in fill + epilogue(1, True): a.I(x)
        self.stamp()
        a.I("s_branch L_c_p1_done")
        a.vm = vm0; a.lg = []
        a.label("L_c_idle")
        a.fence(False)
        stat_calc()
        nonce_load()
        stat_publish()
        a.I(f"s_mov_b32 s83, {OOB}")
        if self.opt.get("prio", 1): a.I(f"s_setprio {self.opt.get('prio', 1)}")
        a.fence()
        a.label("L_c_p1_done")
        a.fence(False)
        a.vm = [(-1 - i, set(), None) for i in range(4)]; a.lg = []
        self.qkv_store = -4

    def c_setup2(self):
        a = self.a
        self.roles()
        a.M(f"""
        v_add_u32 v{vK0}, {RING}, v{vQ0}
        s_cmp_eq_u32 s{sPAR}, 0
        s_cselect_b32 s63, 2048, 0
        v_add_u32 v31, s63, v2
        v_add_u32 v4, 6144, v2
        v_cmp_gt_u32 vcc, 32, v1
        v_cndmask_b32 v{vK1}, v4, v31, vcc
        v_add_u32 v{vK1}, {RING}, v{vK1}
        v_bfe_u32 v4, v1, 4, 1
        v_and_b32 v5, 3, v1
        v_lshl_add_u32 v4, v4, 2, v5
        v_lshrrev_b32 v5, 1, v4
        v_add_u32 v6, s{sPAR}, v5
        s_lshr_b32 s63, s63, 10
        v_mov_b32 v7, s63
        v_cmp_eq_u32 vcc, 2, v5
        v_cndmask_b32 v6, v6, v7, vcc
        v_and_b32 v8, 1, v4
        v_xor_b32 v9, s{sPAR}, v8
        v_cndmask_b32 v8, v8, v9, vcc
        v_cmp_le_u32 vcc, 5, v4
        v_cndmask_b32 v6, v6, 3, vcc
        v_cndmask_b32 v8, v8, 0, vcc
        v_cmp_eq_u32 vcc, 5, v4
        v_cndmask_b32 v8, v8, 1, vcc
        v_bfe_u32 v9, v1, 2, 2
        v_lshl_add_u32 v9, v3, 2, v9
        v_lshlrev_b32 v10, 2, v6
        v_xor_b32 v9, v9, v10
        v_lshlrev_b32 v9, 4, v9
        v_lshl_add_u32 v9, v6, 10, v9
        v_lshl_add_u32 v9, v8, 3, v9
        v_add_u32 v{vV}, {RING+3072}, v9
        v_xor_b32 v{vV+1}, 128, v{vV}
        s_add_u32 s67, s{sOWN}, 1
        s_and_b32 s67, s67, 3
        s_lshl_b32 s66, s{sRB64}, 2
        s_add_u32 s66, s66, s67
        s_lshl_b32 s66, s66, 4
        v_and_b32 v2, 15, v1
        v_add_u32 v2, s66, v2
        v_mul_u32_u24 v2, 1280, v2
        v_lshrrev_b32 v3, 4, v1
        v_lshl_add_u32 v2, v3, 3, v2
        s_mul_i32 s66, s{sCB3}, 160
        v_add_u32 v14, s66, v2
        s_mul_i32 s66, s{sWAVE}, 3072
        s_add_u32 s66, s66, {QST}
        v_add_u32 v17, s66, v{vQ0}
        v_add_u32 v18, s66, v31
        s_mul_i32 s66, s{sWAVE}, 20480
        v_add_u32 v19, s66, v{vKV}
        s_mul_i32 s66, s{sWAVE}, 5120
        s_cmp_lt_u32 s{sWAVE}, 2
        s_cselect_b32 s67, 0, {4*SLOT - 10240}
        s_add_u32 s66, s66, s67
        s_add_u32 s66, s66, {WST}
        v_add_u32 v21, s66, v{vKV}
        s_mov_b32 s61, 0
        """)
        self.xg_addr(20)

    def wor(self, st, f):
        return 176 + 20*st + 4*f if st < 4 else 52 + 4*f

    def c_phase2(self):
        a = self.a
        Q, KB, VB, P, S, O = 32, 48, 64, 80, 96, 128
        a.M(f"""
        s_cmp_eq_u32 s{sPAR}, 0
        s_cselect_b32 s62, -1, 0
        s_cselect_b32 s64, 0, -1
        s_mov_b32 s63, 0
        s_mov_b32 s65, 0
        """)
        self.bar("first")
        self.stamp()
        def koff(i):
            c, t = divmod(i, 4)
            return ((c + KSL) % NSLOT) * SLOT + (t >> 1) * 7168 + (t & 1) * 512
        def kread(i):
            b = KB + 8 * (i & 1)
            return [lambda: a.I(f"ds_read_b128 {vr(b,4)}, v{vK0} offset:{koff(i)}"),
                    lambda: a.I(f"ds_read_b128 {vr(b+4,4)}, v{vK1} offset:{koff(i)}")]
        def vread(i):
            b = VB + 8 * (i & 1)
            return [lambda j=j, rd=rd: a.I(f"ds_read_b64_tr_b16 {vr(b+4*j+2*rd,2)}, v{vV+rd} offset:{koff(i)+256*j}")
                    for j in range(2) for rd in range(2)]
        def qk(t, i):
            b = KB + 8 * (i & 1); s = S + 16 * t; q = Q + 8 * t
            return [f"v_mfma_f32_32x32x16_bf16 {vr(s,16)}, {vr(b,4)}, {vr(q,4)}, 0",
                    f"v_mfma_f32_32x32x16_bf16 {vr(s,16)}, {vr(b+4,4)}, {vr(q+4,4)}, {vr(s,16)}"]
        def pv(t, i):
            b = VB + 8 * (i & 1); o = O + 16 * t; p = P + 8 * t
            c0 = "0" if i == 0 else vr(o, 16)
            return [f"v_mfma_f32_32x32x16_bf16 {vr(o,16)}, {vr(b,4)}, {vr(p,4)}, {c0}",
                    f"v_mfma_f32_32x32x16_bf16 {vr(o,16)}, {vr(b+4,4)}, {vr(p+4,4)}, {vr(o,16)}"]
        for t in range(2):
            a.I(f"ds_read_b128 {vr(Q+8*t+4,4)}, v18 offset:{512*t}")
        for t in range(2):
            a.I(f"ds_read_b128 {vr(Q+8*t,4)}, v17 offset:{512*t}")
        for it in kread(0) + kread(1) + vread(0): it()
        for t in range(2):
            for k in range(4):
                m = "s[62:63]" if k < 2 else "s[64:65]"
                a.I(f"v_cndmask_b32 v{Q+8*t+4+k}, 0, v{Q+8*t+4+k}, {m}")
        for t in range(2):
            for m in qk(t, 0): a.I(m)
        a.I("s_mov_b32 s62, 0")
        a.I("s_mov_b32 s63, -1")
        for t in range(2):
            s = S + 16 * t
            a.I(f"v_max3_f32 v{2+t}, v{s}, v{s+1}, v{s+2}")
            for k in range(3, 15, 2):
                a.I(f"v_max3_f32 v{2+t}, v{2+t}, v{s+k}, v{s+k+1}")
            a.I(f"v_max_f32 v{2+t}, v{2+t}, v{s+15}")
            a.I(f"v_mov_b32 v{4+t}, v{2+t}")
            a.I(f"v_permlane32_swap_b32 v{2+t}, v{4+t}")
            a.I(f"v_max_f32 v{2+t}, v{2+t}, v{4+t}")
            a.I(f"v_cvt_pk_bf16_f32 v{2+t}, -v{2+t}, 0")
            a.I(f"v_cndmask_b32 v{Q+8*t+4}, v{Q+8*t+4}, v{2+t}, s[62:63]")
            if t == 0:
                for m in qk(0, 0): a.I(m)
        lastfill = [None]
        extra = []
        def half(t, mf, fill):
            s = S + 16 * t; p = P + 8 * t
            mf = list(mf); fill = list(fill)
            for q in range(4):
                if mf: a.I(mf.pop(0))
                if fill: lastfill[0] = fill.pop(0)()
                elif extra:
                    a.I(extra.pop(0))
                    if extra: a.I(extra.pop(0))
                for k in range(4):
                    a.I(f"v_exp_f32 v{s+4*q+k}, v{s+4*q+k}")
                if q > 0:
                    for k in range(2):
                        a.I(f"v_cvt_pk_bf16_f32 v{p+2*(q-1)+k}, v{s+4*(q-1)+2*k}, v{s+4*(q-1)+2*k+1}")
            assert not fill and not mf
            for k in range(2):
                a.I(f"v_cvt_pk_bf16_f32 v{p+6+k}, v{s+12+2*k}, v{s+12+2*k+1}")
        self.stamp()
        half(0, qk(1, 0), [])
        for i in range(64):
            if lastfill[0] is not None: a.wait_lg(lastfill[0])
            if i == 2 or ((i + 2) % 8 == 0 and i + 2 < 64):
                c = (i + 2) // 4
                assert not extra
                self.bar(f"kv{c}")
                if self.opt.get("att"): self.stamp()
                if c == 8:
                    extra += [f"ds_read_b128 {vr(self.wor(st,f),4)}, v19 offset:{5120*st+1024*f}" for st in range(4) for f in range(5)]
            if i == self.opt.get("sg2", 1):
                a.I("s_waitcnt vmcnt(0)")
                self.signal(83, 2)
            if i == 10:
                extra += [f"buffer_load_dwordx2 {vr(vXR+2*f,2)}, v14, {srd(sX)}, 0 offen offset:{32*f}" for f in range(5)]
                extra += [f"buffer_load_dword v15, v20, {srd(sWS)}, 0 offen sc1"]
            if i == 63: self.bar("att_end")
            kr = kread(i + 2) if i + 2 < 64 else []
            vrd = vread(i + 1) if i + 1 < 64 else []
            mfb = (qk(0, i + 1) if i + 1 < 64 else []) + pv(0, i)
            fl = kr + vrd
            half(1, mfb, fl[:4])
            if i + 1 < 64:
                half(0, qk(1, i + 1) + pv(1, i), fl[4:])
        self.stamp()
        for m in pv(1, 63): a.I(m)
        a.label("L_slow_back")
        a.I(f"s_mov_b32 s66, {hex(f2u(2.0**100))}")
        a.I(f"s_mov_b32 s67, {hex(f2u(2.0**-30))}")
        for t in range(2):
            o = O + 16 * t; p = S + 8 * t
            a.I(f"v_rcp_f32 v{2+2*t}, v{o+12}")
            a.I(f"v_cmp_nge_f32 s[{62+2*t}:{63+2*t}], v{o+12}, s67")
            for k in range(0, 12, 2):
                a.I(f"v_pk_mul_f32 {vr(o+k,2)}, {vr(o+k,2)}, {vr(2+2*t,2)} op_sel:[0,0] op_sel_hi:[1,0]")
            for k in range(6):
                a.I(f"v_cvt_pk_bf16_f32 v{p+k}, v{o+2*k}, v{o+2*k+1}")
            for k in range(3):
                a.I(f"v_pk_add_f32 {vr(o+4*k,2)}, {vr(o+4*k,2)}, {vr(o+4*k+2,2)}")
            a.I(f"v_permlane32_swap_b32 v{p}, v{p+2}")
            a.I(f"v_permlane32_swap_b32 v{p+1}, v{p+3}")
            a.I(f"v_pk_add_f32 {vr(o,2)}, {vr(o,2)}, {vr(o+4,2)}")
            a.I(f"v_pk_add_f32 {vr(o,2)}, {vr(o,2)}, {vr(o+8,2)}")
            a.I(f"v_add_f32 v{o}, v{o}, v{o+1}")
            a.I(f"v_fma_f32 v{o}, v{o}, 0, v{o+12}")
            if t == 0:
                a.I(f"v_cmp_nle_f32 vcc, v{o}, s66")
                a.I("s_or_b64 s[62:63], s[62:63], vcc")
        a.M(f"""
        v_cmp_nle_f32 vcc, v{O+16}, s66
        s_or_b64 s[62:63], s[62:63], s[64:65]
        v_permlane32_swap_b32 v{S+4}, v{S+12}
        v_permlane32_swap_b32 v{S+5}, v{S+13}
        s_or_b64 vcc, vcc, s[62:63]
        s_cbranch_scc1 L_slow
        """)
        a.label("L_slow_done")
        a.M(f"""
        buffer_store_dwordx4 {vr(S,4)}, v{vQ0}, {srd(sWS)}, s88 offen sc1
        buffer_store_dwordx4 {vr(S+8,4)}, v{vQ0}, {srd(sWS)}, s88 offen offset:512 sc1
        buffer_store_dwordx2 {vr(S+4,2)}, v{vKV}, {srd(sWS)}, s89 offen sc1
        """)
        self.stamp()
        self.slow_args = dict(Q=Q, KB=KB, VB=VB, P=P, S=S, O=O, vK0=vQ0, vV=vV, vKV=vKV)

    def ksplit(self, nst, wreg, load, areg, chk, nup, accs, cinit0, wr, hooks, fillers=()):
        a = self.a
        total = 4 * nst
        pendw = []
        fillers = list(fillers)
        late = []
        for u in range(4):
            acc = accs[u]
            for st in range(nst):
                n = u * nst + st
                if (u, st) in hooks:
                    assert not pendw
                    late = hooks[(u, st)]() or []
                for f in range(5):
                    cc = "0" if (st == 0 and not (u == 0 and cinit0)) else vr(acc + 4*f, 4)
                    a.I(f"v_mfma_f32_16x16x32_bf16 {vr(acc+4*f,4)}, {vr(wreg(st,f),4)}, {vr(areg(n),4)}, {cc}")
                    if chk and f == 3 and nup <= n + 1 < total:
                        check_data(self, chk(n + 1), lambda n=n: [load(k) for k in range(n + 1, min(n + 1 + nup, total))])
                    if f == 0 and n + nup < total: load(n + nup)
                    elif f == 4 and n + 1 < total and not late and not pendw: pass
                    elif pendw:
                        if st >= 1 or f >= 3 or (pendw[0].startswith("v_") and f >= 2):
                            k = 0
                            while pendw and k < 4:
                                x = pendw.pop(0); a.I(x)
                                k += 1 if x.startswith("v_") else 4
                    elif late:
                        for _ in range(3):
                            if late:
                                x = late.pop(0)
                                if x: a.I(x)
                    elif fillers and n >= nup + 1:
                        a.I(fillers.pop(0))
            assert not pendw
            pendw = wr(u) or []
        return pendw, [x for x in late if x] + fillers

    def c_phase3(self):
        a = self.a
        AF = 72
        vRW, vRR, vA = 8, 11, 12
        accs = [32, AF, AF + 20, 32]
        SO3 = self.opt.get("so3", 0)
        ostore = a.vm[-1][0]
        self.xg_mode(15)
        for f in range(5): a.I(f"ds_read_b128 {vr(self.wor(4,f),4)}, v21 offset:{1024*f}")
        for r in range(10):
            a.I(f"v_lshlrev_b32 v{accs[0]+2*r}, 16, v{vXR+r}")
            a.I(f"v_and_b32 v{accs[0]+2*r+1}, 0xffff0000, v{vXR+r}")
        a.M(f"""
        v_lshrrev_b32 v2, 4, v1
        v_and_b32 v3, 15, v1
        v_lshlrev_b32 v3, 4, v3
        v_lshl_add_u32 v3, v2, 10, v3
        """)
        for u in range(4):
            a.M(f"""
            s_add_u32 s66, s{sOWN}, {u+1}
            s_and_b32 s66, s66, 3
            s_lshl_b32 s67, s66, 8
            v_add_u32 v{vA+u}, s67, v3
            s_mul_i32 s66, s66, 5120
            s_add_u32 s66, s66, 143360
            v_add_u32 v{vRW+u}, s66, v{vKV}
            """)
        a.M(f"""
        v_and_b32 v2, 7, v1
        s_lshl_b32 s66, s{sWAVE}, 3
        v_add_u32 v2, s66, v2
        v_lshl_add_u32 v2, v2, 5, s{sRB64}
        v_lshlrev_b32 v2, 7, v2
        v_add_u32 v{vFA}, {F2_OFF}, v2
        s_mul_i32 s62, s{sRB64}, 80
        s_mul_i32 s66, s{sWAVE}, 20
        s_add_u32 s62, s62, s66
        s_lshl_b32 s62, s62, 10
        s_add_u32 s62, s62, {O_OFF}
        s_add_u32 s63, s62, 4096
        s_add_u32 s64, s62, 8192
        s_add_u32 s65, s62, 12288
        s_add_u32 s58, s62, 16384
        s_lshl_b32 s66, s{sRB64}, 2
        s_add_u32 s66, s66, s{sOWN}
        s_lshl_b32 s66, s66, 4
        v_and_b32 v5, 15, v1
        v_add_u32 v24, s66, v5
        v_lshlrev_b32 v24, 6, v24
        v_bfe_u32 v2, v1, 4, 1
        v_lshrrev_b32 v3, 5, v1
        v_lshl_add_u32 v4, v2, 1, v3
        v_lshlrev_b32 v5, 4, v5
        v_lshl_add_u32 v25, v4, 10, v5
        v_lshl_add_u32 v5, v3, 10, v5
        v_lshl_add_u32 v26, v2, 3, v5
        s_mul_i32 s66, s{sRB64}, 80
        s_mul_i32 s67, s{sCB3}, 10
        s_add_u32 s66, s66, s67
        s_lshl_b32 s66, s66, 10
        s_lshl_b32 s67, s{sOWN}, 8
        s_add_u32 s66, s66, s67
        s_add_u32 s54, s66, {H_OFF}
        s_add_u32 s55, s54, 4096
        s_add_u32 s56, s54, 8192
        s_lshl_b32 s59, s{sCB3}, 3
        s_add_u32 s59, s59, {ST_OFF}
        v_mov_b32 v19, 0x3f803f80
        """)
        so = [62, 63, 64, 65, 58]
        def load(n):
            u, st = divmod(n, 5)
            a.I(f"buffer_load_dwordx4 {vr(AF+4*n,4)}, v{vA+u}, {srd(sWS)}, s{so[st]} offen sc1")
        NUP = self.opt.get("nb3", 8)
        chk = lambda n: [AF + 4*n, AF + 4*n + 2]
        a.I("s_waitcnt lgkmcnt(0)")
        if SO3:
            if self.opt.get("ackfirst", 1):
                a.wait_vm(ostore)
                self.signal(4, 4)
            for n in range(NUP): load(n)
            self.bar("wo_read")
            a.I("s_waitcnt vmcnt(0)")
            if not self.opt.get("ackfirst", 1): self.signal(4, 4)
            self.stamp()
            check_data(self, sum([chk(n) for n in range(NUP)], []), lambda: [load(n) for n in range(NUP)])
            self.stamp()
        else:
            a.wait_vm(ostore)
            self.signal(4, 4)
            self.stamp()
            self.bar("wo_read")
            self.poll([vFA], 2)
            self.stamp()
            for n in range(NUP): load(n)
        a.M(f"""
        s_lshl_b32 s4, s{sRB64}, 3
        s_add_u32 s4, s4, s{sCB3}
        s_lshl_b32 s4, s4, 2
        s_add_u32 s4, s4, s{sOWN}
        s_lshl_b32 s4, s4, 7
        s_add_u32 s4, s4, {F3_OFF}
        """)
        T = 152
        def gather(u):
            def f():
                a.I("s_waitcnt lgkmcnt(0)")
                self.bar(f"red3_{u}")
                return [f"ds_read_b128 {vr(T+4*f,4)}, v{vRW+u} offset:{1024*f}" for f in range(5)]
            return f
        def wr(u):
            if u == 3: return None
            out = []
            for f in range(5):
                if u > 0: out += [f"v_add_f32 v{accs[u]+4*f+e}, v{accs[u]+4*f+e}, v{T+4*f+e}" for e in range(4)]
                out.append(f"ds_write_b128 v{vRW+u}, {vr(accs[u]+4*f,4)} offset:{1024*f}")
            return out
        _, rest = self.ksplit(5, self.wor, load, lambda n: AF + 4*n, chk if SO3 else None, NUP, accs, True, wr,
                              {(1, 2): gather(1), (2, 3): gather(2), (3, 3): gather(3)})
        for x in rest: a.I(x)
        R = accs[3]
        for r in range(0, 20, 2): a.I(f"v_pk_add_f32 {vr(R+r,2)}, {vr(R+r,2)}, {vr(T+r,2)}")
        for r in range(8): a.I(f"v_cvt_pk_bf16_f32 v{T+r}, v{R+2*r}, v{R+2*r+1}")
        for r in range(8, 10): a.I(f"v_cvt_pk_bf16_f32 v{vH+r}, v{R+2*r}, v{R+2*r+1}")
        for pr in range(2):
            a.I(f"v_permlane16_swap_b32 v{T+4*pr}, v{T+4*pr+2}")
            a.I(f"v_permlane16_swap_b32 v{T+4*pr+1}, v{T+4*pr+3}")
        def tail():
            a.M(f"""
            buffer_store_dwordx4 {vr(T,4)}, v25, {srd(sWS)}, s54 offen SCX
            buffer_store_dwordx4 {vr(T+4,4)}, v25, {srd(sWS)}, s55 offen SCX
            buffer_store_dwordx2 {vr(vH+8,2)}, v26, {srd(sWS)}, s56 offen SCX
            """)
            src = [T + r for r in range(8)] + [vH + 8, vH + 9]
            for i, r in enumerate(src):
                a.I(f"v_dot2_f32_bf16 v6, v{r}, v19, {'0' if i == 0 else 'v6'}")
                a.I(f"v_dot2_f32_bf16 v7, v{r}, v{r}, {'0' if i == 0 else 'v7'}")
            for x, y in zip(rg_ops(6, 2), rg_ops(7, 3)):
                a.I(x); a.I(y)
            a.M(f"""
            s_mov_b64 exec, 0xffff
            buffer_store_dwordx2 v[6:7], v24, {srd(sWS)}, s59 offen SCX
            s_mov_b64 exec, -1
            """)
        self.dual(tail)
        self.stamp()
        for r in range(8): a.I(f"v_cvt_pk_bf16_f32 v{vH+r}, v{R+2*r}, v{R+2*r+1}")

    def c_phase4(self):
        a = self.a
        sCB4 = 5
        ACC = 32
        WB = [88, 116]
        AF, NB = 144, 9
        vTR, vA, vCSA = 24, 27, 28
        a.M(f"""
        s_lshr_b32 s66, s{sJ}, 4
        s_lshl_b32 s62, s{sXCD}, 1
        s_add_u32 s62, s62, s66
        s_lshl_b32 s63, s62, 1
        s_lshr_b32 s66, s{sWAVE}, 1
        s_add_u32 s63, s63, s66
        s_and_b32 s64, s{sWAVE}, 1
        v_and_b32 v2, 7, v1
        s_lshl_b32 s66, s63, 3
        v_add_u32 v2, s66, v2
        v_bfe_u32 v3, v1, 3, 1
        v_lshl_add_u32 v2, v2, 2, v3
        s_lshl_b32 s66, s64, 1
        v_add_u32 v2, s66, v2
        v_lshlrev_b32 v2, 7, v2
        v_add_u32 v{vFA}, {F3_OFF}, v2
        v_lshrrev_b32 v2, 4, v1
        v_and_b32 v3, 15, v1
        v_lshlrev_b32 v4, 4, v3
        v_lshl_add_u32 v{vA}, v2, 10, v4
        v_lshlrev_b32 v{vCSA}, 4, v2
        v_lshl_add_u32 v29, v3, 6, v{vCSA}
        v_add_u32 v{vCSA}, 143360, v{vCSA}
        s_mul_i32 s65, s63, 80
        s_lshl_b32 s65, s65, 10
        s_lshl_b32 s66, s64, 9
        s_add_u32 s65, s65, s66
        s_add_u32 s70, s65, {H_OFF}
        s_add_u32 s71, s70, 4096
        s_add_u32 s72, s70, 8192
        s_add_u32 s73, s70, 12288
        s_lshl_b32 s58, s63, 6
        s_lshl_b32 s67, s64, 5
        s_add_u32 s58, s58, s67
        s_lshl_b32 s58, s58, 6
        s_add_u32 s58, s58, {ST_OFF}
        s_waitcnt vmcnt(0)
        """)
        self.dual(lambda: self.signal(4, 4, "SCX"))
        self.stamp()
        self.bar("red3_done")
        a.I(f"v_add_u32 v{vTR+1}, {8*7168}, v{vKV}")
        a.I(f"v_add_u32 v{vTR+2}, {16*7168}, v{vKV}")
        a.I(f"v_mov_b32 v{vTR}, v{vKV}")
        def wreads(st):
            b = WB[st & 1]
            return [lambda f=f: a.I(f"ds_read_b128 {vr(b+4*f,4)}, v{vTR+st//8} offset:{(st%8)*7168+f*1024}") for f in range(7)]
        ids = [it() for it in wreads(0)]
        self.poll([vFA], 2)
        self.stamp()
        def load(st, tus=(0, 1)):
            r = AF + 8 * (st % NB)
            for tu in tus:
                a.I(f"buffer_load_dwordx4 {vr(r+4*tu,4)}, v{vA}, {srd(sWS)}, s{70+st} offen offset:{256*tu} sc1")
        NU4 = 4
        for st in range(NU4): load(st)
        for tu in range(2):
            a.I(f"buffer_load_dwordx4 {vr(8+4*tu,4)}, v29, {srd(sWS)}, s58 offen offset:{1024*tu} sc1")
        for st in range(4, 20): a.I(f"s_add_u32 s{70+st}, s70, {4096*st}")
        a.M(f"""
        v_and_b32 v31, 31, v1
        v_lshlrev_b32 v31, 4, v31
        v_lshrrev_b32 v4, 5, v1
        v_lshl_add_u32 v31, v4, 10, v31
        s_mul_i32 s54, s63, 216
        s_mul_i32 s66, s{sCB4}, 14
        s_add_u32 s54, s54, s66
        s_lshl_b32 s54, s54, 10
        s_lshl_b32 s66, s64, 9
        s_add_u32 s54, s54, s66
        s_add_u32 s54, s54, {H1_OFF}
        s_lshl_b32 s4, s62, 4
        s_add_u32 s4, s4, s{sCB4}
        s_lshl_b32 s4, s4, 2
        s_add_u32 s4, s4, s{sWAVE}
        s_lshl_b32 s4, s4, 7
        s_add_u32 s4, s4, {F4_OFF}
        """)
        fill = []
        for tu in range(2):
            m = 8 + 4*tu
            fill += [f"v_add_f32 v{m}, v{m}, v{m+2}"] + rg_ops(m, m + 1) + [f"v_mul_f32 v{m}, {hex(f2u(-1.0/640))}, v{m}",
                     f"v_cvt_pk_bf16_f32 v{m}, v{m}, v{m}", f"v_and_b32 v{m}, 0xffff0000, v{m}"]
        CS = AF + 8 * (20 % NB)
        csq = [f"ds_read_b128 {vr(CS+4*f,4)}, v{vCSA} offset:{64*f}" for f in range(7)]
        for st in range(20):
            if self.opt.get("fine4") and st in (1, 5, 9, 10, 19): self.stamp()
            rd = wreads(st + 1) if st + 1 < 20 else []
            b = WB[st & 1]; r = AF + 8 * (st % NB)
            prev, ids = ids, []
            for f in range(7):
                if f == 0: a.wait_lg(prev[6])
                for tu in range(2):
                    d = ACC + 8 * f + 4 * tu
                    cc = "0" if st == 0 else vr(d, 4)
                    a.I(f"v_mfma_f32_16x16x32_bf16 {vr(d,4)}, {vr(b+4*f,4)}, {vr(r+4*tu,4)}, {cc}")
                    k = 2 * f + tu
                    if k == 0 and st == 9: self.bar("w1_mid")
                    if k == 0 and st == 19: self.bar("w1_done")
                    if k in (1, 8) and st + NU4 < 20: load(st + NU4, (k // 8,))
                    elif rd and k >= 2: ids.append(rd.pop(0)())
                    elif csq and st >= 16 and k >= 10: a.I(csq.pop(0))
                    elif fill and st >= 3 and 10 <= k < 13: a.I(fill.pop(0))
            if st == 17: assert not csq
        assert not fill and not csq
        self.stamp()
        P = WB[0]
        def epi():
            skip = self.lab("h1")
            for f in range(7):
                if f == 3:
                    a.I(f"s_cmp_eq_u32 s{sCB4}, 15")
                    a.I(f"s_cbranch_scc1 {skip}")
                for tu in range(2):
                    d = ACC + 8 * f + 4 * tu
                    for e in range(0, 4, 2):
                        a.I(f"v_pk_fma_f32 {vr(d+e,2)}, {vr(CS+4*f+e,2)}, {vr(8+4*tu,2)}, {vr(d+e,2)} op_sel:[0,0,0] op_sel_hi:[1,0,1]")
                for tu in range(2):
                    d = ACC + 8 * f + 4 * tu
                    for k in range(2):
                        a.I(f"v_cvt_pk_bf16_f32 v{P+4*f+2*tu+k}, v{d+2*k}, v{d+2*k+1}")
                for k in (0, 2, 1, 3):
                    a.I(f"v_pk_max_i16 v{P+4*f+k}, v{P+4*f+k}, 0")
                if f % 2 == 0 and f > 0: a.I("s_add_u32 s54, s54, 4096")
                a.I(f"v_permlane16_swap_b32 v{P+4*f}, v{P+4*f+2}")
                a.I(f"v_permlane16_swap_b32 v{P+4*f+1}, v{P+4*f+3}")
                a.I(f"buffer_store_dwordx4 {vr(P+4*f,4)}, v31, {srd(sWS)}, s54 offen offset:{2048*(f%2)} SCX")
            a.fence()
            a.label(skip)
        self.dual(epi)
        self.stamp()

    def p5_addrs(self, vA, vW, first_slot, nw, steps):
        a = self.a
        a.M(f"""
        v_lshrrev_b32 v2, 4, v1
        v_and_b32 v3, 15, v1
        v_lshlrev_b32 v3, 4, v3
        v_lshl_add_u32 v3, v2, 10, v3
        s_mul_i32 s62, s{sRB64}, 216
        s_mul_i32 s66, s{sWAVE}, 56
        s_add_u32 s63, s62, 212
        s_add_u32 s62, s62, s66
        s_lshl_b32 s62, s62, 10
        s_add_u32 s62, s62, {H1_OFF}
        s_lshl_b32 s63, s63, 10
        s_add_u32 s63, s63, {H1_OFF}
        """)
        for u in range(4):
            a.M(f"""
            s_add_u32 s66, s{sOWN}, {u+1}
            s_and_b32 s66, s66, 3
            s_lshl_b32 s67, s66, 8
            v_add_u32 v{vA+u}, s67, v3
            s_mul_i32 s66, s66, 35840
            s_add_u32 s66, s66, {5120*(first_slot+u) if u < nw else 0}
            v_add_u32 v{vW+u}, s66, v{vKV}
            """)
        for k, st in enumerate(steps):
            a.I(f"s_add_u32 s{70+k}, s62, {4096*st}")
            if st >= 12: a.I(f"s_min_u32 s{70+k}, s{70+k}, s63")

    def c_phase5(self):
        a = self.a
        vW, vA = 8, 12
        HS = self.opt.get("hs", 9)
        NC = 14 - HS
        WF, AF, NUP = 100, 32, self.opt.get("nb5c", 6)
        NB = NUP + 1
        accs = [60, 80, 60, 80]
        HU, T = 232, 116
        assert AF + 4 * NB <= 60 and WF + 20 * NC <= 222
        a.I(f"s_mul_i32 s66, s{sWAVE}, 5120")
        a.I(f"v_add_u32 v17, s66, v{vKV}")
        a.I(f"v_add_u32 v18, 61440, v17")
        def wread(k):
            for f in range(5):
                a.I(f"ds_read_b128 {vr(WF+20*k+4*f,4)}, v{17 if k < 3 else 18} offset:{20480*(k % 3)+1024*f}")
        for k in range(3): wread(k)
        self.p5_addrs(vA, vW, 0, 3, [11, 12, 13] + list(range(HS, 11)))
        a.I("s_waitcnt vmcnt(0)")
        self.dual(lambda: self.signal(4, 4, "SCX"))
        self.stamp()
        self.bar("w2_hand")
        for k in range(3, NC): wread(k)
        a.M(f"""
        s_lshl_b32 s66, s{sRB64}, 2
        s_add_u32 s66, s66, s{sOWN}
        s_lshl_b32 s66, s66, 4
        v_and_b32 v2, 15, v1
        v_add_u32 v24, s66, v2
        v_lshrrev_b32 v3, 4, v1
        v_lshlrev_b32 v4, 6, v24
        v_lshl_add_u32 v25, v3, 4, v4
        s_mov_b32 s58, {ST_OFF}
        """)
        a.M(f"""
        v_mul_u32_u24 v4, 1280, v24
        v_bfe_u32 v2, v1, 4, 1
        v_lshrrev_b32 v3, 5, v1
        v_lshl_add_u32 v6, v2, 1, v3
        v_lshl_add_u32 v27, v6, 4, v4
        v_lshrrev_b32 v6, 4, v1
        v_lshl_add_u32 v28, v6, 3, v4
        s_mul_i32 s59, s{sCB3}, 160
        """)
        for r in range(10):
            a.I(f"v_lshlrev_b32 v{HU+2*r}, 16, v{vH+r}")
            a.I(f"v_and_b32 v{HU+2*r+1}, 0xffff0000, v{vH+r}")
        a.I("s_waitcnt lgkmcnt(0)")
        if self.opt.get("pr5", 0): a.I(f"s_setprio {self.opt.get('pr5c', 2)}")
        self.bar("h1_ready")
        self.stamp()
        def areg(n): return AF + 4 * (n % NB)
        def load(n):
            u, k = divmod(n, NC)
            a.I(f"buffer_load_dwordx4 {vr(areg(n),4)}, v{vA+u}, {srd(sWS)}, s{70+k} offen sc1")
        for n in range(NUP): load(n)
        a.I(f"buffer_load_dwordx4 v[20:23], v25, {srd(sWS)}, s58 offen sc1")
        wr = lambda u: [f"ds_write_b128 v{vW+u}, {vr(accs[u]+4*f,4)} offset:{1024*f}" for f in range(5)] if u < 3 else None
        self.ksplit(NC, lambda st, f: WF + 20*st + 4*f, load, areg, None, NUP, accs, False, wr, {})
        if self.opt.get("fine4"): self.stamp()
        if self.opt.get("pr5", 0): a.I("s_setprio 0")
        a.I("v_add_f32 v20, v20, v22")
        a.I("v_add_f32 v21, v21, v23")
        for x, y in zip(rg_ops(20, 22), rg_ops(21, 23)):
            a.I(x); a.I(y)
        self.ln_stats(20, 21, 22, 23, 2)
        R = accs[3]
        a.I("s_waitcnt lgkmcnt(0)")
        self.bar("red5x")
        for k in range(5):
            for f in range(5):
                a.I(f"ds_read_b128 {vr(T+20*k+4*f,4)}, v{vW+3} offset:{5120*k+1024*f}")
        for k in range(5):
            for r in range(20): a.I(f"v_add_f32 v{R+r}, v{R+r}, v{T+20*k+r}")
        self.bar("red5a")
        if self.opt.get("fine4"): self.stamp()
        for f in range(5):
            a.I(f"ds_read_b128 {vr(T+4*f,4)}, v{vW+3} offset:{5120*5+1024*f}")
        for r in range(20): a.I(f"v_add_f32 v{R+r}, v{R+r}, v{T+r}")
        for r in range(20): a.I(f"v_fmac_f32 v{HU+r}, v22, v{R+r}")
        if self.opt.get("fine4"): self.stamp()
        self.bar("red5b")
        self.stamp()
        for f in range(5): a.I(f"ds_read_b128 {vr(T+4*f,4)}, v{vW+3} offset:{5120*6+1024*f}")
        for r in range(0, 20, 2):
            a.I(f"v_pk_fma_f32 {vr(HU+r,2)}, {vr(T+r,2)}, v[22:23], {vr(HU+r,2)} op_sel:[0,0,0] op_sel_hi:[1,0,1]")
        P = T + 20
        for r in range(10): a.I(f"v_cvt_pk_bf16_f32 v{P+r}, v{HU+2*r}, v{HU+2*r+1}")
        for pr in range(2):
            a.I(f"v_permlane16_swap_b32 v{P+4*pr}, v{P+4*pr+2}")
            a.I(f"v_permlane16_swap_b32 v{P+4*pr+1}, v{P+4*pr+3}")
        a.M(f"""
        buffer_store_dwordx4 {vr(P,4)}, v27, {srd(sOUT)}, s59 offen nt
        buffer_store_dwordx4 {vr(P+4,4)}, v27, {srd(sOUT)}, s59 offen offset:64 nt
        buffer_store_dwordx2 {vr(P+8,2)}, v28, {srd(sOUT)}, s59 offen offset:128 nt
        """)
        self.stamp()

    def h_phase1(self):
        a = self.a
        vDX, vDW = 160, 164
        a.M(f"""
        s_lshl_b32 s67, s{sWAVE}, 5
        v_lshrrev_b32 v6, 3, v1
        v_add_u32 v2, s67, v6
        v_mul_u32_u24 v2, 1280, v2
        v_and_b32 v7, 7, v1
        v_lshrrev_b32 v4, 4, v1
        v_xor_b32 v3, v7, v4
        v_lshlrev_b32 v3, 4, v3
        v_xor_b32 v5, 64, v3
        v_add_u32 v{vDX}, v2, v3
        v_add_u32 v{vDX+1}, v2, v5
        v_add_u32 v{vDX+1}, {10240-1024}, v{vDX+1}
        v_add_u32 v{vDX+2}, {2*(10240-1024)}, v{vDX}
        v_add_u32 v{vDX+3}, {2*(10240-1024)}, v{vDX+1}
        s_lshl_b32 s67, s{sWAVE}, 4
        v_add_u32 v2, s67, v6
        v_mul_u32_u24 v2, 3840, v2
        v_and_b32 v4, 1, v4
        v_lshlrev_b32 v4, 2, v4
        v_xor_b32 v3, v7, v4
        v_lshl_add_u32 v{vDW}, v3, 4, v2
        v_add_u32 v{vDW+1}, {8*3840-1024}, v{vDW}
        s_lshl_b32 s77, s{sWAVE}, 12
        s_lshl_b32 s78, s{sWAVE}, 11
        s_mul_i32 s{sRB[0]}, s{sRB[0]}, {128*1280}
        s_mul_i32 s{sRB[1]}, s{sRB[1]}, {128*1280}
        s_lshl_b32 s{sCT[0]}, s{sCT[0]}, 7
        s_lshl_b32 s{sCT[1]}, s{sCT[1]}, 7
        v_mov_b32 v34, 0
        s_bfe_u32 s66, s{sJ}, {hex(0x10000 + self.opt.get('pbit', 1))}
        s_mul_i32 s66, s66, {self.opt.get('par', 0)}
        s_lshl_b32 s67, s66, 7
        s_mul_i32 s66, s66, {64*3840}
        s_sub_u32 s79, s{sRB[0]}, s67
        s_sub_u32 s81, s{sRB[1]}, s67
        s_sub_u32 s80, s{sCT[0]}, s66
        s_sub_u32 s82, s{sCT[1]}, s66
        s_add_u32 s{sRB[0]}, s{sRB[0]}, s67
        s_add_u32 s{sRB[1]}, s{sRB[1]}, s67
        s_add_u32 s{sCT[0]}, s{sCT[0]}, s66
        s_add_u32 s{sCT[1]}, s{sCT[1]}, s66
        """)
        self.stamps = False
        self.prologue_finish()
        a.M(f"""
        s_cmp_ge_u32 s{sJ}, 30
        s_cbranch_scc1 L_h_idle
        """)
        last = {}
        def dma(c):
            p, kc = divmod(c, 10)
            a.I(f"s_add_u32 m0, s77, {(c % NS1) * XS}")
            a.I(f"s_add_u32 s74, s{sRB[p] + 9*(kc&1)}, {kc*128}")
            for i in range(4): a.I(f"buffer_load_dwordx4 v{vDX+i}, {srd(sX)}, s74 offen offset:{1024*i} lds")
            a.I(f"s_add_u32 m0, s78, {WS0 + (c % NS1) * 8192}")
            a.I(f"s_add_u32 s74, s{sCT[p] + 9*(kc&1)}, {kc*64*3840}")
            for i in range(2): last[c] = a.I(f"buffer_load_dwordx4 v{vDW+i}, {srd(sWQKV)}, s74 offen offset:{1024*i} lds")
        def nonce_load(): a.I(f"buffer_load_dword v35, v34, {srd(sDBG)}, 0 offen sc1")
        def setup_all():
            self.h_setup2()
            for k in (2, 3, 6, 7, 8, 9): a.I(f"ds_write_b32 v21, v10 offset:{k*7168}")
        NP = self.opt.get("npre", 3)
        for c in range(NP): dma(c)
        nxt = NP
        a.capture = []
        setup_all()
        setup, a.capture = a.capture, None
        cut = len(setup) // 3
        while setup[cut].startswith("s_cselect"): cut += 1
        FL = self.opt.get("fl", 18)
        for c in range(20):
            a.wait_vm(last[c])
            self.bar(f"p1_{c}")
            k = 0
            while nxt < 20 and nxt <= c + 3 and k < 2:
                dma(nxt); nxt += 1; k += 1
            if c == 2: nonce_load()
            if c == 5:
                self.nonce_check(35, 34)
                self.xg_publish(2)
            if c == 16:
                for x in setup[:cut]: a.I(x)
            if c == 17:
                for x in setup[cut:]: a.I(x)
            if c == FL: a.I(f"buffer_load_dword v15, v30, {srd(sWS)}, 0 offen sc1")
            if c == FL + 1:
                self.check_flags(15, 30)
                self.first_loads()
        a.I("s_branch L_h_p1_done")
        keep = (list(a.vm), list(a.lg))
        self.reset()
        a.label("L_h_idle")
        if self.opt.get("ipf", 1):
            a.M(f"""
            s_sub_u32 s66, s{sJ}, 30
            s_lshl_b32 s66, s66, 3
            s_add_u32 s66, s66, s{sXCD}
            s_lshl_b32 s66, s66, 2
            s_add_u32 s66, s66, s{sWAVE}
            s_lshl_b32 s66, s66, 13
            v_lshlrev_b32 v2, 7, v1
            """)
            for k in range(5):
                a.I(f"buffer_load_dword v{4+k}, v2, {srd(sWQKV)}, s66 offen")
                a.I(f"s_add_u32 s66, s66, {64*8192}")
        nonce_load()
        self.nonce_check(35, 34)
        self.xg_publish(2)
        setup_all()
        self.poll([30], 2, False)
        self.first_loads()
        a.fence()
        a.label("L_h_p1_done")
        a.fence(False)

    def first_loads(self):
        a = self.a
        self.kv = getattr(self, "kv", {})
        self.kv_dma(0)
        a.I(f"s_mul_i32 s66, s{sWAVE}, 3072")
        a.I(f"s_add_u32 m0, s66, {QST}")
        for i in range(3): self.qid = a.I(f"buffer_load_dwordx4 v{vKV}, {srd(sWS)}, s{sQS} offen offset:{1024*i} sc1 lds")
        self.kv_dma(1)

    def kv_dma(self, c):
        a = self.a
        a.I(f"s_add_u32 m0, s{sKVD}, {((c + KSL) % NSLOT) * SLOT}")
        a.I(f"s_xor_b32 s{sT0}, s{sKVS}, {c << 19}")
        for i in range(3):
            self.kv[c] = a.I(f"buffer_load_dwordx4 v{vKV+i}, {srd(sWS)}, s{sT0} offen offset:{1024*i} sc1 lds")

    def h_setup2(self):
        a = self.a
        self.roles()
        a.M(f"""
        s_lshr_b32 s61, s{sWAVE}, 1
        s_and_b32 s62, s{sWAVE}, 1
        s_lshr_b32 s66, s{sB3}, 2
        s_add_u32 s67, s{sB3}, 2
        s_lshr_b32 s67, s67, 2
        s_sub_u32 s67, s67, s66
        v_bfe_u32 v2, v1, 4, 1
        v_mul_u32_u24 v2, s67, v2
        v_add_u32 v2, s66, v2
        s_mul_i32 s63, s61, 20
        s_add_u32 s63, s63, 20
        v_add_u32 v3, s63, v2
        v_and_b32 v4, 15, v1
        v_lshl_add_u32 v4, v4, 1, s62
        v_lshl_add_u32 v5, v3, 5, v4
        v_lshlrev_b32 v5, 7, v5
        v_add_u32 v19, {F1_OFF}, v5
        v_and_b32 v4, 7, v4
        v_lshl_add_u32 v3, v3, 5, v4
        v_lshl_add_u32 v2, v2, 5, s{sBLK}
        v_cmp_gt_u32 vcc, 32, v1
        v_cndmask_b32 v2, v2, v3, vcc
        v_lshlrev_b32 v2, 7, v2
        v_add_u32 v30, {F1_OFF}, v2
        s_lshl_b32 s66, s61, 2
        v_xor_b32 v2, s66, v1
        v_lshlrev_b32 v{vKV+1}, 4, v2
        s_lshl_b32 s66, s61, 3
        v_xor_b32 v2, s66, v1
        v_lshlrev_b32 v{vKV+2}, 4, v2
        s_mul_i32 s66, s61, 80
        s_add_u32 s66, s66, 80
        s_add_u32 s66, s66, s{sB3}
        s_lshl_b32 s67, s62, 8
        s_add_u32 s66, s66, s67
        s_and_b32 s67, s{sQB}, 3
        s_lshl_b32 s67, s67, 9
        s_add_u32 s66, s66, s67
        s_lshl_b32 s{sKVS}, s66, 10
        s_mul_i32 s{sKVD}, s62, 7168
        s_mul_i32 s66, s61, 3072
        s_add_u32 s{sKVD}, s{sKVD}, s66
        s_add_u32 s{sKVD}, s{sKVD}, {RING}
        s_lshl_b32 s66, s{sWAVE}, 8
        s_add_u32 s66, s66, {RING+6144}
        v_lshl_add_u32 v21, v1, 2, s66
        s_lshl_b32 s{sQS}, s{sBLK}, 8
        s_add_u32 s{sQS}, s{sQS}, s{sB3}
        s_lshl_b32 s{sQS}, s{sQS}, 10
        s_add_u32 s76, s4, {F0_OFF - F2_OFF}
        v_add_u32 v20, 4096, v{vKV}
        v_and_b32 v5, 3, v1
        v_mov_b32 v10, 0x3f80
        v_cmp_eq_u32 vcc, 0, v5
        v_cndmask_b32 v10, 0, v10, vcc
        """)

    def h_setup3(self):
        a = self.a
        a.M(f"""
        s_mul_i32 s66, s{sCB3}, 5
        s_mul_i32 s67, s{sWAVE}, {14*40}
        s_add_u32 s67, s67, s66
        s_lshl_b32 s67, s67, 10
        s_add_u32 s{sW2S}, s67, {W2F_OFF}
        s_mul_i32 s67, s{sWAVE}, {5*40}
        s_add_u32 s67, s67, s66
        s_lshl_b32 s67, s67, 10
        s_add_u32 s{sWOS}, s67, {WOF_OFF}
        s_mul_i32 s63, s5, 7
        s_mul_i32 s67, s{sWAVE}, 112
        s_add_u32 s67, s67, s63
        s_lshl_b32 s67, s67, 10
        s_add_u32 s{sW1S}, s67, {W1F_OFF}
        s_mul_i32 s7, s{sWAVE}, 7168
        v_and_b32 v2, 1, v1
        v_lshrrev_b32 v3, 1, v1
        v_lshl_add_u32 v4, v2, 2, s66
        v_lshrrev_b32 v4, 3, v4
        v_mul_u32_u24 v5, 6, v2
        v_add_u32 v5, s63, v5
        v_lshrrev_b32 v5, 3, v5
        s_mul_i32 s67, s{sWAVE}, 14
        v_add_u32 v6, s67, v3
        v_min_u32 v6, 53, v6
        v_mad_u32_u24 v6, v6, 5, v4
        s_mul_i32 s67, s{sWAVE}, 5
        s_add_u32 s67, s67, {54-14}
        v_add_u32 v7, s67, v3
        v_mad_u32_u24 v7, v7, 5, v4
        v_cmp_le_u32 vcc, 14, v3
        v_cndmask_b32 v6, v6, v7, vcc
        v_subrev_u32 v7, 19, v3
        v_min_u32 v7, 4, v7
        v_lshl_add_u32 v7, v7, 2, s{sWAVE}
        v_mad_u32_u24 v7, v7, 14, v5
        v_add_u32 v7, 370, v7
        v_cmp_le_u32 vcc, 19, v3
        v_cndmask_b32 v6, v6, v7, vcc
        v_lshlrev_b32 v6, 7, v6
        v_add_u32 v29, {FR_OFF}, v6
        s_lshl_b32 s66, s{sJ}, 2
        s_add_u32 s66, s66, s{sWAVE}
        s_mul_i32 s67, s66, 5
        v_add_u32 v11, s67, v1
        v_lshlrev_b32 v11, 7, v11
        v_min_u32 v11, CODE_BYTES-64, v11
        s_lshl_b32 s67, s{sXCD}, 7
        s_add_u32 s66, s66, s67
        s_mul_i32 s67, s66, {54*128}
        s_add_u32 s67, s67, {H1_OFF}
        v_lshl_add_u32 v22, v1, 7, s67
        s_lshl_b32 s67, s66, 7
        s_add_u32 s67, s67, {ST_OFF}
        v_mov_b32 v2, s67
        v_cmp_le_u32 vcc, 54, v1
        v_cndmask_b32 v22, v22, v2, vcc
        s_mul_i32 s67, s66, {20*128}
        s_add_u32 s67, s67, {H_OFF}
        v_lshl_add_u32 v23, v1, 7, s67
        s_and_b32 s67, s89, 0xfffffc00
        s_sub_u32 s67, s67, {20*128}
        v_lshl_add_u32 v2, v1, 7, s67
        v_cmp_le_u32 vcc, 20, v1
        v_cndmask_b32 v23, v23, v2, vcc
        s_lshl_b32 s67, s66, 7
        s_add_u32 s67, s67, {F2_OFF - 28*131072}
        v_lshlrev_b32 v2, 17, v1
        v_add_u32 v2, s67, v2
        v_cmp_le_u32 vcc, 28, v1
        v_cndmask_b32 v23, v23, v2, vcc
        v_and_b32 v2, 7, v1
        s_lshl_b32 s66, s{sWAVE}, 3
        v_add_u32 v2, s66, v2
        v_lshl_add_u32 v2, v2, 5, s{sRB64}
        v_lshlrev_b32 v2, 7, v2
        v_add_u32 v2, {F0_OFF}, v2
        v_lshrrev_b32 v3, 3, v1
        v_cmp_eq_u32 vcc, {6 if self.opt.get("so3", 0) else 60}, v3
        v_cndmask_b32 v29, v29, v2, vcc
        """)
        self.rp = repack_setup(self)

    def w2h(self, st, f): return 36 + 20*st + 4*f

    def h_rest(self):
        a = self.a
        SO3 = self.opt.get("so3", 0)
        kv, kv_dma = self.kv, self.kv_dma
        def w2load(st):
            a.I(f"s_add_u32 s{sT1}, s{sW2S}, {st*40*1024}")
            for i in range(5):
                a.I(f"buffer_load_dwordx4 {vr(self.w2h(st,i),4)}, v{vKV if i < 4 else 20}, {srd(sWS)}, s{sT1} offen offset:{1024*(i%4)} sc1")
        def frag_dma(base, st, dst):
            a.I(f"s_add_u32 m0, s66, {dst}")
            a.I(f"s_add_u32 s{sT1}, s{base}, {st*40*1024}")
            for i in range(4): a.I(f"buffer_load_dwordx4 v{vKV}, {srd(sWS)}, s{sT1} offen offset:{1024*i} sc1 lds")
            a.I(f"s_add_u32 m0, s66, {dst+4096}")
            return a.I(f"buffer_load_dwordx4 v20, {srd(sWS)}, s{sT1} offen sc1 lds")
        def thin(k):
            m = ((1 << 14) - 1) << (14 * k) if k < 4 else (1 << 31) - 1
            a.I(f"s_mov_b32 exec_lo, {hex(m & 0xffffffff)}")
            a.I(f"s_mov_b32 exec_hi, {hex(m >> 32)}")
            a.I(f"buffer_load_dword v{4+k}, v{22 if k < 4 else 23}, {srd(sWS)}, 0 offen sc1")
            a.I("s_mov_b64 exec, -1")
        def ctouch():
            if not self.opt.get("ctouch", 1): return
            a.I("s_mov_b64 exec, 0x1f")
            a.I("global_load_dword v12, v11, s[92:93]")
            a.I("s_mov_b64 exec, -1")
        a.wait_vm(self.qid)
        a.I("s_waitcnt lgkmcnt(0)")
        self.bar("first")
        kv_dma(2); kv_dma(3)
        for k in (0, 1): a.I(f"ds_write_b32 v21, v10 offset:{k*7168}")
        self.h_setup3()
        a.wait_vm(kv[1])
        self.bar("kv1")
        for k in (4, 5): a.I(f"ds_write_b32 v21, v10 offset:{k*7168}")
        ctouch()
        for it in self.rp[0]: it()
        if SO3:
            for k in range(4): a.I(f"v_mov_b32 v{172+k}, -1")
            a.I(f"buffer_store_dwordx4 v[172:175], v{vQ0}, {srd(sWS)}, s88 offen sc1")
            a.I(f"buffer_store_dwordx4 v[172:175], v{vQ0}, {srd(sWS)}, s88 offen offset:512 sc1")
            a.I(f"buffer_store_dwordx2 v[172:173], v{vKV}, {srd(sWS)}, s75 offen sc1")
        a.wait_vm(kv[3])
        a.I("s_waitcnt lgkmcnt(0)")
        self.bar("kv2")
        self.poll([19], 2, False)
        kv_dma(4); kv_dma(5)
        if self.opt.get("ctouch", 1) > 1: ctouch()
        self.rp[1]()
        for k in range(8):
            a.I(f"v_xor_b32 v2, {32*k}, v254")
            self.rp[2][k]()
        for k in range(8): self.rp[3][k]()
        for k in range(4): a.I(f"v_mov_b32 v{168+k}, 0x3f803f80")
        for k in range(8):
            a.I(f"v_mfma_f32_16x16x32_bf16 {vr(176+4*k,4)}, v[168:171], {vr(208+4*k,4)}, 0")
        a.I("v_lshrrev_b32 v3, 4, v1")
        a.I("v_lshlrev_b32 v2, 2, v1")
        for q in range(1, 4):
            a.I(f"v_cmp_eq_u32 vcc, {q}, v3")
            for hh in range(2):
                a.I(f"v_cndmask_b32 v{176+16*hh}, v{176+16*hh}, v{176+16*hh+4*q}, vcc")
        for hh in range(2): a.I(f"buffer_store_dword v{176+16*hh}, v2, {srd(sWS)}, s90 offen offset:{256*hh} sc1")
        rpst = a.vm[-1][0]
        a.wait_vm(kv[5])
        self.bar("kv4")
        kv_dma(6); kv_dma(7)
        a.wait_vm(rpst)
        self.signal(101, 2)
        if SO3: self.signal(76, 2)
        thin(0); thin(1)
        SCH = self.opt.get("sch", 0)
        if SCH:
            self.poll([29], 2, False)
            for st in range(0, 2): w2load(st)
        a.wait_vm(kv[7])
        self.bar("kv6")
        if not SCH: self.poll([29], 2, False)
        kv_dma(8); kv_dma(9)
        if self.opt.get("ctouch", 1) > 1: ctouch()
        a.I(f"s_mul_i32 s66, s{sWAVE}, 20480")
        for st in range(4): w = frag_dma(sWOS, st, 5120*st)
        if not SCH: w2load(0)
        a.wait_vm(w)
        self.bar("kv8")
        kv_dma(10); kv_dma(11)
        for st in range(2 if SCH else 1, 5): w2load(st)
        thin(2)
        ctouch()
        a.wait_vm(kv[11])
        self.bar("kv10")
        kv_dma(12); kv_dma(13)
        for st in range(5, 8): w2load(st)
        run(w1f_dma(self, 0, vKV))
        thin(3)
        if SCH: thin(4)
        a.wait_vm(kv[13])
        self.bar("kv12")
        kv_dma(14); kv_dma(15)
        if self.opt.get("ctouch", 1) > 1: ctouch()
        for st in range(8, 11): w2load(st)
        run(w1f_dma(self, 1, vKV))
        if not SCH: thin(4)
        a.wait_vm(kv[15])
        self.bar("kv14")
        a.M(f"""
        s_mul_i32 s66, s{sWAVE}, 5120
        s_cmp_lt_u32 s{sWAVE}, 2
        s_cselect_b32 s67, 0, {4*SLOT - 10240}
        s_add_u32 s66, s66, s67
        """)
        frag_dma(sWOS, 4, WST)
        run(w1f_dma(self, 2, vKV))
        CP = 24
        a.M(f"""
        v_lshrrev_b32 v2, 3, v1
        v_mul_u32_u24 v3, 7168, v2
        v_and_b32 v9, 7, v1
        v_lshl_add_u32 v3, v9, 4, v3
        v_lshrrev_b32 v2, 5, v1
        v_lshl_add_u32 v9, v2, 30, v3
        s_mul_i32 s66, s5, 448
        s_mul_i32 s67, s{sWAVE}, 112
        s_add_u32 s66, s66, s67
        s_add_u32 s66, s66, {CS_OFF}
        s_add_u32 s67, s66, {8*7168}
        s_add_u32 s62, s66, {16*7168}
        buffer_load_dwordx4 {vr(CP,4)}, v3, {srd(sWS)}, s66 offen sc1
        buffer_load_dwordx4 {vr(CP+4,4)}, v3, {srd(sWS)}, s67 offen sc1
        buffer_load_dwordx4 {vr(CP+8,4)}, v9, {srd(sWS)}, s62 offen sc1
        """)
        if self.opt.get("rt2", 1):
            a.M(f"""
            s_mov_b32 exec_hi, 0
            buffer_load_dword v4, v23, {srd(sWS)}, 0 offen sc1
            s_mov_b32 exec_hi, -1
            buffer_load_dword v5, v22, {srd(sWS)}, 0 offen sc1
            v_min_u32 v2, 55, v1
            v_lshlrev_b32 v2, 7, v2
            s_add_u32 s66, s{sW1S}, {3*4*112*1024}
            s_add_u32 s67, s{sW1S}, {4*4*112*1024}
            buffer_load_dword v6, v2, {srd(sWS)}, s66 offen sc1
            buffer_load_dword v7, v2, {srd(sWS)}, s67 offen sc1
            """)
        a.I("s_waitcnt vmcnt(%d)" % (4 if self.opt.get("rt2", 1) else 0))
        self.bar("att_end")
        for e in range(4): a.I(f"v_add_f32 v{CP+e}, v{CP+e}, v{CP+4+e}")
        for e in range(4): a.I(f"v_add_f32 v{CP+e}, v{CP+e}, v{CP+8+e}")
        for e in range(4): a.I(f"v_add_f32_dpp v{CP+e}, v{CP+e}, v{CP+e} row_ror:8 row_mask:0xf bank_mask:0xf")
        for ops in zip(*[rg_ops(CP+e, CP+4+e) for e in range(4)]):
            for x in ops: a.I(x)
        vW, vA = 8, 12
        a.I("s_waitcnt vmcnt(0)")
        self.p5_addrs(vA, vW, 3, 4, list(range(9)))
        a.M(f"""
        v_and_b32 v2, 3, v1
        s_lshl_b32 s67, s{sWAVE}, 2
        s_lshr_b32 s66, s{sRB64}, 1
        s_lshl_b32 s66, s66, 4
        s_add_u32 s66, s66, s67
        v_add_u32 v2, s66, v2
        v_bfe_u32 v3, v1, 2, 1
        v_lshl_add_u32 v2, v2, 2, v3
        s_and_b32 s66, s{sRB64}, 1
        s_lshl_b32 s66, s66, 1
        v_add_u32 v2, s66, v2
        v_lshlrev_b32 v2, 7, v2
        v_add_u32 v17, {F4_OFF}, v2
        s_mul_i32 s66, s{sWAVE}, 112
        s_add_u32 s66, s66, 143360
        v_add_u32 v6, s66, v{vKV}
        s_mul_i32 s66, s{sWAVE}, 5120
        s_add_u32 s67, s66, 61440
        v_add_u32 v7, s67, v{vKV}
        """)
        W1T = self.opt.get("w1t", 1)
        self.bar("wo_read")
        if W1T == 0: run(w1f_dma(self, 3, vKV) + w1f_dma(self, 4, vKV))
        if W1T == 1: run(w1f_dma(self, 3, vKV))
        self.bar("red3_1")
        self.bar("red3_2")
        self.bar("red3_3")
        if W1T == 1: run(w1f_dma(self, 4, vKV))
        if W1T == 2: run(w1f_dma(self, 3, vKV) + w1f_dma(self, 4, vKV))
        self.bar("red3_done")
        a.M(f"""
        s_mov_b64 exec, 0x7f
        ds_write_b128 v6, {vr(CP,4)}
        s_mov_b64 exec, -1
        s_waitcnt vmcnt(0) lgkmcnt(0)
        """)
        self.bar("w1_mid")
        for k, st in enumerate((11, 12, 13)):
            frag_dma(sW2S, st, 20480*k)
            a.I("s_waitcnt vmcnt(0)")
        self.bar("w1_done")
        HS = self.opt.get("hs", 9)
        for k in range(11 - HS):
            for f in range(5): a.I(f"ds_write_b128 v7, {vr(self.w2h(HS+k,f),4)} offset:{20480*k+1024*f}")
        a.I("s_waitcnt lgkmcnt(0)")
        self.bar("w2_hand")
        slots = [20, 24, 28, 32] + list(range(36 + 20*HS, 216, 4))
        NUP = min(self.opt.get("nb5h", 6), len(slots) - 1)
        NB = NUP + 1
        accs = [216, 236, 216, 236]
        def areg(n): return slots[n % NB]
        def load(n):
            u, k = divmod(n, HS)
            a.I(f"buffer_load_dwordx4 {vr(areg(n),4)}, v{vA+u}, {srd(sWS)}, s{70+k} offen sc1")
        self.poll([17], 2)
        for n in range(NUP): load(n)
        if self.opt.get("pr5", 0): a.I("s_setprio 1")
        self.bar("h1_ready")
        wr = lambda u: [f"ds_write_b128 v{vW+u}, {vr(accs[u]+4*f,4)} offset:{1024*f}" for f in range(5)]
        def mid(name):
            def f():
                a.I("s_waitcnt lgkmcnt(0)")
                self.bar(name)
            return f
        last, _ = self.ksplit(HS, self.w2h, load, areg, None, NUP, accs, False, wr, {(2, self.opt.get("r5x", 2)): mid("red5x"), (3, 2): mid("red5a")})
        for x in last: a.I(x)
        a.I("s_waitcnt lgkmcnt(0)")
        self.bar("red5b")

    def build(self):
        a = self.a
        self.prologue()
        a.I(f"s_lshr_b32 s7, s{sWAVE}, 2")
        a.I(f"s_and_b32 s{sWAVE}, s{sWAVE}, 3")
        self.coords()
        a.I("s_cmp_eq_u32 s7, 0")
        a.I("s_cbranch_scc1 L_compute")
        state = (list(a.vm), list(a.lg))
        self.bars = []
        keep = self.stamps
        self.h_phase1(); self.h_rest()
        a.I("s_endpgm")
        self.stamps = keep
        cb, self.bars = self.bars, []
        a.vm, a.lg = state; a.hist = []
        a.label("L_compute")
        self.c_phase1(); self.c_phase2(); self.c_phase3(); self.c_phase4(); self.c_phase5()
        self.dump_stamps()
        a.label("L_end")
        a.I("s_endpgm")
        assert cb == self.bars, (cb, self.bars)
        n0 = len(a.lines)
        gen2.slow_path(self, scratch=SLOWS)
        i = 0
        while i < len(self.stubs):
            self.stubs[i](); i += 1
        head = open(f"cdna_kernels/{NAME}.s.ref").read().split("; Override launch")[0]
        return head + f"""; @launch grid=(256,1,1) block=(512,1,1) lds=163840
.amdgcn_target "amdgcn-amd-amdhsa--gfx950"
.text
.globl {KNAME}
.p2align 8
.type {KNAME},@function
{KNAME}:
""" + a.text() + f"""L_code_end:
.set CODE_BYTES, L_code_end-{KNAME}
.section .rodata,"a"
.p2align 6
.amdhsa_kernel {KNAME}
  .amdhsa_next_free_vgpr 256
  .amdhsa_next_free_sgpr 102
  .amdhsa_accum_offset 256
  .amdhsa_group_segment_fixed_size 0
  .amdhsa_kernarg_size 72
  .amdhsa_user_sgpr_count 2
  .amdhsa_user_sgpr_kernarg_segment_ptr 1
  .amdhsa_system_sgpr_workgroup_id_x 1
.end_amdhsa_kernel
"""

if __name__ == "__main__":
    import argparse
    ap = argparse.ArgumentParser()
    ap.add_argument("-o", default="out.s")
    ap.add_argument("--stamps", action="store_true")
    ap.add_argument("--ahead", type=int, default=3)
    ap.add_argument("--probe", default=None)
    ap.add_argument("--opt", default="")
    args = ap.parse_args()
    kw = {k: int(v) for k, v in (x.split('=') for x in args.opt.split(',') if x)}
    g = Gen4(stamps=args.stamps or args.probe is not None, p1_ahead=args.ahead,
             probe=tuple(map(int, args.probe.split(':'))) if args.probe else None, **kw)
    s = g.build()
    open(args.o, "w").write(s)
    print(f"stamps {g.nstamp} instrs {g.a.nins} nops {g.a.nnop} autowaits {g.a.nwait} bytes {len(s)}")
```

```python
import sys, re
from asmlib import Asm, vr
import gen as G0
from gen import *
import gen2
from gen2 import (SLOT, NSLOT, RING, RED, sH, sQB, sPAR, sB3, sBLK, sCB3, sRB64, sW1S, sKVS, sQS, sT0, sT1, sKVD, sW2S, sWOS,
                  vXR, sOWN, sOS, vH, rg_ops, check_data, red_addrs, run, w1f_dma, repack_setup, vKV, vK0, vK1, vV, vQ0, vFA)

QST = 122880
WST = RING
SLOWS = RING + SLOT
KSL = 3
sTA, sTB, sCA, sCB = 70, 71, 72, 73
NBLK = 15

class Gen4(Gen):
    def bar(self, name):
        self.a.I("s_barrier")
        self.bars.append(name)

    def reset(self):
        a = self.a
        a.vm = []; a.lg = []; a.hist = []

    def coords(self):
        self.a.M(f"""
        s_bfe_u32 s74, s{sXCD}, 0x10001
        s_xor_b32 s74, s74, 1
        s_and_b32 s66, s{sJ}, 1
        s_lshr_b32 s67, s{sJ}, 1
        s_lshl_b32 s{sTA}, s{sXCD}, 1
        s_add_u32 s{sTA}, s{sTA}, s66
        s_lshl_b32 s{sTA}, s{sTA}, 1
        s_add_u32 s{sTB}, s{sTA}, 1
        s_mov_b32 s{sCA}, s67
        s_mul_i32 s75, s74, 5
        s_add_u32 s{sCB}, s67, s75
        s_cmp_ge_u32 s67, 5
        s_cselect_b32 s76, 15, 10
        s_add_u32 s{sCB}, s{sCB}, s76
        s_cmp_lt_u32 s{sJ}, 20
        s_cbranch_scc1 L_coords
        s_and_b32 s76, s{sXCD}, 1
        s_lshr_b32 s{sTA}, s{sXCD}, 2
        s_lshl_b32 s{sTA}, s{sTA}, 1
        s_add_u32 s{sTA}, s{sTA}, s76
        s_lshl_b32 s{sTA}, s{sTA}, 1
        s_add_u32 s{sTA}, s{sTA}, s66
        s_lshl_b32 s74, s74, 3
        s_add_u32 s{sTA}, s{sTA}, s74
        s_add_u32 s{sTB}, s{sTA}, 16
        s_add_u32 s{sCA}, s67, s75
        s_add_u32 s{sCB}, s{sCA}, 10
        L_coords:
        """)

    def roles(self):
        self.a.M(f"""
        s_lshr_b32 s66, s{sJ}, 3
        s_lshl_b32 s{sRB64}, s{sXCD}, 2
        s_add_u32 s{sRB64}, s{sRB64}, s66
        s_mov_b32 s{sH}, s{sRB64}
        s_and_b32 s{sCB3}, s{sJ}, 7
        s_mov_b32 s{sQB}, s{sCB3}
        s_and_b32 s{sPAR}, s{sH}, 1
        s_lshr_b32 s66, s{sH}, 1
        s_mul_i32 s66, s66, 5
        s_lshl_b32 s67, s{sPAR}, 1
        s_add_u32 s{sB3}, s66, s67
        s_lshl_b32 s{sBLK}, s{sQB}, 2
        s_add_u32 s{sBLK}, s{sBLK}, s{sWAVE}
        s_and_b32 s5, s{sJ}, 15
        s_add_u32 s{sOWN}, s{sWAVE}, s{sCB3}
        s_and_b32 s{sOWN}, s{sOWN}, 3
        v_lshlrev_b32 v{vKV}, 4, v1
        v_and_b32 v2, 31, v1
        v_lshrrev_b32 v3, 5, v1
        v_lshlrev_b32 v2, 4, v2
        v_add_u32 v4, s{sPAR}, v3
        v_lshl_add_u32 v{vQ0}, v4, 10, v2
        s_mul_i32 s66, s{sBLK}, 80
        s_add_u32 s66, s66, s{sB3}
        s_lshl_b32 s66, s66, 10
        s_add_u32 s88, s66, {O_OFF}
        s_cmp_eq_u32 s{sPAR}, 0
        s_cselect_b32 s67, 2048, 8
        s_add_u32 s89, s67, s88
        s_lshl_b32 s4, s{sH}, 5
        s_add_u32 s4, s4, s{sBLK}
        s_lshl_b32 s4, s4, 7
        s_add_u32 s4, s4, {F2_OFF}
        """)

    def nonce_check(self, v, vz):
        a = self.a
        slow, back = self.lab("nz"), self.lab("nzb")
        a.I(f"v_readfirstlane_b32 s{sNONCE}, v{v}")
        a.I("s_nop 0")
        a.I(f"s_cmp_eq_u32 s{sNONCE}, 0")
        a.I(f"s_cbranch_scc1 {slow}")
        a.label(back)
        def stub():
            self.reset()
            lp = self.lab("nzl")
            a.label(slow)
            a.I("s_mov_b32 s44, 0")
            a.label(lp)
            a.M(f"""
            buffer_load_dword v{v}, v{vz}, {srd(sDBG)}, 0 offen sc1
            s_waitcnt vmcnt(0)
            v_readfirstlane_b32 s{sNONCE}, v{v}
            s_add_u32 s44, s44, 1
            s_cmp_gt_u32 s44, {SPIN_MAX}
            s_cbranch_scc1 {back}
            s_cmp_eq_u32 s{sNONCE}, 0
            s_cbranch_scc1 {lp}
            s_branch {back}
            """)
        self.stubs.append(stub)

    def c_phase1(self):
        a = self.a
        KEEP, ACC = 96, 64
        RL, SV = 244, 6
        a.M(f"""
        s_lshl_b32 s66, s{sXCD}, 5
        s_add_u32 s66, s66, s{sJ}
        s_lshl_b32 s66, s66, 2
        s_add_u32 s66, s66, s{sWAVE}
        s_lshl_b32 s66, s66, 1
        v_lshrrev_b32 v2, 5, v1
        v_add_u32 v12, s66, v2
        v_mul_u32_u24 v6, 1280, v12
        v_and_b32 v2, 31, v1
        v_lshl_add_u32 v6, v2, 4, v6
        v_bfe_u32 v2, v1, 4, 1
        v_lshl_add_u32 v7, v2, 30, v6
        v_lshlrev_b32 v12, 4, v12
        """)
        self.prologue_finish()
        self.stamp()
        self.publish_nonce()
        def row_loads():
            for c in range(3):
                a.I(f"buffer_load_dwordx4 {vr(RL+4*c,4)}, v{SV + (c == 2)}, {srd(sX)}, 0 offen offset:{512*c}")
        def stat_calc():
            a.I("v_mov_b32 v4, 0x3f803f80")
            for k in range(12):
                a.I(f"v_dot2_f32_bf16 v2, v{RL+k}, v4, {'0' if k == 0 else 'v2'}")
                a.I(f"v_dot2_f32_bf16 v3, v{RL+k}, v{RL+k}, {'0' if k == 0 else 'v3'}")
            for sh in (8, 4, 2, 1):
                for r in (2, 3):
                    a.I(f"v_add_f32_dpp v{r}, v{r}, v{r} row_ror:{sh} row_mask:0xf bank_mask:0xf")
            a.M("""
            v_mov_b32 v4, v2
            v_mov_b32 v5, v3
            v_permlane16_swap_b32 v2, v4
            v_permlane16_swap_b32 v3, v5
            v_add_f32 v2, v2, v4
            v_add_f32 v3, v3, v5
            """)
            self.ln_stats(2, 3, 8, 9, 4)
        def nonce_load(): a.I(f"buffer_load_dword v7, v6, {srd(sDBG)}, 0 offen sc1")
        def stat_publish():
            self.nonce_check(7, 6)
            a.M(f"""
            s_mov_b32 s46, {S1_OFF}
            v_mov_b32 v10, s{sNONCE}
            v_mov_b32 v11, s{sNONCE}
            s_mov_b32 exec_lo, 1
            s_mov_b32 exec_hi, 1
            buffer_store_dwordx4 v[8:11], v12, {srd(sWS)}, s46 offen sc1
            s_mov_b64 exec, -1
            """)
        def rows():
            row_loads()
            a.I("v_mov_b32 v6, 0")
        self.rows = rows
        vm0 = list(a.vm)
        a.M(f"""
        s_cmp_ge_u32 s{sJ}, 30
        s_cbranch_scc1 L_c_idle
        s_cmp_ge_u32 s{sJ}, 20
        s_cbranch_scc1 L_c_typew
        """)
        bars0 = list(self.bars)
        ns0 = self.nstamp
        self.c_gemm("x", KEEP, ACC, stat_calc, nonce_load, stat_publish)
        a.I("s_branch L_c_p1_done")
        barsx, self.bars = self.bars, list(bars0)
        self.nstamp = ns0
        a.vm = list(vm0); a.lg = []
        a.label("L_c_typew")
        a.fence(False)
        self.c_gemm("w", KEEP, ACC, stat_calc, nonce_load, stat_publish)
        assert barsx == self.bars
        a.I("s_branch L_c_p1_done")
        a.vm = list(vm0); a.lg = []
        a.label("L_c_idle")
        a.fence(False)
        rows()
        stat_calc()
        nonce_load()
        stat_publish()
        a.I(f"s_mov_b32 s83, {OOB}")
        a.I("v_mov_b32 v35, 0")
        for x in self.setup2_ops(): a.I(x)
        if self.opt.get("prio", 1): a.I(f"s_setprio {self.opt.get('prio', 1)}")
        a.fence()
        a.label("L_c_p1_done")
        a.fence(False)
        a.vm = [(-1 - i, set(), None) for i in range(4)]; a.lg = []
        a.I("v_mov_b32 v170, v35")
        for r in (14, 16, 17, 18, 19, 20, 21, 24, 25, 26, 27, 28, 31): a.I(f"v_mov_b32 v{r}, v{r+96}")

    def setup2_ops(self):
        a = self.a
        a.capture = []
        self.c_setup2()
        ops, a.capture = a.capture, None
        return [re.sub(r"\bv(\d+)\b", lambda m: m.group(0) if m.group(1) == "1" else "v%d" % (int(m.group(1)) + 96), x) for x in ops]

    def signal2(self, soff, vaddr, vt):
        a = self.a
        a.I(f"v_mov_b32 v{vt}, s{sNONCE}")
        a.I(f"buffer_store_dword v{vt}, v{vaddr}, {srd(sWS)}, s{soff} offen sc1")

    def c_gemm(self, T, KEEP, ACC, stat_calc, nonce_load, stat_publish):
        a = self.a
        vRX, vRW, vST, vFG, vS16, vSEL = 28, 32, 34, 35, 36, 16
        CSA, ST, RG = (20, 24), 8, 40
        a.M(f"""
        v_and_b32 v2, 31, v1
        v_lshrrev_b32 v3, 5, v1
        v_bfe_u32 v4, v1, 1, 3
        v_xor_b32 v4, v4, v3
        v_lshlrev_b32 v4, 4, v4
        v_lshl_add_u32 v{vRX}, v2, 7, v4
        v_lshlrev_b32 v{vS16}, 4, v2
        v_lshl_add_u32 v{vST}, v3, 10, v{vS16}
        v_lshlrev_b32 v{vFG}, 2, v2
        v_lshl_add_u32 v{vFG}, v3, {13 if T == 'x' else 7}, v{vFG}
        v_bfe_u32 v4, v1, 2, 2
        v_lshl_add_u32 v5, v3, 3, v4
        v_lshlrev_b32 v5, 7, v5
        v_lshrrev_b32 v4, 1, v4
        v_lshl_add_u32 v5, v4, 6, v5
        v_bfe_u32 v4, v1, 4, 1
        v_lshl_add_u32 v5, v4, 5, v5
        v_and_b32 v37, 3, v1
        v_lshl_add_u32 v{vRW}, v37, 3, v5
        v_and_b32 v37, 15, v1
        v_lshlrev_b32 v4, 2, v4
        v_cmp_eq_u32 vcc, v37, v4
        v_mov_b32 v37, 0x3f803f80
        v_cndmask_b32 v{vSEL}, 0, v37, vcc
        v_cndmask_b32 v{vSEL+1}, 0, v37, vcc
        v_cndmask_b32 v{vSEL+2}, 0, v37, vcc
        v_cndmask_b32 v{vSEL+3}, 0, v37, vcc
        s_lshr_b32 s75, s{sWAVE}, 1
        s_and_b32 s76, s{sWAVE}, 1
        """)
        if T == "x":
            a.M(f"""
            s_lshl_b32 s66, s{sWAVE}, 12
            v_add_u32 v{vRX}, s66, v{vRX}
            s_add_u32 s74, s{sTA}, s75
            s_lshl_b32 s80, s74, 10
            s_lshl_b32 s66, s76, 9
            s_add_u32 s80, s80, s66
            s_add_u32 s80, s80, {S1_OFF}
            s_lshl_b32 s77, s74, 1
            s_add_u32 s77, s77, s76
            """)
            for p, sc in enumerate((sCA, sCB)):
                a.M(f"""
                s_lshl_b32 s67, s74, 5
                s_add_u32 s67, s67, s{sc}
                s_lshl_b32 s67, s67, 13
                s_add_u32 s{78+p}, s67, s66
                s_add_u32 s{84+p}, s{78+p}, 4096
                s_lshl_b32 s67, s{sc}, 7
                s_add_u32 s67, s67, s77
                s_lshl_b32 s67, s67, 7
                s_add_u32 s{82+p}, s67, {F1_OFF}
                """)
        else:
            a.M(f"""
            s_lshl_b32 s66, s75, 13
            s_lshl_b32 s67, s76, 6
            v_xor_b32 v{vRW}, s67, v{vRW}
            v_add_u32 v{vRW}, s66, v{vRW}
            s_cmp_eq_u32 s75, 0
            s_cselect_b32 s74, s{sCA}, s{sCB}
            s_lshl_b32 s74, s74, 1
            s_add_u32 s74, s74, s76
            """)
            for p, st in enumerate((sTA, sTB)):
                a.M(f"""
                s_lshl_b32 s67, s{st}, 6
                s_add_u32 s67, s67, s74
                s_lshl_b32 s{78+p}, s67, 12
                s_add_u32 s{84+p}, s{78+p}, 512
                s_lshl_b32 s{80+p}, s{st}, 10
                s_add_u32 s{80+p}, s{80+p}, {S1_OFF}
                s_lshl_b32 s67, s74, 5
                s_add_u32 s67, s67, s{st}
                s_lshl_b32 s67, s67, 8
                s_add_u32 s{82+p}, s67, {F1_OFF}
                """)
        a.I(f"v_lshrrev_b32 v37, 1, v{vS16}")
        if T == "x":
            a.I(f"s_lshl_b32 s81, s{sCB}, 9")
            a.I(f"s_add_u32 s81, s81, {CQ_OFF}")
        else:
            a.M(f"""
            s_lshl_b32 s77, s74, 8
            s_add_u32 s77, s77, {CQ_OFF}
            s_and_b32 s66, s{sTA}, 7
            s_cselect_b32 s77, {OOB}, s77
            """)
        for k in range(1, 4): a.I(f"v_xor_b32 v{vRX+k}, {32*k}, v{vRX}")
        a.I(f"v_xor_b32 v{vRW+1}, 64, v{vRW}")
        win = {"x": 0, "w": 0}
        def window(kind, off):
            want = 0 if off < 57344 else 57344
            if want != win[kind]:
                for r in (range(vRX, vRX + 4) if kind == "x" else range(vRW, vRW + 2)):
                    a.I(f"v_add_u32 v{r}, {want - win[kind]}, v{r}" if want else f"v_subrev_u32 v{r}, {win[kind]}, v{r}")
                win[kind] = want
            return off - want
        def blk(p, c, k): return ((3*c + k) if p == 0 else 30 + c) % NBLK
        def sreg(g, u): return RG + 8 * (g % 3) + 4 * u
        def reads(g):
            p, gl = divmod(g, 40)
            c, ks = divmod(gl, 4)
            def x_read(dsts, b):
                o = window("x", b * 8192)
                for u, d in enumerate(dsts): r = a.I(f"ds_read_b128 {vr(d,4)}, v{vRX+ks} offset:{o + 4096*u}")
                return r
            def w_read(d, b, ft):
                o = window("w", b * 8192)
                for rd in range(2): r = a.I(f"ds_read_b64_tr_b16 {vr(d+2*rd,2)}, v{vRW+ft} offset:{o + ks*2048 + rd*512}")
                return r
            if T == "x":
                it = [lambda: w_read(sreg(g, 0), blk(p, c, 2), 0), lambda: w_read(sreg(g, 1), blk(p, c, 2), 1)]
                if p == 0: it.insert(0, lambda: x_read([KEEP + 4*gl], blk(0, c, 0)))
            else:
                it = [lambda: x_read([sreg(g, 0), sreg(g, 1)], blk(p, c, 0))]
                if p == 0: it.insert(0, lambda: w_read(KEEP + 4*gl, blk(0, c, 1), 0))
            return it
        def vchunk(g):
            p, gl = divmod(g, 40)
            return gl // 4 if p == 0 else min(10 + gl // 12, self.opt.get('lastb', 12))
        NT = 1 if T == "x" else 2
        def stat_loads(p):
            if T == "x" and p == 1:
                for u in range(2):
                    a.I(f"buffer_load_dwordx2 {vr(CSA[u],2)}, v37, {srd(sWS)}, s81 offen offset:{256*u} sc1")
                return
            for tu in range(NT):
                a.I(f"buffer_load_dwordx4 {vr(ST+4*tu,4)}, v{vS16}, {srd(sWS)}, s{80+p} offen offset:{512*tu} sc1")
        def stat_check(p):
            retry, ok = self.lab("st"), self.lab("sto")
            t0, t1 = (CSA[0] + 1, CSA[1] + 1) if (T == "x" and p == 1) else (ST + 2, ST + 4*NT - 2)
            chk = f"""
            v_cmp_ne_u32 vcc, s{sNONCE}, v{t0}
            v_cmp_ne_u32 s[46:47], s{sNONCE}, v{t1}
            s_or_b64 vcc, vcc, s[46:47]
            """
            a.M(chk)
            a.I(f"s_cbranch_scc1 {retry}")
            a.label(ok)
            def stub():
                self.reset()
                lp = self.lab("stl")
                a.label(retry)
                a.I("s_mov_b32 s44, 0")
                a.label(lp)
                stat_loads(p)
                a.I("s_waitcnt vmcnt(0)")
                a.M(chk)
                a.M(f"""
                s_cbranch_scc0 {ok}
                s_add_u32 s44, s44, 1
                s_cmp_gt_u32 s44, {SPIN_MAX}
                s_cbranch_scc0 {lp}
                s_branch {ok}
                """)
            self.stubs.append(stub)
        def epilogue(p, g):
            E = [sreg(g + 1, 0), sreg(g + 1, 1), sreg(g + 2, 0), sreg(g + 2, 1)]
            EA = E[:2]; EB = E[2:]
            pre, post = [], []
            if T == "x" and p == 1: pre.append(f"v_mul_f32 v{ST+1}, 0.5, v{ST+1}")
            for u in range(NT):
                pre += [f"v_cvt_pk_bf16_f32 v{EB[u]}, -v{ST+4*u+1}, -v{ST+4*u+1}", f"v_mov_b32 v{EB[u]+1}, v{EB[u]}",
                        f"v_mov_b32 v{EB[u]+2}, 0", f"v_mov_b32 v{EB[u]+3}, 0"]
            for u in range(3 - NT): pre += [f"v_mov_b32 v{EA[u]+2}, 0", f"v_mov_b32 v{EA[u]+3}, 0"]
            rr = [ST, ST + 4]
            if T == "x":
                rr = [ST, ST]
                if p == 0:
                    pre.append(f"v_mul_f32 v{ST+4}, {hex(f2u(QSCALE))}, v{ST}")
                    rr = [ST + 4, ST + 4]
            for u in range(3 - NT):
                c0 = CSA[u]
                ops = [f"v_and_b32 v2, 0xffff0000, v{c0}", f"v_sub_f32 v3, v{c0}, v2", "v_and_b32 v4, 0xffff0000, v3",
                       "v_sub_f32 v3, v3, v4", f"v_cvt_pk_bf16_f32 v{EA[u]}, v2, v4", f"v_cvt_pk_bf16_f32 v{EA[u]+1}, v3, 0"]
                if p == 1: pre += ops
                else: post += ops
            for u in range(2):
                d = ACC + 16*u
                post.append(f"v_mfma_f32_32x32x16_bf16 {vr(d,16)}, {vr(EA[u if T == 'x' else 0],4)}, {vr(EB[0 if T == 'x' else u],4)}, {vr(d,16)}")
            for u in range(2):
                d = ACC + 16*u
                post += [f"v_pk_mul_f32 {vr(d+2*k,2)}, {vr(d+2*k,2)}, {vr(rr[u],2)} op_sel:[0,0] op_sel_hi:[1,0]" for k in range(8)]
                post += [f"v_cvt_pk_bf16_f32 v{d+k}, v{d+2*k}, v{d+2*k+1}" for k in range(8)]
                for pr in range(2):
                    post += [f"v_permlane32_swap_b32 v{d+4*pr}, v{d+4*pr+2}", f"v_permlane32_swap_b32 v{d+4*pr+1}, v{d+4*pr+3}"]
                post += [f"buffer_store_dwordx4 {vr(d+4*pr,4)}, v{vST}, {srd(sWS)}, s{(78 if u == 0 else 84)+p} offen offset:{2048*pr} sc1" for pr in range(2)]
            if T == "w" and p == 0:
                post += [f"v_mov_b32 v{CSA[0]+1}, s{sNONCE}", "s_mov_b32 exec_hi, 0",
                         f"buffer_store_dwordx2 {vr(CSA[0],2)}, v37, {srd(sWS)}, s77 offen sc1", "s_mov_b32 exec_hi, -1"]
            return pre, post
        if self.opt.get("prio", 1): a.I(f"s_setprio {self.opt.get('prio', 1)}")
        SIG = self.opt.get("sig", 52)
        su = self.setup2_ops()
        last = {}
        seen = -1
        def issue(g):
            nonlocal seen
            if vchunk(g) > seen:
                seen = vchunk(g)
                self.bar(f"p1_{seen}")
                if seen == 0 or (self.fine and seen % 2 == 0): self.stamp()
            for it in reads(g): last[g] = it()
        for g in range(80):
            p, gl = divmod(g, 40)
            if gl == 0:
                issue(g); issue(g + 1)
            a.wait_lg(last[g])
            cs_on = p == 0
            fill = []
            if gl == 39:
                stat_check(p)
                fill, post = epilogue(p, g)
            if cs_on:
                for u in range(3 - NT):
                    w = sreg(g, u) if T == "x" else KEEP + 4*gl
                    a.I(f"v_mfma_f32_16x16x32_bf16 {vr(CSA[u],4)}, {vr(vSEL,4)}, {vr(w,4)}, {'0' if gl == 0 else vr(CSA[u],4)}")
            for u in range(2):
                d = ACC + 16*u
                A, B = (sreg(g, u), KEEP + 4*gl) if T == "x" else (KEEP + 4*gl, sreg(g, u))
                a.I(f"v_mfma_f32_32x32x16_bf16 {vr(d,16)}, {vr(A,4)}, {vr(B,4)}, {'0' if gl == 0 else vr(d,16)}")
                if u == 0:
                    if g == self.opt.get("scg", 10): stat_calc()
                    if gl + 2 < 40: issue(g + 2)
                else:
                    if g == self.opt.get('rlg', 0): self.rows()
                    if g == 3: nonce_load()
                    if g == self.opt.get("pub", 11): stat_publish()
                    if gl == self.opt.get("gs", 30): stat_loads(p)
                    if g == SIG:
                        a.I("s_waitcnt vmcnt(0)")
                        self.signal2(82, vFG, 2)
                for x in fill[:len(fill) // 2 + 1] if u == 0 else fill[len(fill) // 2 + 1:]: a.I(x)
                if g >= 49 and u == 1:
                    k = 0
                    while su and (k < 5 or su[0].startswith("s_cselect")):
                        a.I(su.pop(0)); k += 1
            if g == 78: assert not su
            if gl == 39:
                self.stamp()
                for x in post: a.I(x)
                self.stamp()

    def c_setup2(self):
        a = self.a
        self.roles()
        a.M(f"""
        v_add_u32 v{vK0}, {RING}, v{vQ0}
        s_cmp_eq_u32 s{sPAR}, 0
        s_cselect_b32 s63, 2048, 0
        v_add_u32 v31, s63, v2
        v_add_u32 v4, 6144, v2
        v_cmp_gt_u32 vcc, 32, v1
        v_cndmask_b32 v{vK1}, v4, v31, vcc
        v_add_u32 v{vK1}, {RING}, v{vK1}
        v_bfe_u32 v4, v1, 4, 1
        v_and_b32 v5, 3, v1
        v_lshl_add_u32 v4, v4, 2, v5
        v_lshrrev_b32 v5, 1, v4
        v_add_u32 v6, s{sPAR}, v5
        s_lshr_b32 s63, s63, 10
        v_mov_b32 v7, s63
        v_cmp_eq_u32 vcc, 2, v5
        v_cndmask_b32 v6, v6, v7, vcc
        v_and_b32 v8, 1, v4
        v_xor_b32 v9, s{sPAR}, v8
        v_cndmask_b32 v8, v8, v9, vcc
        v_cmp_le_u32 vcc, 5, v4
        v_cndmask_b32 v6, v6, 3, vcc
        v_cndmask_b32 v8, v8, 0, vcc
        v_cmp_eq_u32 vcc, 5, v4
        v_cndmask_b32 v8, v8, 1, vcc
        v_bfe_u32 v9, v1, 2, 2
        v_lshl_add_u32 v9, v3, 2, v9
        v_lshlrev_b32 v10, 2, v6
        v_xor_b32 v9, v9, v10
        v_lshlrev_b32 v9, 4, v9
        v_lshl_add_u32 v9, v6, 10, v9
        v_lshl_add_u32 v9, v8, 3, v9
        v_add_u32 v{vV}, {RING+3072}, v9
        v_xor_b32 v{vV+1}, 128, v{vV}
        s_add_u32 s67, s{sOWN}, 1
        s_and_b32 s67, s67, 3
        s_lshl_b32 s66, s{sRB64}, 2
        s_add_u32 s66, s66, s67
        s_lshl_b32 s66, s66, 4
        v_and_b32 v2, 15, v1
        v_add_u32 v2, s66, v2
        v_mul_u32_u24 v2, 1280, v2
        v_lshrrev_b32 v3, 4, v1
        v_lshl_add_u32 v2, v3, 3, v2
        s_mul_i32 s66, s{sCB3}, 160
        v_add_u32 v14, s66, v2
        s_mul_i32 s66, s{sWAVE}, 3072
        s_add_u32 s66, s66, {QST}
        v_add_u32 v17, s66, v{vQ0}
        v_add_u32 v18, s66, v31
        s_mul_i32 s66, s{sWAVE}, 20480
        v_add_u32 v19, s66, v{vKV}
        s_mul_i32 s66, s{sWAVE}, 5120
        s_cmp_lt_u32 s{sWAVE}, 2
        s_cselect_b32 s67, 0, {4*SLOT - 10240}
        s_add_u32 s66, s66, s67
        s_add_u32 s66, s66, {WST}
        v_add_u32 v21, s66, v{vKV}
        s_mov_b32 s61, 0
        """)
        self.xg_addr(20)

    def wor(self, st, f):
        return 176 + 20*st + 4*f if st < 4 else 52 + 4*f

    def c_phase2(self):
        a = self.a
        Q, KB, VB, P, S, O = 32, 48, 64, 80, 96, 128
        a.M(f"""
        s_cmp_eq_u32 s{sPAR}, 0
        s_cselect_b32 s62, -1, 0
        s_cselect_b32 s64, 0, -1
        s_mov_b32 s63, 0
        s_mov_b32 s65, 0
        """)
        self.bar("first")
        self.stamp()
        def koff(i):
            c, t = divmod(i, 4)
            return ((c + KSL) % NSLOT) * SLOT + (t >> 1) * 7168 + (t & 1) * 512
        def kread(i):
            b = KB + 8 * (i & 1)
            return [lambda: a.I(f"ds_read_b128 {vr(b,4)}, v{vK0} offset:{koff(i)}"),
                    lambda: a.I(f"ds_read_b128 {vr(b+4,4)}, v{vK1} offset:{koff(i)}")]
        def vread(i):
            b = VB + 8 * (i & 1)
            return [lambda j=j, rd=rd: a.I(f"ds_read_b64_tr_b16 {vr(b+4*j+2*rd,2)}, v{vV+rd} offset:{koff(i)+256*j}")
                    for j in range(2) for rd in range(2)]
        def qk(t, i):
            b = KB + 8 * (i & 1); s = S + 16 * t; q = Q + 8 * t
            return [f"v_mfma_f32_32x32x16_bf16 {vr(s,16)}, {vr(b,4)}, {vr(q,4)}, 0",
                    f"v_mfma_f32_32x32x16_bf16 {vr(s,16)}, {vr(b+4,4)}, {vr(q+4,4)}, {vr(s,16)}"]
        def pv(t, i):
            b = VB + 8 * (i & 1); o = O + 16 * t; p = P + 8 * t
            c0 = "0" if i == 0 else vr(o, 16)
            return [f"v_mfma_f32_32x32x16_bf16 {vr(o,16)}, {vr(b,4)}, {vr(p,4)}, {c0}",
                    f"v_mfma_f32_32x32x16_bf16 {vr(o,16)}, {vr(b+4,4)}, {vr(p+4,4)}, {vr(o,16)}"]
        for t in range(2):
            a.I(f"ds_read_b128 {vr(Q+8*t+4,4)}, v18 offset:{512*t}")
        for t in range(2):
            a.I(f"ds_read_b128 {vr(Q+8*t,4)}, v17 offset:{512*t}")
        for it in kread(0) + kread(1) + vread(0): it()
        for t in range(2):
            for k in range(4):
                m = "s[62:63]" if k < 2 else "s[64:65]"
                a.I(f"v_cndmask_b32 v{Q+8*t+4+k}, 0, v{Q+8*t+4+k}, {m}")
        for t in range(2):
            for m in qk(t, 0): a.I(m)
        a.I("s_mov_b32 s62, 0")
        a.I("s_mov_b32 s63, -1")
        for t in range(2):
            s = S + 16 * t
            a.I(f"v_max3_f32 v{2+t}, v{s}, v{s+1}, v{s+2}")
            for k in range(3, 15, 2):
                a.I(f"v_max3_f32 v{2+t}, v{2+t}, v{s+k}, v{s+k+1}")
            a.I(f"v_max_f32 v{2+t}, v{2+t}, v{s+15}")
            a.I(f"v_mov_b32 v{4+t}, v{2+t}")
            a.I(f"v_permlane32_swap_b32 v{2+t}, v{4+t}")
            a.I(f"v_max_f32 v{2+t}, v{2+t}, v{4+t}")
            a.I(f"v_cvt_pk_bf16_f32 v{2+t}, -v{2+t}, 0")
            a.I(f"v_cndmask_b32 v{Q+8*t+4}, v{Q+8*t+4}, v{2+t}, s[62:63]")
            if t == 0:
                for m in qk(0, 0): a.I(m)
        lastfill = [None]
        extra = []
        def half(t, mf, fill):
            s = S + 16 * t; p = P + 8 * t
            mf = list(mf); fill = list(fill)
            for q in range(4):
                if mf: a.I(mf.pop(0))
                if fill: lastfill[0] = fill.pop(0)()
                elif extra:
                    a.I(extra.pop(0))
                    if extra: a.I(extra.pop(0))
                for k in range(4):
                    a.I(f"v_exp_f32 v{s+4*q+k}, v{s+4*q+k}")
                if q > 0:
                    for k in range(2):
                        a.I(f"v_cvt_pk_bf16_f32 v{p+2*(q-1)+k}, v{s+4*(q-1)+2*k}, v{s+4*(q-1)+2*k+1}")
            assert not fill and not mf
            for k in range(2):
                a.I(f"v_cvt_pk_bf16_f32 v{p+6+k}, v{s+12+2*k}, v{s+12+2*k+1}")
        self.stamp()
        half(0, qk(1, 0), [])
        for i in range(64):
            if lastfill[0] is not None: a.wait_lg(lastfill[0])
            if i == 2 or ((i + 2) % 8 == 0 and i + 2 < 64):
                c = (i + 2) // 4
                assert not extra
                self.bar(f"kv{c}")
                if self.opt.get("att"): self.stamp()
                if c == 8:
                    extra += [f"ds_read_b128 {vr(self.wor(st,f),4)}, v19 offset:{5120*st+1024*f}" for st in range(4) for f in range(5)]
            if i == self.opt.get("sg2", 1):
                a.I("s_waitcnt vmcnt(0)")
                self.signal2(83, 170, 2)
            if i == 10:
                extra += [f"buffer_load_dwordx2 {vr(vXR+2*f,2)}, v14, {srd(sX)}, 0 offen offset:{32*f}" for f in range(5)]
                extra += [f"buffer_load_dword v15, v20, {srd(sWS)}, 0 offen sc1"]
            if i == 63: self.bar("att_end")
            kr = kread(i + 2) if i + 2 < 64 else []
            vrd = vread(i + 1) if i + 1 < 64 else []
            mfb = (qk(0, i + 1) if i + 1 < 64 else []) + pv(0, i)
            fl = kr + vrd
            half(1, mfb, fl[:4])
            if i + 1 < 64:
                half(0, qk(1, i + 1) + pv(1, i), fl[4:])
        self.stamp()
        for m in pv(1, 63): a.I(m)
        a.label("L_slow_back")
        a.I(f"s_mov_b32 s66, {hex(f2u(2.0**100))}")
        a.I(f"s_mov_b32 s67, {hex(f2u(2.0**-30))}")
        for t in range(2):
            o = O + 16 * t; p = S + 8 * t
            a.I(f"v_rcp_f32 v{2+2*t}, v{o+12}")
            a.I(f"v_cmp_nge_f32 s[{62+2*t}:{63+2*t}], v{o+12}, s67")
            for k in range(0, 12, 2):
                a.I(f"v_pk_mul_f32 {vr(o+k,2)}, {vr(o+k,2)}, {vr(2+2*t,2)} op_sel:[0,0] op_sel_hi:[1,0]")
            for k in range(6):
                a.I(f"v_cvt_pk_bf16_f32 v{p+k}, v{o+2*k}, v{o+2*k+1}")
            for k in range(3):
                a.I(f"v_pk_add_f32 {vr(o+4*k,2)}, {vr(o+4*k,2)}, {vr(o+4*k+2,2)}")
            a.I(f"v_permlane32_swap_b32 v{p}, v{p+2}")
            a.I(f"v_permlane32_swap_b32 v{p+1}, v{p+3}")
            a.I(f"v_pk_add_f32 {vr(o,2)}, {vr(o,2)}, {vr(o+4,2)}")
            a.I(f"v_pk_add_f32 {vr(o,2)}, {vr(o,2)}, {vr(o+8,2)}")
            a.I(f"v_add_f32 v{o}, v{o}, v{o+1}")
            a.I(f"v_fma_f32 v{o}, v{o}, 0, v{o+12}")
            if t == 0:
                a.I(f"v_cmp_nle_f32 vcc, v{o}, s66")
                a.I("s_or_b64 s[62:63], s[62:63], vcc")
        a.M(f"""
        v_cmp_nle_f32 vcc, v{O+16}, s66
        s_or_b64 s[62:63], s[62:63], s[64:65]
        v_permlane32_swap_b32 v{S+4}, v{S+12}
        v_permlane32_swap_b32 v{S+5}, v{S+13}
        s_or_b64 vcc, vcc, s[62:63]
        s_cbranch_scc1 L_slow
        """)
        a.label("L_slow_done")
        a.M(f"""
        buffer_store_dwordx4 {vr(S,4)}, v{vQ0}, {srd(sWS)}, s88 offen sc1
        buffer_store_dwordx4 {vr(S+8,4)}, v{vQ0}, {srd(sWS)}, s88 offen offset:512 sc1
        buffer_store_dwordx2 {vr(S+4,2)}, v{vKV}, {srd(sWS)}, s89 offen sc1
        """)
        self.stamp()
        self.slow_args = dict(Q=Q, KB=KB, VB=VB, P=P, S=S, O=O, vK0=vQ0, vV=vV, vKV=vKV)

    def ksplit(self, nst, wreg, load, areg, chk, nup, accs, cinit0, wr, hooks, fillers=()):
        a = self.a
        total = 4 * nst
        pendw = []
        fillers = list(fillers)
        late = []
        for u in range(4):
            acc = accs[u]
            for st in range(nst):
                n = u * nst + st
                if (u, st) in hooks:
                    assert not pendw
                    late = hooks[(u, st)]() or []
                for f in range(5):
                    cc = "0" if (st == 0 and not (u == 0 and cinit0)) else vr(acc + 4*f, 4)
                    a.I(f"v_mfma_f32_16x16x32_bf16 {vr(acc+4*f,4)}, {vr(wreg(st,f),4)}, {vr(areg(n),4)}, {cc}")
                    if chk and f == 3 and nup <= n + 1 < total:
                        check_data(self, chk(n + 1), lambda n=n: [load(k) for k in range(n + 1, min(n + 1 + nup, total))])
                    if f == 0 and n + nup < total: load(n + nup)
                    elif f == 4 and n + 1 < total and not late and not pendw: pass
                    elif pendw:
                        if st >= 1 or f >= 3 or (pendw[0].startswith("v_") and f >= 2):
                            k = 0
                            while pendw and k < 4:
                                x = pendw.pop(0); a.I(x)
                                k += 1 if x.startswith("v_") else 4
                    elif late:
                        for _ in range(3):
                            if late:
                                x = late.pop(0)
                                if x: a.I(x)
                    elif fillers and n >= nup + 1:
                        a.I(fillers.pop(0))
            assert not pendw
            pendw = wr(u) or []
        return pendw, [x for x in late if x] + fillers

    def c_phase3(self):
        a = self.a
        AF = 72
        vRW, vRR, vA = 8, 11, 12
        accs = [32, AF, AF + 20, 32]
        SO3 = self.opt.get("so3", 0)
        ostore = a.vm[-1][0]
        self.xg_mode(15)
        for f in range(5): a.I(f"ds_read_b128 {vr(self.wor(4,f),4)}, v21 offset:{1024*f}")
        for r in range(10):
            a.I(f"v_lshlrev_b32 v{accs[0]+2*r}, 16, v{vXR+r}")
            a.I(f"v_and_b32 v{accs[0]+2*r+1}, 0xffff0000, v{vXR+r}")
        a.M(f"""
        v_lshrrev_b32 v2, 4, v1
        v_and_b32 v3, 15, v1
        v_lshlrev_b32 v3, 4, v3
        v_lshl_add_u32 v3, v2, 10, v3
        """)
        for u in range(4):
            a.M(f"""
            s_add_u32 s66, s{sOWN}, {u+1}
            s_and_b32 s66, s66, 3
            s_lshl_b32 s67, s66, 8
            v_add_u32 v{vA+u}, s67, v3
            s_mul_i32 s66, s66, 5120
            s_add_u32 s66, s66, 143360
            v_add_u32 v{vRW+u}, s66, v{vKV}
            """)
        a.M(f"""
        v_and_b32 v2, 7, v1
        s_lshl_b32 s66, s{sWAVE}, 3
        v_add_u32 v2, s66, v2
        v_lshl_add_u32 v2, v2, 5, s{sRB64}
        v_lshlrev_b32 v2, 7, v2
        v_add_u32 v{vFA}, {F2_OFF}, v2
        s_mul_i32 s62, s{sRB64}, 80
        s_mul_i32 s66, s{sWAVE}, 20
        s_add_u32 s62, s62, s66
        s_lshl_b32 s62, s62, 10
        s_add_u32 s62, s62, {O_OFF}
        s_add_u32 s63, s62, 4096
        s_add_u32 s64, s62, 8192
        s_add_u32 s65, s62, 12288
        s_add_u32 s58, s62, 16384
        s_lshl_b32 s66, s{sRB64}, 2
        s_add_u32 s66, s66, s{sOWN}
        s_lshl_b32 s66, s66, 4
        v_and_b32 v5, 15, v1
        v_add_u32 v24, s66, v5
        v_lshlrev_b32 v24, 6, v24
        v_bfe_u32 v2, v1, 4, 1
        v_lshrrev_b32 v3, 5, v1
        v_lshl_add_u32 v4, v2, 1, v3
        v_lshlrev_b32 v5, 4, v5
        v_lshl_add_u32 v25, v4, 10, v5
        v_lshl_add_u32 v5, v3, 10, v5
        v_lshl_add_u32 v26, v2, 3, v5
        s_mul_i32 s66, s{sRB64}, 80
        s_mul_i32 s67, s{sCB3}, 10
        s_add_u32 s66, s66, s67
        s_lshl_b32 s66, s66, 10
        s_lshl_b32 s67, s{sOWN}, 8
        s_add_u32 s66, s66, s67
        s_add_u32 s54, s66, {H_OFF}
        s_add_u32 s55, s54, 4096
        s_add_u32 s56, s54, 8192
        s_lshl_b32 s59, s{sCB3}, 3
        s_add_u32 s59, s59, {ST_OFF}
        v_mov_b32 v19, 0x3f803f80
        """)
        so = [62, 63, 64, 65, 58]
        def load(n):
            u, st = divmod(n, 5)
            a.I(f"buffer_load_dwordx4 {vr(AF+4*n,4)}, v{vA+u}, {srd(sWS)}, s{so[st]} offen sc1")
        NUP = self.opt.get("nb3", 8)
        chk = lambda n: [AF + 4*n, AF + 4*n + 2]
        a.I("s_waitcnt lgkmcnt(0)")
        if SO3:
            if self.opt.get("ackfirst", 1):
                a.wait_vm(ostore)
                self.signal(4, 4)
            for n in range(NUP): load(n)
            self.bar("wo_read")
            a.I("s_waitcnt vmcnt(0)")
            if not self.opt.get("ackfirst", 1): self.signal(4, 4)
            self.stamp()
            check_data(self, sum([chk(n) for n in range(NUP)], []), lambda: [load(n) for n in range(NUP)])
            self.stamp()
        else:
            a.wait_vm(ostore)
            self.signal(4, 4)
            self.stamp()
            self.bar("wo_read")
            self.poll([vFA], 2)
            self.stamp()
            for n in range(NUP): load(n)
        a.M(f"""
        s_lshl_b32 s4, s{sRB64}, 3
        s_add_u32 s4, s4, s{sCB3}
        s_lshl_b32 s4, s4, 2
        s_add_u32 s4, s4, s{sOWN}
        s_lshl_b32 s4, s4, 7
        s_add_u32 s4, s4, {F3_OFF}
        """)
        T = 152
        def gather(u):
            def f():
                a.I("s_waitcnt lgkmcnt(0)")
                self.bar(f"red3_{u}")
                return [f"ds_read_b128 {vr(T+4*f,4)}, v{vRW+u} offset:{1024*f}" for f in range(5)]
            return f
        def wr(u):
            if u == 3: return None
            out = []
            for f in range(5):
                if u > 0: out += [f"v_add_f32 v{accs[u]+4*f+e}, v{accs[u]+4*f+e}, v{T+4*f+e}" for e in range(4)]
                out.append(f"ds_write_b128 v{vRW+u}, {vr(accs[u]+4*f,4)} offset:{1024*f}")
            return out
        _, rest = self.ksplit(5, self.wor, load, lambda n: AF + 4*n, chk if SO3 else None, NUP, accs, True, wr,
                              {(1, 2): gather(1), (2, 3): gather(2), (3, 3): gather(3)})
        for x in rest: a.I(x)
        R = accs[3]
        for r in range(0, 20, 2): a.I(f"v_pk_add_f32 {vr(R+r,2)}, {vr(R+r,2)}, {vr(T+r,2)}")
        for r in range(8): a.I(f"v_cvt_pk_bf16_f32 v{T+r}, v{R+2*r}, v{R+2*r+1}")
        for r in range(8, 10): a.I(f"v_cvt_pk_bf16_f32 v{vH+r}, v{R+2*r}, v{R+2*r+1}")
        for pr in range(2):
            a.I(f"v_permlane16_swap_b32 v{T+4*pr}, v{T+4*pr+2}")
            a.I(f"v_permlane16_swap_b32 v{T+4*pr+1}, v{T+4*pr+3}")
        def tail():
            a.M(f"""
            buffer_store_dwordx4 {vr(T,4)}, v25, {srd(sWS)}, s54 offen SCX
            buffer_store_dwordx4 {vr(T+4,4)}, v25, {srd(sWS)}, s55 offen SCX
            buffer_store_dwordx2 {vr(vH+8,2)}, v26, {srd(sWS)}, s56 offen SCX
            """)
            src = [T + r for r in range(8)] + [vH + 8, vH + 9]
            for i, r in enumerate(src):
                a.I(f"v_dot2_f32_bf16 v6, v{r}, v19, {'0' if i == 0 else 'v6'}")
                a.I(f"v_dot2_f32_bf16 v7, v{r}, v{r}, {'0' if i == 0 else 'v7'}")
            for x, y in zip(rg_ops(6, 2), rg_ops(7, 3)):
                a.I(x); a.I(y)
            a.M(f"""
            s_mov_b64 exec, 0xffff
            buffer_store_dwordx2 v[6:7], v24, {srd(sWS)}, s59 offen SCX
            s_mov_b64 exec, -1
            """)
        self.dual(tail)
        self.stamp()
        for r in range(8): a.I(f"v_cvt_pk_bf16_f32 v{vH+r}, v{R+2*r}, v{R+2*r+1}")

    def c_phase4(self):
        a = self.a
        sCB4 = 5
        ACC = 32
        WB = [88, 116]
        AF, NB = 144, 9
        vTR, vA, vCSA = 24, 27, 28
        a.M(f"""
        s_lshr_b32 s66, s{sJ}, 4
        s_lshl_b32 s62, s{sXCD}, 1
        s_add_u32 s62, s62, s66
        s_lshl_b32 s63, s62, 1
        s_lshr_b32 s66, s{sWAVE}, 1
        s_add_u32 s63, s63, s66
        s_and_b32 s64, s{sWAVE}, 1
        v_and_b32 v2, 7, v1
        s_lshl_b32 s66, s63, 3
        v_add_u32 v2, s66, v2
        v_bfe_u32 v3, v1, 3, 1
        v_lshl_add_u32 v2, v2, 2, v3
        s_lshl_b32 s66, s64, 1
        v_add_u32 v2, s66, v2
        v_lshlrev_b32 v2, 7, v2
        v_add_u32 v{vFA}, {F3_OFF}, v2
        v_lshrrev_b32 v2, 4, v1
        v_and_b32 v3, 15, v1
        v_lshlrev_b32 v4, 4, v3
        v_lshl_add_u32 v{vA}, v2, 10, v4
        v_lshlrev_b32 v{vCSA}, 4, v2
        v_lshl_add_u32 v29, v3, 6, v{vCSA}
        v_add_u32 v{vCSA}, 143360, v{vCSA}
        s_mul_i32 s65, s63, 80
        s_lshl_b32 s65, s65, 10
        s_lshl_b32 s66, s64, 9
        s_add_u32 s65, s65, s66
        s_add_u32 s70, s65, {H_OFF}
        s_add_u32 s71, s70, 4096
        s_add_u32 s72, s70, 8192
        s_add_u32 s73, s70, 12288
        s_lshl_b32 s58, s63, 6
        s_lshl_b32 s67, s64, 5
        s_add_u32 s58, s58, s67
        s_lshl_b32 s58, s58, 6
        s_add_u32 s58, s58, {ST_OFF}
        s_waitcnt vmcnt(0)
        """)
        self.dual(lambda: self.signal(4, 4, "SCX"))
        self.stamp()
        self.bar("red3_done")
        a.I(f"v_add_u32 v{vTR+1}, {8*7168}, v{vKV}")
        a.I(f"v_add_u32 v{vTR+2}, {16*7168}, v{vKV}")
        a.I(f"v_mov_b32 v{vTR}, v{vKV}")
        def wreads(st):
            b = WB[st & 1]
            return [lambda f=f: a.I(f"ds_read_b128 {vr(b+4*f,4)}, v{vTR+st//8} offset:{(st%8)*7168+f*1024}") for f in range(7)]
        ids = [it() for it in wreads(0)]
        self.poll([vFA], 2)
        self.stamp()
        def load(st, tus=(0, 1)):
            r = AF + 8 * (st % NB)
            for tu in tus:
                a.I(f"buffer_load_dwordx4 {vr(r+4*tu,4)}, v{vA}, {srd(sWS)}, s{70+st} offen offset:{256*tu} sc1")
        NU4 = 4
        for st in range(NU4): load(st)
        for tu in range(2):
            a.I(f"buffer_load_dwordx4 {vr(8+4*tu,4)}, v29, {srd(sWS)}, s58 offen offset:{1024*tu} sc1")
        for st in range(4, 20): a.I(f"s_add_u32 s{70+st}, s70, {4096*st}")
        a.M(f"""
        v_and_b32 v31, 31, v1
        v_lshlrev_b32 v31, 4, v31
        v_lshrrev_b32 v4, 5, v1
        v_lshl_add_u32 v31, v4, 10, v31
        s_mul_i32 s54, s63, 216
        s_mul_i32 s66, s{sCB4}, 14
        s_add_u32 s54, s54, s66
        s_lshl_b32 s54, s54, 10
        s_lshl_b32 s66, s64, 9
        s_add_u32 s54, s54, s66
        s_add_u32 s54, s54, {H1_OFF}
        s_lshl_b32 s4, s62, 4
        s_add_u32 s4, s4, s{sCB4}
        s_lshl_b32 s4, s4, 2
        s_add_u32 s4, s4, s{sWAVE}
        s_lshl_b32 s4, s4, 7
        s_add_u32 s4, s4, {F4_OFF}
        """)
        fill = []
        for tu in range(2):
            m = 8 + 4*tu
            fill += [f"v_add_f32 v{m}, v{m}, v{m+2}"] + rg_ops(m, m + 1) + [f"v_mul_f32 v{m}, {hex(f2u(-1.0/640))}, v{m}",
                     f"v_cvt_pk_bf16_f32 v{m}, v{m}, v{m}", f"v_and_b32 v{m}, 0xffff0000, v{m}"]
        CS = AF + 8 * (20 % NB)
        csq = [f"ds_read_b128 {vr(CS+4*f,4)}, v{vCSA} offset:{64*f}" for f in range(7)]
        for st in range(20):
            if self.opt.get("fine4") and st in (1, 5, 9, 10, 19): self.stamp()
            rd = wreads(st + 1) if st + 1 < 20 else []
            b = WB[st & 1]; r = AF + 8 * (st % NB)
            prev, ids = ids, []
            for f in range(7):
                if f == 0: a.wait_lg(prev[6])
                for tu in range(2):
                    d = ACC + 8 * f + 4 * tu
                    cc = "0" if st == 0 else vr(d, 4)
                    a.I(f"v_mfma_f32_16x16x32_bf16 {vr(d,4)}, {vr(b+4*f,4)}, {vr(r+4*tu,4)}, {cc}")
                    k = 2 * f + tu
                    if k == 0 and st == 9: self.bar("w1_mid")
                    if k == 0 and st == 19: self.bar("w1_done")
                    if k in (1, 8) and st + NU4 < 20: load(st + NU4, (k // 8,))
                    elif rd and k >= 2: ids.append(rd.pop(0)())
                    elif csq and st >= 16 and k >= 10: a.I(csq.pop(0))
                    elif fill and st >= 3 and 10 <= k < 13: a.I(fill.pop(0))
            if st == 17: assert not csq
        assert not fill and not csq
        self.stamp()
        P = WB[0]
        def epi():
            skip = self.lab("h1")
            for f in range(7):
                if f == 3:
                    a.I(f"s_cmp_eq_u32 s{sCB4}, 15")
                    a.I(f"s_cbranch_scc1 {skip}")
                for tu in range(2):
                    d = ACC + 8 * f + 4 * tu
                    for e in range(0, 4, 2):
                        a.I(f"v_pk_fma_f32 {vr(d+e,2)}, {vr(CS+4*f+e,2)}, {vr(8+4*tu,2)}, {vr(d+e,2)} op_sel:[0,0,0] op_sel_hi:[1,0,1]")
                for tu in range(2):
                    d = ACC + 8 * f + 4 * tu
                    for k in range(2):
                        a.I(f"v_cvt_pk_bf16_f32 v{P+4*f+2*tu+k}, v{d+2*k}, v{d+2*k+1}")
                for k in (0, 2, 1, 3):
                    a.I(f"v_pk_max_i16 v{P+4*f+k}, v{P+4*f+k}, 0")
                if f % 2 == 0 and f > 0: a.I("s_add_u32 s54, s54, 4096")
                a.I(f"v_permlane16_swap_b32 v{P+4*f}, v{P+4*f+2}")
                a.I(f"v_permlane16_swap_b32 v{P+4*f+1}, v{P+4*f+3}")
                a.I(f"buffer_store_dwordx4 {vr(P+4*f,4)}, v31, {srd(sWS)}, s54 offen offset:{2048*(f%2)} SCX")
            a.fence()
            a.label(skip)
        self.dual(epi)
        self.stamp()

    def p5_addrs(self, vA, vW, first_slot, nw, steps):
        a = self.a
        a.M(f"""
        v_lshrrev_b32 v2, 4, v1
        v_and_b32 v3, 15, v1
        v_lshlrev_b32 v3, 4, v3
        v_lshl_add_u32 v3, v2, 10, v3
        s_mul_i32 s62, s{sRB64}, 216
        s_mul_i32 s66, s{sWAVE}, 56
        s_add_u32 s63, s62, 212
        s_add_u32 s62, s62, s66
        s_lshl_b32 s62, s62, 10
        s_add_u32 s62, s62, {H1_OFF}
        s_lshl_b32 s63, s63, 10
        s_add_u32 s63, s63, {H1_OFF}
        """)
        for u in range(4):
            a.M(f"""
            s_add_u32 s66, s{sOWN}, {u+1}
            s_and_b32 s66, s66, 3
            s_lshl_b32 s67, s66, 8
            v_add_u32 v{vA+u}, s67, v3
            s_mul_i32 s66, s66, 35840
            s_add_u32 s66, s66, {5120*(first_slot+u) if u < nw else 0}
            v_add_u32 v{vW+u}, s66, v{vKV}
            """)
        for k, st in enumerate(steps):
            a.I(f"s_add_u32 s{70+k}, s62, {4096*st}")
            if st >= 12: a.I(f"s_min_u32 s{70+k}, s{70+k}, s63")

    def c_phase5(self):
        a = self.a
        vW, vA = 8, 12
        HS = self.opt.get("hs", 9)
        NC = 14 - HS
        WF, AF, NUP = 100, 32, self.opt.get("nb5c", 6)
        NB = NUP + 1
        accs = [60, 80, 60, 80]
        HU, T = 232, 116
        assert AF + 4 * NB <= 60 and WF + 20 * NC <= 222
        a.I(f"s_mul_i32 s66, s{sWAVE}, 5120")
        a.I(f"v_add_u32 v17, s66, v{vKV}")
        a.I(f"v_add_u32 v18, 61440, v17")
        def wread(k):
            for f in range(5):
                a.I(f"ds_read_b128 {vr(WF+20*k+4*f,4)}, v{17 if k < 3 else 18} offset:{20480*(k % 3)+1024*f}")
        for k in range(3): wread(k)
        self.p5_addrs(vA, vW, 0, 3, [11, 12, 13] + list(range(HS, 11)))
        a.I("s_waitcnt vmcnt(0)")
        self.dual(lambda: self.signal(4, 4, "SCX"))
        self.stamp()
        self.bar("w2_hand")
        for k in range(3, NC): wread(k)
        a.M(f"""
        s_lshl_b32 s66, s{sRB64}, 2
        s_add_u32 s66, s66, s{sOWN}
        s_lshl_b32 s66, s66, 4
        v_and_b32 v2, 15, v1
        v_add_u32 v24, s66, v2
        v_lshrrev_b32 v3, 4, v1
        v_lshlrev_b32 v4, 6, v24
        v_lshl_add_u32 v25, v3, 4, v4
        s_mov_b32 s58, {ST_OFF}
        """)
        a.M(f"""
        v_mul_u32_u24 v4, 1280, v24
        v_bfe_u32 v2, v1, 4, 1
        v_lshrrev_b32 v3, 5, v1
        v_lshl_add_u32 v6, v2, 1, v3
        v_lshl_add_u32 v27, v6, 4, v4
        v_lshrrev_b32 v6, 4, v1
        v_lshl_add_u32 v28, v6, 3, v4
        s_mul_i32 s59, s{sCB3}, 160
        """)
        for r in range(10):
            a.I(f"v_lshlrev_b32 v{HU+2*r}, 16, v{vH+r}")
            a.I(f"v_and_b32 v{HU+2*r+1}, 0xffff0000, v{vH+r}")
        a.I("s_waitcnt lgkmcnt(0)")
        if self.opt.get("pr5", 0): a.I(f"s_setprio {self.opt.get('pr5c', 2)}")
        self.bar("h1_ready")
        self.stamp()
        def areg(n): return AF + 4 * (n % NB)
        def load(n):
            u, k = divmod(n, NC)
            a.I(f"buffer_load_dwordx4 {vr(areg(n),4)}, v{vA+u}, {srd(sWS)}, s{70+k} offen sc1")
        for n in range(NUP): load(n)
        a.I(f"buffer_load_dwordx4 v[20:23], v25, {srd(sWS)}, s58 offen sc1")
        wr = lambda u: [f"ds_write_b128 v{vW+u}, {vr(accs[u]+4*f,4)} offset:{1024*f}" for f in range(5)] if u < 3 else None
        self.ksplit(NC, lambda st, f: WF + 20*st + 4*f, load, areg, None, NUP, accs, False, wr, {})
        if self.opt.get("fine4"): self.stamp()
        if self.opt.get("pr5", 0): a.I("s_setprio 0")
        a.I("v_add_f32 v20, v20, v22")
        a.I("v_add_f32 v21, v21, v23")
        for x, y in zip(rg_ops(20, 22), rg_ops(21, 23)):
            a.I(x); a.I(y)
        self.ln_stats(20, 21, 22, 23, 2)
        R = accs[3]
        a.I("s_waitcnt lgkmcnt(0)")
        self.bar("red5x")
        for k in range(5):
            for f in range(5):
                a.I(f"ds_read_b128 {vr(T+20*k+4*f,4)}, v{vW+3} offset:{5120*k+1024*f}")
        for k in range(5):
            for r in range(20): a.I(f"v_add_f32 v{R+r}, v{R+r}, v{T+20*k+r}")
        self.bar("red5a")
        if self.opt.get("fine4"): self.stamp()
        for f in range(5):
            a.I(f"ds_read_b128 {vr(T+4*f,4)}, v{vW+3} offset:{5120*5+1024*f}")
        for r in range(20): a.I(f"v_add_f32 v{R+r}, v{R+r}, v{T+r}")
        for r in range(20): a.I(f"v_fmac_f32 v{HU+r}, v22, v{R+r}")
        if self.opt.get("fine4"): self.stamp()
        self.bar("red5b")
        self.stamp()
        for f in range(5): a.I(f"ds_read_b128 {vr(T+4*f,4)}, v{vW+3} offset:{5120*6+1024*f}")
        for r in range(0, 20, 2):
            a.I(f"v_pk_fma_f32 {vr(HU+r,2)}, {vr(T+r,2)}, v[22:23], {vr(HU+r,2)} op_sel:[0,0,0] op_sel_hi:[1,0,1]")
        P = T + 20
        for r in range(10): a.I(f"v_cvt_pk_bf16_f32 v{P+r}, v{HU+2*r}, v{HU+2*r+1}")
        for pr in range(2):
            a.I(f"v_permlane16_swap_b32 v{P+4*pr}, v{P+4*pr+2}")
            a.I(f"v_permlane16_swap_b32 v{P+4*pr+1}, v{P+4*pr+3}")
        a.M(f"""
        buffer_store_dwordx4 {vr(P,4)}, v27, {srd(sOUT)}, s59 offen nt
        buffer_store_dwordx4 {vr(P+4,4)}, v27, {srd(sOUT)}, s59 offen offset:64 nt
        buffer_store_dwordx2 {vr(P+8,2)}, v28, {srd(sOUT)}, s59 offen offset:128 nt
        """)
        self.stamp()

    def h_phase1(self):
        a = self.a
        vDX, vDW, vM1, vM2 = 160, 162, 164, 166
        sM1, sM2 = 84, 96
        a.M(f"""
        s_lshl_b32 s67, s{sWAVE}, 4
        v_lshrrev_b32 v6, 3, v1
        v_add_u32 v6, s67, v6
        v_mul_u32_u24 v2, 1280, v6
        v_and_b32 v7, 7, v1
        v_lshrrev_b32 v4, 4, v1
        v_xor_b32 v3, v7, v4
        v_lshlrev_b32 v3, 4, v3
        v_xor_b32 v5, 64, v3
        v_add_u32 v{vDX}, v2, v3
        v_add_u32 v{vDX+1}, v2, v5
        v_add_u32 v{vDX+1}, {10240-1024}, v{vDX+1}
        v_mul_u32_u24 v2, 3840, v6
        v_and_b32 v4, 1, v4
        v_lshlrev_b32 v4, 2, v4
        v_xor_b32 v3, v7, v4
        v_lshl_add_u32 v{vDW}, v3, 4, v2
        v_add_u32 v{vDW+1}, {8*3840-1024}, v{vDW}
        s_lshl_b32 s78, s{sWAVE}, 11
        s_mul_i32 s{sTA}, s{sTA}, {64*1280}
        s_mul_i32 s{sTB}, s{sTB}, {64*1280}
        s_lshl_b32 s{sCA}, s{sCA}, 7
        s_lshl_b32 s{sCB}, s{sCB}, 7
        v_mov_b32 v34, 0
        s_mov_b32 s66, {64*3840}
        s_cmp_lt_u32 s{sJ}, 20
        s_cselect_b64 vcc, -1, 0
        s_cselect_b32 s79, s{sTB}, s{sCA}
        s_cselect_b32 s80, s{sCA}, s{sCB}
        s_cselect_b32 s81, s{sCB}, s{sTB}
        s_cselect_b32 s82, 128, s66
        s_cselect_b32 s83, s66, 128
        s_cselect_b32 s{sM1+2}, s{sX+2}, s{sWQKV+2}
        s_cselect_b32 s{sM2+2}, s{sWQKV+2}, s{sX+2}
        s_mov_b32 s{sM1+3}, 0x20000
        s_mov_b32 s{sM2+3}, 0x20000
        v_cndmask_b32 v{vM1}, v{vDW}, v{vDX}, vcc
        v_cndmask_b32 v{vM1+1}, v{vDW+1}, v{vDX+1}, vcc
        v_cndmask_b32 v{vM2}, v{vDX}, v{vDW}, vcc
        v_cndmask_b32 v{vM2+1}, v{vDX+1}, v{vDW+1}, vcc
        """)
        self.stamps = False
        self.prologue_finish()
        a.M(f"""
        s_cmp_lt_u32 s{sJ}, 20
        s_cselect_b64 s[{sM1}:{sM1+1}], s[{sX}:{sX+1}], s[{sWQKV}:{sWQKV+1}]
        s_cselect_b64 s[{sM2}:{sM2+1}], s[{sWQKV}:{sWQKV+1}], s[{sX}:{sX+1}]
        s_cmp_ge_u32 s{sJ}, 30
        s_cbranch_scc1 L_h_idle
        """)
        last = {}
        def block(n, v, sr, so, step):
            a.I(f"s_add_u32 m0, s78, {(n % NBLK) * 8192}")
            for i in range(2): r = a.I(f"buffer_load_dwordx4 v{v+i}, {srd(sr)}, s{so} offen offset:{1024*i} lds")
            a.I(f"s_add_u32 s{so}, s{so}, {step}")
            return r
        def dma(c):
            if c < 10:
                block(3*c, vDX, sX, sTA, 128)
                block(3*c + 1, vM1, sM1, 79, "s82")
                last[c] = block(3*c + 2, vDW, sWQKV, 80, 64*3840)
            else:
                for n in range(3*c, min(3*c + 3, 40)): last[c] = block(n, vM2, sM2, 81, "s83")
        def nonce_load(): a.I(f"buffer_load_dword v35, v34, {srd(sDBG)}, 0 offen sc1")
        def setup_all():
            self.h_setup2()
        NP = self.opt.get("npre", 2)
        for c in range(NP): dma(c)
        nxt = NP
        FL = self.opt.get("lastb", 12)
        for c in range(FL + 1):
            a.wait_vm(last[c if c < FL else 13])
            self.bar(f"p1_{c}")
            k = 0
            while nxt < 14 and nxt <= c + 3 and k < (2 if c == 1 else 1):
                dma(nxt); nxt += 1; k += 1
            if c == 2: nonce_load()
            if c == 5:
                self.nonce_check(35, 34)
                self.xg_publish(2)
            if c == self.opt.get('hsu', 10): setup_all()
            if c == FL:
                self.poll([30], 2, False)
                self.first_loads()
        a.I("s_branch L_h_p1_done")
        keep = (list(a.vm), list(a.lg))
        self.reset()
        a.label("L_h_idle")
        if self.opt.get("ipf", 1):
            a.M(f"""
            s_sub_u32 s66, s{sJ}, 30
            s_lshl_b32 s66, s66, 3
            s_add_u32 s66, s66, s{sXCD}
            s_lshl_b32 s66, s66, 2
            s_add_u32 s66, s66, s{sWAVE}
            s_lshl_b32 s66, s66, 13
            v_lshlrev_b32 v2, 7, v1
            """)
            for k in range(5):
                a.I(f"buffer_load_dword v{4+k}, v2, {srd(sWQKV)}, s66 offen")
                a.I(f"s_add_u32 s66, s66, {64*8192}")
        nonce_load()
        self.nonce_check(35, 34)
        self.xg_publish(2)
        setup_all()
        self.poll([30], 2, False)
        self.first_loads()
        a.fence()
        a.label("L_h_p1_done")
        a.fence(False)

    def first_loads(self):
        a = self.a
        self.kv = getattr(self, "kv", {})
        self.kv_dma(0)
        a.I(f"s_mul_i32 s66, s{sWAVE}, 3072")
        a.I(f"s_add_u32 m0, s66, {QST}")
        for i in range(3): self.qid = a.I(f"buffer_load_dwordx4 v{vKV}, {srd(sWS)}, s{sQS} offen offset:{1024*i} sc1 lds")
        self.kv_dma(1)
        for k in (6, 7, 8, 9): a.I(f"ds_write_b32 v21, v10 offset:{k*7168}")

    def kv_dma(self, c):
        a = self.a
        a.I(f"s_add_u32 m0, s{sKVD}, {((c + KSL) % NSLOT) * SLOT}")
        a.I(f"s_xor_b32 s{sT0}, s{sKVS}, {c << 19}")
        for i in range(3):
            self.kv[c] = a.I(f"buffer_load_dwordx4 v{vKV+i}, {srd(sWS)}, s{sT0} offen offset:{1024*i} sc1 lds")

    def h_setup2(self):
        a = self.a
        self.roles()
        a.M(f"""
        s_lshr_b32 s61, s{sWAVE}, 1
        s_and_b32 s62, s{sWAVE}, 1
        s_lshr_b32 s66, s{sB3}, 2
        s_add_u32 s67, s{sB3}, 2
        s_lshr_b32 s67, s67, 2
        s_sub_u32 s67, s67, s66
        v_bfe_u32 v2, v1, 1, 1
        v_mul_u32_u24 v2, s67, v2
        v_add_u32 v2, s66, v2
        s_mul_i32 s63, s61, 20
        s_add_u32 s63, s63, 20
        v_add_u32 v3, s63, v2
        v_and_b32 v6, 1, v1
        v_lshrrev_b32 v4, 2, v1
        v_lshl_add_u32 v4, v4, 1, s62
        v_lshl_add_u32 v5, v4, 1, v6
        v_lshl_add_u32 v5, v3, 6, v5
        v_lshlrev_b32 v5, 7, v5
        v_add_u32 v19, {F1_OFF}, v5
        s_lshr_b32 s64, s{sH}, 4
        s_lshl_b32 s63, s64, 3
        v_and_b32 v4, 7, v4
        v_add_u32 v4, s63, v4
        v_lshl_add_u32 v4, v4, 1, v6
        v_lshl_add_u32 v3, v3, 6, v4
        s_lshl_b32 s63, s{sBLK}, 1
        v_add_u32 v6, s63, v6
        v_lshl_add_u32 v2, v2, 6, v6
        v_cmp_gt_u32 vcc, 32, v1
        v_cndmask_b32 v2, v2, v3, vcc
        v_lshlrev_b32 v2, 7, v2
        v_add_u32 v30, {F1_OFF}, v2
        s_lshl_b32 s66, s61, 2
        v_xor_b32 v2, s66, v1
        v_lshlrev_b32 v{vKV+1}, 4, v2
        s_lshl_b32 s66, s61, 3
        v_xor_b32 v2, s66, v1
        v_lshlrev_b32 v{vKV+2}, 4, v2
        s_mul_i32 s66, s61, 80
        s_add_u32 s66, s66, 80
        s_add_u32 s66, s66, s{sB3}
        s_lshl_b32 s67, s62, 8
        s_add_u32 s66, s66, s67
        s_and_b32 s67, s{sQB}, 3
        s_lshl_b32 s64, s64, 2
        s_add_u32 s67, s67, s64
        s_lshl_b32 s67, s67, 9
        s_add_u32 s66, s66, s67
        s_lshl_b32 s{sKVS}, s66, 10
        s_mul_i32 s{sKVD}, s62, 7168
        s_mul_i32 s66, s61, 3072
        s_add_u32 s{sKVD}, s{sKVD}, s66
        s_add_u32 s{sKVD}, s{sKVD}, {RING}
        s_lshl_b32 s66, s{sWAVE}, 8
        s_add_u32 s66, s66, {RING+6144}
        v_lshl_add_u32 v21, v1, 2, s66
        s_lshl_b32 s{sQS}, s{sBLK}, 8
        s_add_u32 s{sQS}, s{sQS}, s{sB3}
        s_lshl_b32 s{sQS}, s{sQS}, 10
        s_add_u32 s76, s4, {F0_OFF - F2_OFF}
        v_add_u32 v20, 4096, v{vKV}
        v_and_b32 v5, 3, v1
        v_mov_b32 v10, 0x3f80
        v_cmp_eq_u32 vcc, 0, v5
        v_cndmask_b32 v10, 0, v10, vcc
        """)

    def h_setup3(self):
        a = self.a
        a.M(f"""
        s_mul_i32 s66, s{sCB3}, 5
        s_mul_i32 s67, s{sWAVE}, {14*40}
        s_add_u32 s67, s67, s66
        s_lshl_b32 s67, s67, 10
        s_add_u32 s{sW2S}, s67, {W2F_OFF}
        s_mul_i32 s67, s{sWAVE}, {5*40}
        s_add_u32 s67, s67, s66
        s_lshl_b32 s67, s67, 10
        s_add_u32 s{sWOS}, s67, {WOF_OFF}
        s_mul_i32 s63, s5, 7
        s_mul_i32 s67, s{sWAVE}, 112
        s_add_u32 s67, s67, s63
        s_lshl_b32 s67, s67, 10
        s_add_u32 s{sW1S}, s67, {W1F_OFF}
        s_mul_i32 s7, s{sWAVE}, 7168
        v_and_b32 v2, 1, v1
        v_lshrrev_b32 v3, 1, v1
        v_lshl_add_u32 v4, v2, 2, s66
        v_lshrrev_b32 v4, 3, v4
        v_mul_u32_u24 v5, 6, v2
        v_add_u32 v5, s63, v5
        v_lshrrev_b32 v5, 3, v5
        s_mul_i32 s67, s{sWAVE}, 14
        v_add_u32 v6, s67, v3
        v_min_u32 v6, 53, v6
        v_mad_u32_u24 v6, v6, 5, v4
        s_mul_i32 s67, s{sWAVE}, 5
        s_add_u32 s67, s67, {54-14}
        v_add_u32 v7, s67, v3
        v_mad_u32_u24 v7, v7, 5, v4
        v_cmp_le_u32 vcc, 14, v3
        v_cndmask_b32 v6, v6, v7, vcc
        v_subrev_u32 v7, 19, v3
        v_min_u32 v7, 4, v7
        v_lshl_add_u32 v7, v7, 2, s{sWAVE}
        v_mad_u32_u24 v7, v7, 14, v5
        v_add_u32 v7, 370, v7
        v_cmp_le_u32 vcc, 19, v3
        v_cndmask_b32 v6, v6, v7, vcc
        v_lshlrev_b32 v6, 7, v6
        v_add_u32 v29, {FR_OFF}, v6
        s_lshl_b32 s66, s{sJ}, 2
        s_add_u32 s66, s66, s{sWAVE}
        s_mul_i32 s67, s66, 5
        v_add_u32 v11, s67, v1
        v_lshlrev_b32 v11, 7, v11
        v_min_u32 v11, CODE_BYTES-64, v11
        s_lshl_b32 s67, s{sXCD}, 7
        s_add_u32 s66, s66, s67
        s_mul_i32 s67, s66, {54*128}
        s_add_u32 s67, s67, {H1_OFF}
        v_lshl_add_u32 v22, v1, 7, s67
        s_lshl_b32 s67, s66, 7
        s_add_u32 s67, s67, {ST_OFF}
        v_mov_b32 v2, s67
        v_cmp_le_u32 vcc, 54, v1
        v_cndmask_b32 v22, v22, v2, vcc
        s_mul_i32 s67, s66, {20*128}
        s_add_u32 s67, s67, {H_OFF}
        v_lshl_add_u32 v23, v1, 7, s67
        s_and_b32 s67, s89, 0xfffffc00
        s_sub_u32 s67, s67, {20*128}
        v_lshl_add_u32 v2, v1, 7, s67
        v_cmp_le_u32 vcc, 20, v1
        v_cndmask_b32 v23, v23, v2, vcc
        s_lshl_b32 s67, s66, 7
        s_add_u32 s67, s67, {F2_OFF - 28*131072}
        v_lshlrev_b32 v2, 17, v1
        v_add_u32 v2, s67, v2
        v_cmp_le_u32 vcc, 28, v1
        v_cndmask_b32 v23, v23, v2, vcc
        v_and_b32 v2, 7, v1
        s_lshl_b32 s66, s{sWAVE}, 3
        v_add_u32 v2, s66, v2
        v_lshl_add_u32 v2, v2, 5, s{sRB64}
        v_lshlrev_b32 v2, 7, v2
        v_add_u32 v2, {F0_OFF}, v2
        v_lshrrev_b32 v3, 3, v1
        v_cmp_eq_u32 vcc, {6 if self.opt.get("so3", 0) else 60}, v3
        v_cndmask_b32 v29, v29, v2, vcc
        """)
        self.rp = repack_setup(self)

    def w2h(self, st, f): return 36 + 20*st + 4*f

    def h_rest(self):
        a = self.a
        SO3 = self.opt.get("so3", 0)
        kv, kv_dma = self.kv, self.kv_dma
        def w2load(st):
            a.I(f"s_add_u32 s{sT1}, s{sW2S}, {st*40*1024}")
            for i in range(5):
                a.I(f"buffer_load_dwordx4 {vr(self.w2h(st,i),4)}, v{vKV if i < 4 else 20}, {srd(sWS)}, s{sT1} offen offset:{1024*(i%4)} sc1")
        def frag_dma(base, st, dst):
            a.I(f"s_add_u32 m0, s66, {dst}")
            a.I(f"s_add_u32 s{sT1}, s{base}, {st*40*1024}")
            for i in range(4): a.I(f"buffer_load_dwordx4 v{vKV}, {srd(sWS)}, s{sT1} offen offset:{1024*i} sc1 lds")
            a.I(f"s_add_u32 m0, s66, {dst+4096}")
            return a.I(f"buffer_load_dwordx4 v20, {srd(sWS)}, s{sT1} offen sc1 lds")
        def thin(k):
            m = ((1 << 14) - 1) << (14 * k) if k < 4 else (1 << 31) - 1
            a.I(f"s_mov_b32 exec_lo, {hex(m & 0xffffffff)}")
            a.I(f"s_mov_b32 exec_hi, {hex(m >> 32)}")
            a.I(f"buffer_load_dword v{4+k}, v{22 if k < 4 else 23}, {srd(sWS)}, 0 offen sc1")
            a.I("s_mov_b64 exec, -1")
        def ctouch():
            if not self.opt.get("ctouch", 1): return
            a.I("s_mov_b64 exec, 0x1f")
            a.I("global_load_dword v12, v11, s[92:93]")
            a.I("s_mov_b64 exec, -1")
        a.wait_vm(self.qid)
        a.I("s_waitcnt lgkmcnt(0)")
        self.bar("first")
        kv_dma(2); kv_dma(3)
        for k in (0, 1, 2, 3): a.I(f"ds_write_b32 v21, v10 offset:{k*7168}")
        self.h_setup3()
        a.wait_vm(kv[1])
        self.bar("kv1")
        for k in (4, 5): a.I(f"ds_write_b32 v21, v10 offset:{k*7168}")
        ctouch()
        for it in self.rp[0]: it()
        if SO3:
            for k in range(4): a.I(f"v_mov_b32 v{172+k}, -1")
            a.I(f"buffer_store_dwordx4 v[172:175], v{vQ0}, {srd(sWS)}, s88 offen sc1")
            a.I(f"buffer_store_dwordx4 v[172:175], v{vQ0}, {srd(sWS)}, s88 offen offset:512 sc1")
            a.I(f"buffer_store_dwordx2 v[172:173], v{vKV}, {srd(sWS)}, s75 offen sc1")
        a.wait_vm(kv[3])
        a.I("s_waitcnt lgkmcnt(0)")
        self.bar("kv2")
        self.poll([19], 2, False)
        kv_dma(4); kv_dma(5)
        if self.opt.get("ctouch", 1) > 1: ctouch()
        self.rp[1]()
        for k in range(8):
            a.I(f"v_xor_b32 v2, {32*k}, v254")
            self.rp[2][k]()
        for k in range(8): self.rp[3][k]()
        for k in range(4): a.I(f"v_mov_b32 v{168+k}, 0x3f803f80")
        for k in range(8):
            a.I(f"v_mfma_f32_16x16x32_bf16 {vr(176+4*k,4)}, v[168:171], {vr(208+4*k,4)}, 0")
        a.I("v_lshrrev_b32 v3, 4, v1")
        a.I("v_lshlrev_b32 v2, 2, v1")
        for q in range(1, 4):
            a.I(f"v_cmp_eq_u32 vcc, {q}, v3")
            for hh in range(2):
                a.I(f"v_cndmask_b32 v{176+16*hh}, v{176+16*hh}, v{176+16*hh+4*q}, vcc")
        for hh in range(2): a.I(f"buffer_store_dword v{176+16*hh}, v2, {srd(sWS)}, s90 offen offset:{256*hh} sc1")
        rpst = a.vm[-1][0]
        a.wait_vm(kv[5])
        self.bar("kv4")
        kv_dma(6); kv_dma(7)
        a.wait_vm(rpst)
        self.signal(101, 2)
        if SO3: self.signal(76, 2)
        thin(0); thin(1)
        SCH = self.opt.get("sch", 0)
        if SCH:
            self.poll([29], 2, False)
            for st in range(0, 2): w2load(st)
        a.wait_vm(kv[7])
        self.bar("kv6")
        if not SCH: self.poll([29], 2, False)
        kv_dma(8); kv_dma(9)
        if self.opt.get("ctouch", 1) > 1: ctouch()
        a.I(f"s_mul_i32 s66, s{sWAVE}, 20480")
        for st in range(4): w = frag_dma(sWOS, st, 5120*st)
        if not SCH: w2load(0)
        a.wait_vm(w)
        self.bar("kv8")
        kv_dma(10); kv_dma(11)
        for st in range(2 if SCH else 1, 5): w2load(st)
        thin(2)
        ctouch()
        a.wait_vm(kv[11])
        self.bar("kv10")
        kv_dma(12); kv_dma(13)
        for st in range(5, 8): w2load(st)
        run(w1f_dma(self, 0, vKV))
        thin(3)
        if SCH: thin(4)
        a.wait_vm(kv[13])
        self.bar("kv12")
        kv_dma(14); kv_dma(15)
        if self.opt.get("ctouch", 1) > 1: ctouch()
        for st in range(8, 11): w2load(st)
        run(w1f_dma(self, 1, vKV))
        if not SCH: thin(4)
        a.wait_vm(kv[15])
        self.bar("kv14")
        a.M(f"""
        s_mul_i32 s66, s{sWAVE}, 5120
        s_cmp_lt_u32 s{sWAVE}, 2
        s_cselect_b32 s67, 0, {4*SLOT - 10240}
        s_add_u32 s66, s66, s67
        """)
        frag_dma(sWOS, 4, WST)
        run(w1f_dma(self, 2, vKV))
        CP = 24
        a.M(f"""
        v_lshrrev_b32 v2, 3, v1
        v_mul_u32_u24 v3, 7168, v2
        v_and_b32 v9, 7, v1
        v_lshl_add_u32 v3, v9, 4, v3
        v_lshrrev_b32 v2, 5, v1
        v_lshl_add_u32 v9, v2, 30, v3
        s_mul_i32 s66, s5, 448
        s_mul_i32 s67, s{sWAVE}, 112
        s_add_u32 s66, s66, s67
        s_add_u32 s66, s66, {CS_OFF}
        s_add_u32 s67, s66, {8*7168}
        s_add_u32 s62, s66, {16*7168}
        buffer_load_dwordx4 {vr(CP,4)}, v3, {srd(sWS)}, s66 offen sc1
        buffer_load_dwordx4 {vr(CP+4,4)}, v3, {srd(sWS)}, s67 offen sc1
        buffer_load_dwordx4 {vr(CP+8,4)}, v9, {srd(sWS)}, s62 offen sc1
        """)
        if self.opt.get("rt2", 1):
            a.M(f"""
            s_mov_b32 exec_hi, 0
            buffer_load_dword v4, v23, {srd(sWS)}, 0 offen sc1
            s_mov_b32 exec_hi, -1
            buffer_load_dword v5, v22, {srd(sWS)}, 0 offen sc1
            v_min_u32 v2, 55, v1
            v_lshlrev_b32 v2, 7, v2
            s_add_u32 s66, s{sW1S}, {3*4*112*1024}
            s_add_u32 s67, s{sW1S}, {4*4*112*1024}
            buffer_load_dword v6, v2, {srd(sWS)}, s66 offen sc1
            buffer_load_dword v7, v2, {srd(sWS)}, s67 offen sc1
            """)
        a.I("s_waitcnt vmcnt(%d)" % (4 if self.opt.get("rt2", 1) else 0))
        self.bar("att_end")
        for e in range(4): a.I(f"v_add_f32 v{CP+e}, v{CP+e}, v{CP+4+e}")
        for e in range(4): a.I(f"v_add_f32 v{CP+e}, v{CP+e}, v{CP+8+e}")
        for e in range(4): a.I(f"v_add_f32_dpp v{CP+e}, v{CP+e}, v{CP+e} row_ror:8 row_mask:0xf bank_mask:0xf")
        for ops in zip(*[rg_ops(CP+e, CP+4+e) for e in range(4)]):
            for x in ops: a.I(x)
        vW, vA = 8, 12
        a.I("s_waitcnt vmcnt(0)")
        self.p5_addrs(vA, vW, 3, 4, list(range(9)))
        a.M(f"""
        v_and_b32 v2, 3, v1
        s_lshl_b32 s67, s{sWAVE}, 2
        s_lshr_b32 s66, s{sRB64}, 1
        s_lshl_b32 s66, s66, 4
        s_add_u32 s66, s66, s67
        v_add_u32 v2, s66, v2
        v_bfe_u32 v3, v1, 2, 1
        v_lshl_add_u32 v2, v2, 2, v3
        s_and_b32 s66, s{sRB64}, 1
        s_lshl_b32 s66, s66, 1
        v_add_u32 v2, s66, v2
        v_lshlrev_b32 v2, 7, v2
        v_add_u32 v17, {F4_OFF}, v2
        s_mul_i32 s66, s{sWAVE}, 112
        s_add_u32 s66, s66, 143360
        v_add_u32 v6, s66, v{vKV}
        s_mul_i32 s66, s{sWAVE}, 5120
        s_add_u32 s67, s66, 61440
        v_add_u32 v7, s67, v{vKV}
        """)
        W1T = self.opt.get("w1t", 1)
        self.bar("wo_read")
        if W1T == 0: run(w1f_dma(self, 3, vKV) + w1f_dma(self, 4, vKV))
        if W1T == 1: run(w1f_dma(self, 3, vKV))
        self.bar("red3_1")
        self.bar("red3_2")
        self.bar("red3_3")
        if W1T == 1: run(w1f_dma(self, 4, vKV))
        if W1T == 2: run(w1f_dma(self, 3, vKV) + w1f_dma(self, 4, vKV))
        self.bar("red3_done")
        a.M(f"""
        s_mov_b64 exec, 0x7f
        ds_write_b128 v6, {vr(CP,4)}
        s_mov_b64 exec, -1
        s_waitcnt vmcnt(0) lgkmcnt(0)
        """)
        self.bar("w1_mid")
        for k, st in enumerate((11, 12, 13)):
            frag_dma(sW2S, st, 20480*k)
            a.I("s_waitcnt vmcnt(0)")
        self.bar("w1_done")
        HS = self.opt.get("hs", 9)
        for k in range(11 - HS):
            for f in range(5): a.I(f"ds_write_b128 v7, {vr(self.w2h(HS+k,f),4)} offset:{20480*k+1024*f}")
        a.I("s_waitcnt lgkmcnt(0)")
        self.bar("w2_hand")
        slots = [20, 24, 28, 32] + list(range(36 + 20*HS, 216, 4))
        NUP = min(self.opt.get("nb5h", 6), len(slots) - 1)
        NB = NUP + 1
        accs = [216, 236, 216, 236]
        def areg(n): return slots[n % NB]
        def load(n):
            u, k = divmod(n, HS)
            a.I(f"buffer_load_dwordx4 {vr(areg(n),4)}, v{vA+u}, {srd(sWS)}, s{70+k} offen sc1")
        self.poll([17], 2)
        for n in range(NUP): load(n)
        if self.opt.get("pr5", 0): a.I("s_setprio 1")
        self.bar("h1_ready")
        wr = lambda u: [f"ds_write_b128 v{vW+u}, {vr(accs[u]+4*f,4)} offset:{1024*f}" for f in range(5)]
        def mid(name):
            def f():
                a.I("s_waitcnt lgkmcnt(0)")
                self.bar(name)
            return f
        last, _ = self.ksplit(HS, self.w2h, load, areg, None, NUP, accs, False, wr, {(2, self.opt.get("r5x", 2)): mid("red5x"), (3, 2): mid("red5a")})
        for x in last: a.I(x)
        a.I("s_waitcnt lgkmcnt(0)")
        self.bar("red5b")

    def build(self):
        a = self.a
        self.prologue()
        a.I(f"s_lshr_b32 s7, s{sWAVE}, 2")
        a.I(f"s_and_b32 s{sWAVE}, s{sWAVE}, 3")
        self.coords()
        a.I("s_cmp_eq_u32 s7, 0")
        a.I("s_cbranch_scc1 L_compute")
        state = (list(a.vm), list(a.lg))
        self.bars = []
        keep = self.stamps
        self.h_phase1(); self.h_rest()
        a.I("s_endpgm")
        self.stamps = keep
        cb, self.bars = self.bars, []
        a.vm, a.lg = state; a.hist = []
        a.label("L_compute")
        self.c_phase1(); self.c_phase2(); self.c_phase3(); self.c_phase4(); self.c_phase5()
        self.dump_stamps()
        a.label("L_end")
        a.I("s_endpgm")
        assert cb == self.bars, (cb, self.bars)
        n0 = len(a.lines)
        gen2.slow_path(self, scratch=SLOWS)
        i = 0
        while i < len(self.stubs):
            self.stubs[i](); i += 1
        head = open(f"cdna_kernels/{NAME}.s.ref").read().split("; Override launch")[0]
        return head + f"""; @launch grid=(256,1,1) block=(512,1,1) lds=163840
.amdgcn_target "amdgcn-amd-amdhsa--gfx950"
.text
.globl {KNAME}
.p2align 8
.type {KNAME},@function
{KNAME}:
""" + a.text() + f"""L_code_end:
.set CODE_BYTES, L_code_end-{KNAME}
.section .rodata,"a"
.p2align 6
.amdhsa_kernel {KNAME}
  .amdhsa_next_free_vgpr 256
  .amdhsa_next_free_sgpr 102
  .amdhsa_accum_offset 256
  .amdhsa_group_segment_fixed_size 0
  .amdhsa_kernarg_size 72
  .amdhsa_user_sgpr_count 2
  .amdhsa_user_sgpr_kernarg_segment_ptr 1
  .amdhsa_system_sgpr_workgroup_id_x 1
.end_amdhsa_kernel
"""

if __name__ == "__main__":
    import argparse
    ap = argparse.ArgumentParser()
    ap.add_argument("-o", default="out.s")
    ap.add_argument("--stamps", action="store_true")
    ap.add_argument("--ahead", type=int, default=3)
    ap.add_argument("--probe", default=None)
    ap.add_argument("--opt", default="")
    args = ap.parse_args()
    kw = {k: int(v) for k, v in (x.split('=') for x in args.opt.split(',') if x)}
    g = Gen4(stamps=args.stamps or args.probe is not None, p1_ahead=args.ahead,
             probe=tuple(map(int, args.probe.split(':'))) if args.probe else None, **kw)
    s = g.build()
    open(args.o, "w").write(s)
    print(f"stamps {g.nstamp} instrs {g.a.nins} nops {g.a.nnop} autowaits {g.a.nwait} bytes {len(s)}")
```
